```python
import torch

def _softmax(x, axis=-1):
    return torch.softmax(x, dim=axis)

def _gelu(x):
    return torch.nn.functional.gelu(x, approximate='tanh')

def _silu(x):
    return torch.nn.functional.silu(x)

def _sigmoid(x):
    return torch.sigmoid(x)

def _layernorm(x, axis=-1, eps=1e-05):
    m = x.mean(dim=axis, keepdim=True)
    v = x.var(dim=axis, keepdim=True, unbiased=False)
    return (x - m) / torch.sqrt(v + eps)

def _scatter_add(tgt, idx, src, axis=0):
    return tgt.clone().index_add_(axis, idx, src)

def _segment_sum(src, seg, n):
    out = torch.zeros((n,) + src.shape[1:], dtype=src.dtype)
    return out.index_add_(0, seg, src)

def _pad(x, pw):
    flat = tuple((v for pair in reversed(pw) for v in pair))
    return torch.nn.functional.pad(x, flat)
kernel_name = 'recurrent_scan__ssm_conv_s4d__mixer_gmlp__prompt'

def setup_inputs():

    _w = lambda a: (lambda t: t.to(torch.bfloat16) if t.is_floating_point() else t)(torch.as_tensor(a))

    def _A_setup():
        Bsz, L, D, N = (1, 2048, 448, 256)
        return {'u': _w((lambda *s: torch.randn(*s, dtype=torch.bfloat16) * 0.05)(Bsz, L, D)), 'log_A_real': _w((lambda *s: torch.randn(*s, dtype=torch.bfloat16) * 6.4)(D, N) * 0.5), 'A_imag': _w((lambda *s: torch.randn(*s, dtype=torch.bfloat16) * 0.05)(D, N) * 3.14), 'C_real': _w((lambda *s: torch.randn(*s, dtype=torch.bfloat16) * 0.05)(D, N) / N ** 0.5), 'C_imag': _w((lambda *s: torch.randn(*s, dtype=torch.bfloat16) * 0.05)(D, N) / N ** 0.5), 'log_dt': _w((lambda *s: torch.randn(*s, dtype=torch.bfloat16) * 0.05)(D) * 0.5 - 4.0), 'D_skip': _w((lambda *s: torch.randn(*s, dtype=torch.bfloat16) * 0.05)(D))}
    _A_in = _A_setup()

    def _B_setup():
        B, S, D, F = (1, 2048, 448, 1792)
        Fh = F // 2
        return {'x': _w((lambda *s: torch.randn(*s, dtype=torch.bfloat16) * 0.05)(B, S, D)), 'w_in': _w((lambda *s: torch.randn(*s, dtype=torch.bfloat16) * 0.4)(D, 2 * Fh)), 'w_sp': _w(0.01 * (lambda *s: torch.randn(*s, dtype=torch.bfloat16) * 0.4)(S, S)), 'b_sp': _w(1.0 + 0.01 * (lambda *s: torch.randn(*s, dtype=torch.bfloat16) * 0.05)(S)), 'w_out': _w((lambda *s: torch.randn(*s, dtype=torch.bfloat16) * 0.05)(Fh, D))}
    _B_in = _B_setup()
    return {'A_u': _A_in['u'], 'A_log_A_real': _A_in['log_A_real'], 'A_A_imag': _A_in['A_imag'], 'A_C_real': _A_in['C_real'], 'A_C_imag': _A_in['C_imag'], 'A_log_dt': _A_in['log_dt'], 'A_D_skip': _A_in['D_skip'], 'B_x': _B_in['x'], 'B_w_in': _B_in['w_in'], 'B_w_sp': _B_in['w_sp'], 'B_b_sp': _B_in['b_sp'], 'B_w_out': _B_in['w_out']}

def reference(A_u, A_log_A_real, A_A_imag, A_C_real, A_C_imag, A_log_dt, A_D_skip, B_x, B_w_in, B_w_sp, B_b_sp, B_w_out):

    def _A_ref(u, log_A_real, A_imag, C_real, C_imag, log_dt, D_skip):
        L = u.shape[1]
        dt = torch.exp(log_dt)
        A = -torch.exp(log_A_real) + 1j * A_imag
        C = (C_real + 1j * C_imag) * dt[:, None]
        pos = (lambda x, dt: x.to(dt))(torch.arange(L), log_dt.dtype)
        P = torch.exp((A * dt[:, None])[:, :, None] * pos[None, None, :])
        K = 2.0 * torch.einsum('dn,dnl->dl', C, P).real
        L2 = 2 * L
        u_t = (lambda x, *d: x.permute(*d))(u, 0, 2, 1)
        Kf = (lambda x, *a, **k: torch.fft.rfft(x.float(), *a, **k))(K, L2)
        Uf = (lambda x, *a, **k: torch.fft.rfft(x.float(), *a, **k))(u_t, L2)
        y = (lambda x, *a, **k: torch.fft.irfft(x, *a, **k).to(torch.bfloat16))(Uf * Kf[None, :, :], L2)[:, :, :L]
        y = (lambda x, *d: x.permute(*d))(y, 0, 2, 1)
        return y + u * D_skip[None, None, :]

    def _B_ref(x, w_in, w_sp, b_sp, w_out):
        B, S, D = x.shape
        F = w_in.shape[-1]
        Fh = F // 2
        z = _gelu(torch.einsum('bsd,df->bsf', x, w_in))
        z1 = z[..., :Fh].clone()
        z2 = _layernorm(z[..., Fh:], axis=-1)
        g = torch.einsum('ts,bsf->btf', w_sp, z2) + b_sp[None, :, None]
        return torch.einsum('bsf,fd->bsd', z1 * g, w_out)
    x = A_u
    xn = _layernorm(x, axis=-1)
    s = _A_ref(xn, A_log_A_real, A_A_imag, A_C_real, A_C_imag, A_log_dt, A_D_skip)
    g = _silu(_B_ref(xn, B_w_in, B_w_sp, B_b_sp, B_w_out))
    return x + s * g
```

```python
import sys, math, struct
sys.path.insert(0, "work")
from kg import *

NAME = "recurrent_scan__ssm_conv_s4d__mixer_gmlp__prompt_kernel"

def f2u(x): return struct.unpack("<I", struct.pack("<f", x))[0]

WS_FLAG = 0x0
WS_STAT = 0x20000
WS_UT   = 0x100000
WS_Z    = 0x400000
WS_ST   = 0x800000
WS_H    = 0xC00000
WS_DBG  = 0x2000000
WS_SIZE = 0x10000000

S_WG = 2; S_W = 3; S_TB = 4; S_FB = 5; S_RHO = 6; S_RHO2 = 7
SRD_X = 8; SRD_WIN = 12; SRD_WSP = 16; SRD_WOUT = 20; SRD_WS = 24; SRD_OUT = 28; SRD_DBG = 32
P_LOGA = 36; P_AIM = 38; P_CRE = 40; P_CIM = 42; P_LOGDT = 44; P_DSK = 46; P_BSP = 48
S_T0 = 50
S_OFF1 = 52; S_OFF2 = 53
S_MASK = 54
S_ONES = 55
S_TMP = 56

XB = 0
W2B = 57344
def chunk_lds(c):
    if c < 14: return W2B + 7168 * c
    if c < 22: return (c % 4) * 14336 + ((c - 14) >> 2) * 7168
    return W2B + 7168 * (c - 22)

class Gen:
    def __init__(self, stop=None, stamps=False):
        self.k = K()
        self.stop = stop
        self.stamps = stamps
        self.nstamp = 0
        self.bgq = []
        self.stamp_names = []
    def bg(self, n=1):
        for _ in range(n):
            if self.bgq:
                f = self.bgq.pop(0)
                f()
    def bg_flush(self):
        while self.bgq: self.bg()
    def stamp(self, name):
        if not self.stamps: return
        k = self.k
        k(f"s_memtime s[98:99]")
        k("s_waitcnt lgkmcnt(0)")
        k(f"s_sub_u32 s98, s98, s{S_T0}")
        k(f"v_writelane_b32 v{self.V_STAMP}, s98, {self.nstamp}")
        self.stamp_names.append(name)
        self.nstamp += 1
    def srd(self, dst, src, nbytes):
        self.k(f"""
        s_mov_b32 s{dst}, s{src}
        s_mov_b32 s{dst+1}, s{src+1}
        s_mov_b32 s{dst+2}, {nbytes}
        s_mov_b32 s{dst+3}, 0x20000
        """)
    def dump(self, regs, slot, file="v"):
        k = self.k
        n = len(regs)
        k(f"""
        s_lshl_b32 s96, s{S_WG}, 2
        s_add_u32 s96, s96, s{S_W}
        s_mul_i32 s96, s96, {n*256}
        s_add_u32 s96, s96, {WS_DBG + slot * 0x1000000}
        v_lshlrev_b32 v{self.V_DT}, 2, v1
        """)
        for i, r in enumerate(regs):
            k(f"buffer_store_dword {file}{r}, v{self.V_DT}, s[{SRD_WS}:{SRD_WS+3}], s96 offen")
            k("s_add_u32 s96, s96, 256")
    def finish(self):
        k = self.k
        if self.stamps:
            self.dump([self.V_STAMP], 7)
        k("s_endpgm")

    V_XD = 2; V_XR = 3; V_WD = 4
    V_TR = 11
    V_T = 14; V_T2 = 15
    V_X = 16
    V_B = 72
    V_ACC = 128
    V_Z = 156
    V_ID = 184
    V_TMP = 88
    V_S = 212
    V_DT = 238; V_STAMP = 239
    V_Z1 = 240

    def prologue(self):
        k = self.k
        k(f"""
        s_cmp_ge_u32 s2, 256
        s_cbranch_scc1 L_exit
        s_load_dwordx16 s[64:79], s[0:1], 0
        s_load_dwordx8 s[80:87], s[0:1], 64
        s_load_dwordx4 s[88:91], s[0:1], 96
        s_load_dwordx2 s[92:93], s[0:1], 112
        """)
        if self.stamps:
            k(f"s_memtime s[{S_T0}:{S_T0+1}]")
            k(f"v_mov_b32 v{self.V_STAMP}, 0")
        k(f"""
        v_lshrrev_b32 v{self.V_T}, 6, v0
        v_and_b32 v1, 63, v0
        v_readfirstlane_b32 s{S_W}, v{self.V_T}
        s_and_b32 s56, s2, 7
        s_lshr_b32 s57, s2, 3
        s_lshr_b32 s58, s56, 1
        s_lshl_b32 s58, s58, 3
        s_and_b32 s59, s57, 7
        s_add_u32 s{S_TB}, s58, s59
        s_and_b32 s58, s56, 1
        s_lshl_b32 s58, s58, 2
        s_lshr_b32 s60, s57, 3
        s_add_u32 s{S_FB}, s58, s60
        s_mul_i32 s58, s59, 7
        s_lshr_b32 s58, s58, 2
        s_lshl_b32 s61, s60, 2
        s_add_u32 s58, s58, s61
        s_and_b32 s61, s56, 1
        s_lshl_b32 s61, s61, 1
        s_add_u32 s58, s58, s61
        s_sub_u32 s61, s58, 14
        s_cmp_ge_u32 s58, 14
        s_cselect_b32 s{S_RHO}, s61, s58
        s_lshl_b32 s61, s60, 1
        s_add_u32 s61, s61, s59
        s_and_b32 s61, s61, 7
        s_lshl_b32 s{S_RHO2}, s61, 1
        s_mul_i32 s{S_OFF1}, s{S_FB}, 224
        s_xor_b32 s61, s{S_FB}, 1
        s_mul_i32 s{S_OFF2}, s61, 224
        s_add_u32 s{S_OFF2}, s{S_OFF2}, 1792
        s_mov_b32 s{S_MASK}, 0xffff0000
        s_mov_b32 s{S_ONES}, 0x3f803f80
        v_lshrrev_b32 v{self.V_T}, 2, v0
        v_mul_u32_u24 v{self.V_XD}, 896, v{self.V_T}
        v_lshrrev_b32 v{self.V_T}, 4, v1
        v_and_b32 v{self.V_T}, 2, v{self.V_T}
        v_and_b32 v{self.V_T2}, 3, v1
        v_xor_b32 v{self.V_T}, v{self.V_T}, v{self.V_T2}
        v_lshl_add_u32 v{self.V_XD}, v{self.V_T}, 4, v{self.V_XD}
        s_waitcnt lgkmcnt(0)
        """)
        self.stamp("kernarg")
        self.srd(SRD_X, 64, 2048 * 448 * 2)
        self.srd(SRD_WS, 92, WS_SIZE)
        k(f"""
        s_or_b32 s56, s{S_FB}, s{S_W}
        s_cmp_lg_u32 s56, 0
        s_cbranch_scc1 L_noclear
        """)
        k.optional += 1
        T = self.V_TMP
        k(f"""
        v_mov_b32 v{T}, -1
        v_mov_b32 v{T+1}, -1
        v_mov_b32 v{T+2}, -1
        v_mov_b32 v{T+3}, -1
        v_lshlrev_b32 v{T+8}, 4, v1
        s_lshl_b32 s56, s{S_TB}, 12
        s_add_u32 s56, s56, {WS_STAT}
        buffer_store_dwordx4 v[{T}:{T+3}], v{T+8}, s[{SRD_WS}:{SRD_WS+3}], s56 offen sc1
        buffer_store_dwordx4 v[{T}:{T+3}], v{T+8}, s[{SRD_WS}:{SRD_WS+3}], s56 offen offset:1024 sc1
        buffer_store_dwordx4 v[{T}:{T+3}], v{T+8}, s[{SRD_WS}:{SRD_WS+3}], s56 offen offset:2048 sc1
        buffer_store_dwordx4 v[{T}:{T+3}], v{T+8}, s[{SRD_WS}:{SRD_WS+3}], s56 offen offset:3072 sc1
        v_mov_b32 v{T+4}, 0
        v_mov_b32 v{T+5}, 0
        v_mov_b32 v{T+6}, 0
        v_mov_b32 v{T+7}, 0
        v_lshrrev_b32 v{T+9}, 3, v1
        v_and_b32 v{T+9}, 3, v{T+9}
        v_lshlrev_b32 v{T+9}, 15, v{T+9}
        v_and_b32 v{T+10}, 7, v1
        v_lshl_add_u32 v{T+9}, v{T+10}, 7, v{T+9}
        s_lshl_b32 s56, s{S_TB}, 10
        buffer_store_dwordx4 v[{T+4}:{T+7}], v{T+9}, s[{SRD_WS}:{SRD_WS+3}], s56 offen sc1
        L_noclear:
        """)
        k.optional -= 1
        k(f"""
        s_mul_i32 s56, s{S_TB}, {64*896}
        s_mul_i32 s57, s{S_W}, 14336
        s_mov_b32 s58, s{S_RHO}
        """)
        for i in range(14):
            k(f"""
            s_lshl_b32 s59, s58, 6
            s_add_u32 s59, s59, s56
            s_add_u32 m0, s57, {XB + i*1024}
            s_add_u32 s58, s58, 1
            """)
            self.t_x = k(f"buffer_load_dwordx4 v{self.V_XD}, s[{SRD_X}:{SRD_X+3}], s59 offen lds")
            k(f"""
            s_cmp_ge_u32 s58, 14
            s_cselect_b32 s58, 0, s58
            """)
        self.stamp("x issued")
        self.srd(SRD_WIN, 80, 448 * 1792 * 2)
        self.srd(SRD_WSP, 82, 2048 * 2048 * 2)
        self.srd(SRD_WOUT, 86, 896 * 448 * 2)
        self.srd(SRD_OUT, 88, 2048 * 448 * 2)
        self.srd(SRD_DBG, 90, 256)
        for dst, src in [(P_LOGA, 66), (P_AIM, 68), (P_CRE, 70), (P_CIM, 72), (P_LOGDT, 74), (P_DSK, 76), (P_BSP, 84)]:
            k(f"s_mov_b64 s[{dst}:{dst+1}], s[{src}:{src+1}]")
        WD = self.V_WD
        for n in range(7):
            k(f"""
            v_add_u32 v{T}, {64*n}, v1
            v_mul_u32_u24 v{T+1}, 4682, v{T}
            v_lshrrev_b32 v{T+1}, 16, v{T+1}
            v_mul_u32_u24 v{T+2}, 14, v{T+1}
            v_sub_u32 v{T+2}, v{T}, v{T+2}
            v_and_b32 v{T+3}, 0x13, v{T+1}
            v_and_b32 v{T+4}, 4, v{T+1}
            v_lshl_or_b32 v{T+3}, v{T+4}, 1, v{T+3}
            v_and_b32 v{T+4}, 8, v{T+1}
            v_lshrrev_b32 v{T+4}, 1, v{T+4}
            v_or_b32 v{T+3}, v{T+3}, v{T+4}
            v_mul_u32_u24 v{T+3}, 3584, v{T+3}
            v_lshl_add_u32 v{WD+n}, v{T+2}, 4, v{T+3}
            """)
        self.t_chunk = {}
        self.stamp("wd calc")
        self.queue_chunk(0); self.bg_flush()
        self.stamp("c0 issued")
        k(f"""
        v_and_b32 v{T}, 15, v1
        v_lshrrev_b32 v{T+1}, 4, v1
        v_lshrrev_b32 v{T+2}, 2, v{T}
        v_and_b32 v{T+2}, 2, v{T+2}
        v_xor_b32 v{T+2}, v{T+2}, v{T+1}
        v_lshl_add_u32 v{T+2}, v{T}, 2, v{T+2}
        v_lshlrev_b32 v{T+2}, 4, v{T+2}
        s_mul_i32 s57, s{S_W}, 14336
        v_add_u32 v{self.V_XR}, s57, v{T+2}
        v_lshrrev_b32 v{T+3}, 2, v1
        v_and_b32 v{T+4}, 7, v{T+3}
        v_and_b32 v{T+3}, 8, v{T+3}
        v_lshl_add_u32 v{T+3}, v{T+3}, 1, v{T+4}
        v_mul_u32_u24 v{T+3}, 224, v{T+3}
        v_and_b32 v{T+4}, 3, v1
        v_lshl_add_u32 v{self.V_TR}, v{T+4}, 3, v{T+3}
        v_add_u32 v{self.V_TR+1}, 0x10000, v{self.V_TR}
        v_add_u32 v{self.V_TR+2}, 0x20000, v{self.V_TR}
        """)
        ID = self.V_ID
        k(f"""
        v_and_b32 v{T+3}, 1, v1
        v_lshlrev_b32 v{T+3}, 4, v{T+3}
        v_mov_b32 v{T+4}, 0x3f80
        v_lshlrev_b32 v{T+3}, v{T+3}, v{T+4}
        v_lshrrev_b32 v{T+4}, 3, v{T}
        v_sub_u32 v{T+4}, v{T+1}, v{T+4}
        v_bfe_u32 v{T+5}, v1, 1, 2
        v_lshl_or_b32 v{T+4}, v{T+4}, 2, v{T+5}
        """)
        for h in range(2):
            for r in range(4):
                k(f"v_cmp_eq_u32 vcc, {h*8+r}, v{T+4}")
                k(f"v_cndmask_b32 v{ID+h*4+r}, 0, v{T+3}, vcc")
        self.queue_chunk(1); self.bg(4)
        self.stamp("c1 part issued")

    def leader_go(self):
        k = self.k
        T = self.V_S
        k(f"""
        s_or_b32 s56, s{S_FB}, s{S_W}
        s_cmp_lg_u32 s56, 0
        s_cbranch_scc1 L_nogo
        """)
        k.optional += 1
        k(f"""
        v_mov_b32 v{T}, 1
        v_mov_b32 v{T+1}, 0
        s_lshl_b32 s56, s{S_TB}, 2
        s_mov_b64 exec, 1
        buffer_store_dword v{T}, v{T+1}, s[{SRD_DBG}:{SRD_DBG+3}], s56 offen sc1
        s_mov_b64 exec, -1
        L_nogo:
        """)
        k.optional -= 1

    def queue_chunk(self, kk):
        k = self.k
        SL, SO = 94, 95
        def head():
            k(f"""
            s_add_u32 s60, s{S_W}, {4*kk}
            s_sub_u32 s61, s60, 14
            s_cmp_ge_u32 s60, 14
            s_cselect_b32 s62, s61, s60
            s_cselect_b32 s63, s{S_OFF1}, s{S_OFF2}
            s_add_u32 s62, s62, s{S_RHO}
            s_sub_u32 s61, s62, 14
            s_cmp_ge_u32 s62, 14
            s_cselect_b32 s62, s61, s62
            s_mul_i32 s62, s62, {32*3584}
            s_add_u32 s{SO}, s62, s63
            s_mul_i32 s61, s{S_W}, 7168
            s_mul_i32 s62, s{S_W}, 14336
            """)
            A = lambda c0: f"s_add_u32 s61, s61, {c0}"
            if kk <= 2:
                k(f"s_add_u32 s{SL}, s61, {W2B + 7168*4*kk}")
            elif kk == 3:
                k(f"s_add_u32 s61, s61, {W2B + 7168*12}\ns_cmp_lt_u32 s{S_W}, 2\ns_cselect_b32 s{SL}, s61, s62")
            elif kk == 4:
                k(f"s_add_u32 s61, s62, 7168\ns_cmp_lt_u32 s{S_W}, 2\ns_cselect_b32 s{SL}, s62, s61")
            elif kk == 5:
                k(f"s_add_u32 s62, s62, 7168\ns_add_u32 s61, s61, {W2B - 7168*2}\ns_cmp_lt_u32 s{S_W}, 2\ns_cselect_b32 s{SL}, s62, s61")
            else:
                k(f"s_add_u32 s{SL}, s61, {W2B + 7168*2}")
        def mk(n):
            def f():
                if n == 0: head()
                k(f"s_add_u32 m0, s{SL}, {n*1024}")
                t = k(f"buffer_load_dwordx4 v{self.V_WD+n}, s[{SRD_WIN}:{SRD_WIN+3}], s{SO} offen lds")
                if n == 6: self.t_chunk[kk] = t
            return f
        for n in range(7): self.bgq.append(mk(n))

    def xreduce_g(self, r, tmp):
        k = self.k
        k(f"""
        v_mov_b32 v{tmp}, v{r}
        v_permlane16_swap_b32 v{r}, v{tmp}
        v_add_f32 v{r}, v{r}, v{tmp}
        v_mov_b32 v{tmp}, v{r}
        v_permlane32_swap_b32 v{r}, v{tmp}
        v_add_f32 v{r}, v{r}, v{tmp}
        """)
    def rbf(self, dst, src):
        self.k(f"v_cvt_pk_bf16_f32 v{dst}, v{src}, v{src}\nv_and_b32 v{dst}, s{S_MASK}, v{dst}")

    def ln1(self):
        k = self.k
        X = self.V_X; T = self.V_TMP
        k.wait_vm(self.t_x)
        self.leader_go()
        self.stamp("x landed")
        for i in range(14):
            k(f"ds_read_b128 v[{X+4*i}:{X+4*i+3}], v{self.V_XR} offset:{XB + i*1024}")
        lg0 = k.lg - 14
        self.queue_chunk(2)
        S = T; M = T + 2; D = T + 4; Q = T + 12
        k(f"v_mov_b32 v{S}, 0\nv_mov_b32 v{S+1}, 0")
        for i in range(14):
            k.wait_lg(lg0 + i + 1)
            for j in range(4):
                k(f"v_dot2_f32_bf16 v{S + (j&1)}, v{X+4*i+j}, s{S_ONES}, v{S + (j&1)}")
            if i % 4 == 3: self.bg()
        self.stamp("ln passA")
        self.queue_chunk(3); self.queue_chunk(4)
        k(f"v_add_f32 v{S}, v{S}, v{S+1}")
        self.xreduce_g(S, S + 1)
        k(f"v_mul_f32 v{S}, {f2u(1.0/448)}, v{S}")
        self.rbf(M, S)
        k(f"v_sub_f32 v{S}, v{S}, v{M}")
        k(f"v_mov_b32 v{Q}, 0\nv_mov_b32 v{Q+1}, 0")
        for p in range(56):
            d = D + (p & 3) * 2
            k(f"""
            v_lshlrev_b32 v{d}, 16, v{X+p}
            v_and_b32 v{d+1}, s{S_MASK}, v{X+p}
            v_pk_add_f32 v[{d}:{d+1}], v[{d}:{d+1}], v[{M}:{M+1}] op_sel_hi:[1,0] neg_lo:[0,1] neg_hi:[0,1]
            v_pk_fma_f32 v[{Q}:{Q+1}], v[{d}:{d+1}], v[{d}:{d+1}], v[{Q}:{Q+1}]
            v_cvt_pk_bf16_f32 v{X+p}, v{d}, v{d+1}
            """)
            if p % 5 == 4: self.bg()
        self.stamp("ln passB")
        k(f"v_add_f32 v{Q}, v{Q}, v{Q+1}")
        self.xreduce_g(Q, Q + 1)
        k(f"v_mul_f32 v{Q}, {f2u(1.0/448)}, v{Q}")
        k(f"v_fma_f32 v{Q}, -v{S}, v{S}, v{Q}")
        k(f"v_max_f32 v{Q}, 0, v{Q}")
        self.rbf(Q, Q)
        k(f"v_add_f32 v{Q}, {f2u(1e-5)}, v{Q}")
        self.rbf(Q, Q)
        k(f"v_sqrt_f32 v{Q}, v{Q}")
        self.rbf(Q, Q)
        k(f"v_rcp_f32 v{M}, v{Q}")
        k(f"v_fma_f32 v{Q}, -v{Q}, v{M}, 1.0")
        k(f"v_fma_f32 v{M}, v{Q}, v{M}, v{M}")
        for p in range(56):
            d = D + (p & 3) * 2
            k(f"""
            v_lshlrev_b32 v{d}, 16, v{X+p}
            v_and_b32 v{d+1}, s{S_MASK}, v{X+p}
            v_pk_mul_f32 v[{d}:{d+1}], v[{d}:{d+1}], v[{M}:{M+1}] op_sel_hi:[1,0]
            v_cvt_pk_bf16_f32 v{X+p}, v{d}, v{d+1}
            """)
            if p % 5 == 4: self.bg()
        self.bg_flush()
        self.stamp("ln1 done")

    def ut_out(self):
        k = self.k
        X = self.V_X; T = self.V_TMP; ID = self.V_ID
        A = self.V_ACC
        for i in range(2):
            for h in range(2):
                k(f"v_mfma_f32_16x16x32_bf16 v[{A+(2*i+h)*4}:{A+(2*i+h)*4+3}], v[{X+4*i}:{X+4*i+3}], v[{ID+4*h}:{ID+4*h+3}], 0")
        k(f"""
        v_lshrrev_b32 v{T+8}, 5, v1
        v_mul_u32_u24 v{T+8}, 7168, v{T+8}
        v_and_b32 v{T+9}, 31, v1
        v_lshl_add_u32 v{T+8}, v{T+9}, 4, v{T+8}
        s_lshl_b32 s56, s{S_TB}, 2
        s_add_u32 s56, s56, s{S_W}
        s_mul_i32 s56, s56, {2*7168}
        s_add_u32 s56, s56, {WS_UT}
        s_lshl_b32 s57, s{S_RHO}, 9
        s_add_u32 s57, s57, s56
        s_add_u32 s58, s{S_RHO}, 1
        s_cmp_ge_u32 s58, 14
        s_cselect_b32 s58, 0, s58
        s_lshl_b32 s58, s58, 9
        s_add_u32 s58, s58, s56
        """)
        for i in range(2):
            U = T + 4 * i
            for h in range(2):
                b = A + (2*i+h)*4
                k(f"v_cvt_pk_f16_f32 v{U+2*h}, v{b}, v{b+1}")
                k(f"v_cvt_pk_f16_f32 v{U+2*h+1}, v{b+2}, v{b+3}")
            k(f"v_permlane16_swap_b32 v{U}, v{U+2}")
            k(f"v_permlane16_swap_b32 v{U+1}, v{U+3}")
            self.t_ut = k(f"buffer_store_dwordx4 v[{U}:{U+3}], v{T+8}, s[{SRD_WS}:{SRD_WS+3}], s{57+i} offen sc1")

    def tr_addr(self, off):
        return f"v{self.V_TR + (off >> 16)} offset:{off & 0xffff}"

    def gemm1(self, part):
        k = self.k
        X = self.V_X; B = self.V_B; A = self.V_ACC
        c0 = 14 * part
        def sync_group(g):
            k.wait_vm(self.t_chunk[g])
            k("s_barrier")
        def reads(c, j):
            b = B + (c & 1) * 28 + 4 * j
            base = chunk_lds(c) + 32 * j
            k(f"ds_read_b64_tr_b16 v[{b}:{b+1}], {self.tr_addr(base)}")
            return k(f"ds_read_b64_tr_b16 v[{b+2}:{b+3}], {self.tr_addr(base + 1792)}")
        tags = {}
        if part == 0:
            sync_group(0)
            self.stamp("grp0 ready")
        for j in range(7): tags[(c0, j)] = reads(c0, j)
        for i in range(14):
            c = c0 + i
            nxt = c + 1 if i < 13 else None
            if nxt is not None and nxt % 4 == 0:
                sync_group(nxt // 4)
                if nxt == 4: self.queue_chunk(5)
                if nxt == 8: self.queue_chunk(6)
            for j in range(7):
                k.wait_lg(tags[(c, j)])
                b = B + (c & 1) * 28 + 4 * j
                src = "0" if i == 0 else f"v[{A+4*j}:{A+4*j+3}]"
                if part == 0:
                    k(f"v_mfma_f32_16x16x32_bf16 v[{A+4*j}:{A+4*j+3}], v[{X+4*i}:{X+4*i+3}], v[{b}:{b+3}], {src}")
                else:
                    k(f"v_mfma_f32_16x16x32_bf16 v[{A+4*j}:{A+4*j+3}], v[{b}:{b+3}], v[{X+4*i}:{X+4*i+3}], {src}")
                if nxt is not None: tags[(nxt, j)] = reads(nxt, j)
                if j % 3 == 2: self.bg()

    def gelu_pair(self, a0, dst_pk, t):
        k = self.k
        C1, C3 = self.S_C1, self.S_C3
        k(f"""
        v_cvt_pk_bf16_f32 v{t+2}, v{a0}, v{a0+1}
        v_lshlrev_b32 v{t}, 16, v{t+2}
        v_and_b32 v{t+1}, s{S_MASK}, v{t+2}
        v_pk_mul_f32 v[{t+2}:{t+3}], v[{t}:{t+1}], v[{t}:{t+1}]
        v_pk_fma_f32 v[{t+2}:{t+3}], v[{t+2}:{t+3}], v[{C3}:{C3+1}], v[{C1}:{C1+1}]
        v_pk_mul_f32 v[{t+2}:{t+3}], v[{t+2}:{t+3}], v[{t}:{t+1}]
        v_exp_f32 v{t+2}, v{t+2}
        v_exp_f32 v{t+3}, v{t+3}
        """)
    def gelu_pair2(self, dst_pk, t):
        k = self.k
        k(f"""
        v_pk_add_f32 v[{t+2}:{t+3}], v[{t+2}:{t+3}], 1.0 op_sel_hi:[1,0]
        v_rcp_f32 v{t+2}, v{t+2}
        v_rcp_f32 v{t+3}, v{t+3}
        """)
    def gelu_pair3(self, dst_pk, t):
        k = self.k
        k(f"""
        v_pk_mul_f32 v[{t}:{t+1}], v[{t}:{t+1}], v[{t+2}:{t+3}]
        v_cvt_pk_bf16_f32 v{dst_pk}, v{t}, v{t+1}
        """)

    def gelu(self, part):
        k = self.k
        A = self.V_ACC; T = self.V_TMP
        self.S_C1 = T + 32; self.S_C3 = T + 34
        c1 = -2.0 * 0.7978845608028654 * math.log2(math.e)
        c3 = c1 * 0.044715
        k(f"v_mov_b32 v{T+32}, {f2u(c1)}\nv_mov_b32 v{T+33}, {f2u(c1)}\nv_mov_b32 v{T+34}, {f2u(c3)}\nv_mov_b32 v{T+35}, {f2u(c3)}")
        SUM = T + 24
        for p in range(0, 14, 2):
            ts = [T + 0, T + 4]
            pk = [T + 8, T + 9] if part == 0 else [self.V_Z1 + p, self.V_Z1 + p + 1]
            for q in range(2): self.gelu_pair(A + 2*(p+q), pk[q], ts[q])
            for q in range(2): self.gelu_pair2(pk[q], ts[q])
            for q in range(2): self.gelu_pair3(pk[q], ts[q])
            if part == 0:
                for q in range(2):
                    z = self.V_Z + 2*(p+q)
                    k(f"v_lshlrev_b32 v{z}, 16, v{pk[q]}\nv_and_b32 v{z+1}, s{S_MASK}, v{pk[q]}")
                    sm = SUM + 2*q; sq = SUM + 4 + 2*q
                    if p == 0:
                        k(f"v_pk_mul_f32 v[{sq}:{sq+1}], v[{z}:{z+1}], v[{z}:{z+1}]")
                        k(f"v_mov_b32 v{sm}, v{z}\nv_mov_b32 v{sm+1}, v{z+1}")
                    else:
                        k(f"v_pk_fma_f32 v[{sq}:{sq+1}], v[{z}:{z+1}], v[{z}:{z+1}], v[{sq}:{sq+1}]")
                        k(f"v_pk_add_f32 v[{sm}:{sm+1}], v[{sm}:{sm+1}], v[{z}:{z+1}]")
            self.bg()
        self.V_SUM = SUM

    def check_go(self):
        k = self.k
        T = self.V_S
        L = k.label("L_go")
        k(f"""
        v_and_b32 v{T}, 31, v1
        v_lshlrev_b32 v{T}, 2, v{T}
        s_mov_b32 s56, 0
        {L}:
        """)
        k.optional += 1
        k(f"buffer_load_dword v{T+1}, v{T}, s[{SRD_DBG}:{SRD_DBG+3}], 0 offen sc1")
        k.optional -= 1
        k(f"""
        s_waitcnt vmcnt(0)
        v_cmp_eq_u32 vcc, 0, v{T+1}
        s_add_u32 s56, s56, 1
        s_cbranch_vccz {L}_ok
        s_sleep 8
        s_cmp_lt_u32 s56, 100000
        s_cbranch_scc1 {L}
        {L}_ok:
        """)

    def set_flag(self, stage):
        k = self.k
        T = self.V_S
        k(f"""
        s_lshl_b32 s56, s{S_TB}, 3
        s_add_u32 s56, s56, s{S_FB}
        s_lshl_b32 s56, s56, 7
        s_lshl_b32 s57, s{S_W}, 2
        s_add_u32 s56, s56, s57
        s_add_u32 s56, s56, {WS_FLAG + stage*32768}
        v_mov_b32 v{T}, 0
        v_mov_b32 v{T+1}, 1
        s_mov_b64 exec, 1
        buffer_store_dword v{T+1}, v{T}, s[{SRD_WS}:{SRD_WS+3}], s56 offen sc1
        s_mov_b64 exec, -1
        """)

    def stats_publish(self):
        k = self.k
        SUM = self.V_SUM; T = self.V_TMP
        for sh in (8, 4, 2, 1):
            for r in range(8):
                k(f"v_add_f32_dpp v{SUM+r}, v{SUM+r}, v{SUM+r} row_ror:{sh} row_mask:0xf bank_mask:0xf")
        P = T
        k(f"""
        v_and_b32 v{T+8}, 1, v1
        v_cmp_eq_u32 vcc, 1, v{T+8}
        v_cndmask_b32 v{P}, v{SUM}, v{SUM+2}, vcc
        v_cndmask_b32 v{P+1}, v{SUM+4}, v{SUM+6}, vcc
        v_cndmask_b32 v{P+2}, v{SUM+1}, v{SUM+3}, vcc
        v_cndmask_b32 v{P+3}, v{SUM+5}, v{SUM+7}, vcc
        v_lshrrev_b32 v{T+9}, 4, v1
        v_lshl_add_u32 v{T+9}, v{T+9}, 1, v{T+8}
        v_lshlrev_b32 v{T+9}, 4, v{T+9}
        s_lshl_b32 s56, s{S_TB}, 2
        s_add_u32 s56, s56, s{S_W}
        s_lshl_b32 s56, s56, 10
        s_add_u32 s{S_TMP+40}, s56, {WS_STAT}
        s_lshl_b32 s57, s{S_FB}, 7
        s_add_u32 s56, s{S_TMP+40}, s57
        s_mov_b32 s58, 0x00030003
        s_mov_b32 s59, 0x00030003
        s_mov_b64 exec, s[58:59]
        buffer_store_dwordx4 v[{P}:{P+3}], v{T+9}, s[{SRD_WS}:{SRD_WS+3}], s56 offen sc1
        s_mov_b64 exec, -1
        """)

    def stats_collect_normalize(self):
        k = self.k
        T = self.V_TMP; Z = self.V_Z
        L = k.label("L_st")
        k(f"""
        v_bfe_u32 v{T+8}, v1, 1, 3
        v_lshlrev_b32 v{T+8}, 7, v{T+8}
        v_lshrrev_b32 v{T+9}, 4, v1
        v_lshl_add_u32 v{T+8}, v{T+9}, 5, v{T+8}
        v_and_b32 v{T+9}, 1, v1
        v_lshl_add_u32 v{T+8}, v{T+9}, 4, v{T+8}
        s_lshl_b32 s56, s{S_TB}, 2
        s_add_u32 s56, s56, s{S_W}
        s_lshl_b32 s56, s56, 10
        s_add_u32 s57, s56, {WS_STAT}
        s_mov_b32 s56, 0
        {L}:
        """)
        k.optional += 1
        k(f"buffer_load_dwordx4 v[{T}:{T+3}], v{T+8}, s[{SRD_WS}:{SRD_WS+3}], s57 offen sc1")
        k.optional -= 1
        k(f"""
        s_waitcnt vmcnt(0)
        v_max3_u32 v{T+4}, v{T}, v{T+1}, v{T+2}
        v_max_u32 v{T+4}, v{T+4}, v{T+3}
        v_cmp_eq_u32 vcc, -1, v{T+4}
        s_add_u32 s56, s56, 1
        s_cbranch_vccz {L}_ok
        s_sleep 1
        s_cmp_lt_u32 s56, 100000
        s_cbranch_scc1 {L}
        {L}_ok:
        """)
        self.stamp("stats in")
        for sh in (8, 4, 2):
            for r in range(4):
                k(f"v_add_f32_dpp v{T+r}, v{T+r}, v{T+r} row_ror:{sh} row_mask:0xf bank_mask:0xf")
        inv = f2u(1.0 / 896)
        for (sm, sq) in ((T, T+1), (T+2, T+3)):
            k(f"v_mul_f32 v{sm}, {inv}, v{sm}")
            k(f"v_mul_f32 v{sq}, {inv}, v{sq}")
            k(f"v_fma_f32 v{sq}, -v{sm}, v{sm}, v{sq}")
            k(f"v_max_f32 v{sq}, 0, v{sq}")
        k(f"v_cvt_pk_bf16_f32 v{T+4}, v{T}, v{T+2}")
        k(f"v_cvt_pk_bf16_f32 v{T+5}, v{T+1}, v{T+3}")
        k(f"v_lshlrev_b32 v{T}, 16, v{T+5}\nv_and_b32 v{T+1}, s{S_MASK}, v{T+5}")
        k(f"v_add_f32 v{T}, {f2u(1e-5)}, v{T}\nv_add_f32 v{T+1}, {f2u(1e-5)}, v{T+1}")
        k(f"v_cvt_pk_bf16_f32 v{T+5}, v{T}, v{T+1}")
        k(f"v_lshlrev_b32 v{T}, 16, v{T+5}\nv_and_b32 v{T+1}, s{S_MASK}, v{T+5}")
        k(f"v_sqrt_f32 v{T}, v{T}\nv_sqrt_f32 v{T+1}, v{T+1}")
        k(f"v_cvt_pk_bf16_f32 v{T+5}, v{T}, v{T+1}")
        k(f"v_mov_b32_dpp v{T+6}, v{T+4} quad_perm:[0,0,2,2] row_mask:0xf bank_mask:0xf")
        k(f"v_mov_b32_dpp v{T+7}, v{T+4} quad_perm:[1,1,3,3] row_mask:0xf bank_mask:0xf")
        k(f"v_mov_b32_dpp v{T+8}, v{T+5} quad_perm:[0,0,2,2] row_mask:0xf bank_mask:0xf")
        k(f"v_mov_b32_dpp v{T+9}, v{T+5} quad_perm:[1,1,3,3] row_mask:0xf bank_mask:0xf")
        M = T + 12; R = T + 16; SD = T + 20
        for h in range(2):
            k(f"v_lshlrev_b32 v{M+2*h}, 16, v{T+6+h}\nv_and_b32 v{M+2*h+1}, s{S_MASK}, v{T+6+h}")
            k(f"v_lshlrev_b32 v{SD+2*h}, 16, v{T+8+h}\nv_and_b32 v{SD+2*h+1}, s{S_MASK}, v{T+8+h}")
        for r in range(4): k(f"v_rcp_f32 v{R+r}, v{SD+r}")
        for r in range(4): k(f"v_fma_f32 v{SD+r}, -v{SD+r}, v{R+r}, 1.0")
        for r in range(4): k(f"v_fma_f32 v{R+r}, v{SD+r}, v{R+r}, v{R+r}")
        P = self.V_B
        for p in range(14):
            z = Z + 2*p; h = p & 1
            k(f"""
            v_pk_add_f32 v[{z}:{z+1}], v[{z}:{z+1}], v[{M+2*h}:{M+2*h+1}] neg_lo:[0,1] neg_hi:[0,1]
            v_cvt_pk_bf16_f32 v{z+1}, v{z}, v{z+1}
            v_lshlrev_b32 v{z}, 16, v{z+1}
            v_and_b32 v{z+1}, s{S_MASK}, v{z+1}
            v_pk_mul_f32 v[{z}:{z+1}], v[{z}:{z+1}], v[{R+2*h}:{R+2*h+1}]
            v_cvt_pk_bf16_f32 v{P+p}, v{z}, v{z+1}
            """)
        k(f"v_mov_b32 v{P+14}, v{P+12}\nv_mov_b32 v{P+15}, v{P+13}")
        k(f"""
        v_bfe_u32 v{T}, v1, 4, 1
        v_lshlrev_b32 v{T}, 10, v{T}
        v_lshrrev_b32 v{T+1}, 5, v1
        v_lshlrev_b32 v{T+1}, 8, v{T+1}
        v_and_b32 v{T+2}, 15, v1
        v_lshl_add_u32 v{T+1}, v{T+2}, 4, v{T+1}
        v_add_u32 v{T}, v{T}, v{T+1}
        s_xor_b32 s56, s{S_FB}, 1
        s_lshl_b32 s56, s56, 6
        s_lshl_b32 s57, s{S_TB}, 1
        s_add_u32 s56, s56, s57
        s_lshr_b32 s57, s{S_W}, 1
        s_add_u32 s56, s56, s57
        s_mul_i32 s56, s56, 7168
        s_and_b32 s57, s{S_W}, 1
        s_lshl_b32 s57, s57, 9
        s_add_u32 s56, s56, s57
        s_add_u32 s56, s56, {WS_Z}
        s_add_u32 s57, s56, 4096
        """)
        for pr in range(4):
            u = P + 4*pr
            k(f"v_permlane16_swap_b32 v{u}, v{u+2}")
            k(f"v_permlane16_swap_b32 v{u+1}, v{u+3}")
            va = T if pr < 3 else T + 1
            so = 56 if pr < 2 else 57
            self.t_z = k(f"buffer_store_dwordx4 v[{u}:{u+3}], v{va}, s[{SRD_WS}:{SRD_WS+3}], s{so} offen offset:{(pr&1)*2048} sc1")

    def build(self):
        k = self.k
        self.prologue()
        self.ln1()
        if self.stop == "ln1":
            self.dump(list(range(self.V_X, self.V_X + 56)), 0); return self.finish()
        self.ut_out()
        self.gemm1(0)
        self.stamp("gemm z2")
        if self.stop == "gemm0":
            self.dump(list(range(self.V_ACC, self.V_ACC + 28)), 0); return self.finish()
        self.gelu(0)
        self.bg_flush()
        self.stamp("gelu z2")
        self.check_go()
        self.stamp("go")
        self.stats_publish()
        self.set_flag(0)
        self.stamp("stats out")
        self.gemm1(1)
        self.stamp("gemm z1")
        self.gelu(1)
        self.stamp("gelu z1")
        self.stats_collect_normalize()
        self.stamp("z2 stored")
        k("s_waitcnt vmcnt(0)")
        self.set_flag(1)
        self.stamp("z2 out")
        if self.stop == "p1":
            self.dump(list(range(self.V_Z1, self.V_Z1 + 14)), 0); return self.finish()
        self.finish()

HEADER_IN = open("recurrent_scan__ssm_conv_s4d__mixer_gmlp__prompt.s.ref").read().split("; Override")[0]

def generate(stop=None, stamps=False, name=NAME):
    g = Gen(stop, stamps)
    g.build()
    body = g.k.finalize()
    txt = HEADER_IN
    txt += f"; @launch grid=(256,1,1) block=(256,1,1) lds=163840\n"
    txt += '.amdgcn_target "amdgcn-amd-amdhsa--gfx950"\n.text\n'
    txt += f".globl {name}\n.p2align 8\n.type {name},@function\n{name}:\n"
    txt += body
    txt += "L_exit:\n    s_endpgm\n"
    txt += f""".section .rodata,"a"
.p2align 6
.amdhsa_kernel {name}
  .amdhsa_next_free_vgpr 512
  .amdhsa_next_free_sgpr 102
  .amdhsa_accum_offset 256
  .amdhsa_group_segment_fixed_size 0
  .amdhsa_kernarg_size 120
  .amdhsa_user_sgpr_count 2
  .amdhsa_user_sgpr_kernarg_segment_ptr 1
  .amdhsa_system_sgpr_workgroup_id_x 1
  .amdhsa_float_denorm_mode_32 3
.end_amdhsa_kernel
"""
    return txt, g

if __name__ == "__main__":
    stop = sys.argv[1] if len(sys.argv) > 1 and sys.argv[1] != "-" else None
    out = sys.argv[2] if len(sys.argv) > 2 else "k.s"
    txt, g = generate(stop, stamps=len(sys.argv) > 3)
    open(out, "w").write(txt)
    print("nops inserted", g.k.n_nops, "instr", sum(1 for i in g.k.ins if i.kind != "meta"))
```

```python
from gen import *

KT = 0
UC = 0
UCP = 4160
UCH = 8 * UCP
KX = 66560
KXP = 4608
KC = 75776
RED = 77824
CRED = 83968
WST = 114688

S_CP = 97
S_F4 = 93
LOG2E = math.log2(math.e)

class Gen2(Gen):
    V_WV = 224
    V_WR = 220

    def w_setup(self):
        k = self.k
        T = self.V_S
        WV = self.V_WV; WR = self.V_WR
        k(f"""
        v_lshrrev_b32 v{T}, 3, v1
        v_lshrrev_b32 v{T+1}, 4, v1
        v_and_b32 v{T+2}, 7, v1
        v_xor_b32 v{T+1}, v{T+1}, v{T+2}
        v_lshlrev_b32 v{T}, 12, v{T}
        v_lshl_add_u32 v{WV}, v{T+1}, 4, v{T}
        v_xor_b32 v{WV+1}, 64, v{WV}
        v_add_u32 v{WV+1}, {8*4096 - 1024}, v{WV+1}
        v_add_u32 v{WV+2}, {16*4096 - 2048}, v{WV}
        v_add_u32 v{WV+3}, {16*4096 - 2048}, v{WV+1}
        v_and_b32 v{T}, 15, v1
        v_lshrrev_b32 v{T+1}, 4, v1
        v_lshrrev_b32 v{T+2}, 1, v{T}
        v_xor_b32 v{T+1}, v{T+1}, v{T+2}
        v_lshlrev_b32 v{T}, 7, v{T}
        v_lshl_add_u32 v{T}, v{T+1}, 4, v{T}
        s_mul_i32 s56, s{S_W}, 12288
        s_add_u32 s{self.S_WL}, s56, {WST}
        s_and_b32 s56, s{S_W}, 1
        s_lshl_b32 s56, s56, 11
        s_add_u32 s56, s56, s{self.S_WL}
        v_add_u32 v{WR}, s56, v{T}
        v_xor_b32 v{WR+1}, 64, v{WR}
        v_xor_b32 v{WR+2}, 2048, v{WR}
        v_xor_b32 v{WR+3}, 2048, v{WR+1}
        s_lshl_b32 s{self.S_WB}, s{S_TB}, 18
        s_lshl_b32 s56, s{S_W}, 10
        s_add_u32 s{self.S_WB}, s{self.S_WB}, s56
        s_lshr_b32 s56, s{S_W}, 1
        s_lshl_b32 s56, s56, 17
        s_add_u32 s{self.S_WB}, s{self.S_WB}, s56
        """)
        self.w_g = 0
        self.w_r = 0
        self.w_tag = {}
        self.w_rtag = {}
    S_WL = 90; S_WB = 91; S_WO = 92
    def w_issue(self):
        k = self.k
        g = self.w_g
        if g >= 16: return
        p = g >> 1
        if g >= 3: k.wait_lg(self.w_rtag[g - 3])
        if (g & 1) == 0:
            k(f"""
            s_add_u32 s{self.S_WO}, s{S_RHO2}, {2*p}
            s_and_b32 s{self.S_WO}, s{self.S_WO}, 15
            s_lshl_b32 s{self.S_WO}, s{self.S_WO}, 6
            s_add_u32 s{self.S_WO}, s{self.S_WO}, s{self.S_WB}
            """)
        else:
            k(f"s_xor_b32 s{self.S_WO}, s{self.S_WO}, {32*4096}")
        k(f"s_add_u32 m0, s{self.S_WL}, {(g % 3) * 4096}")
        for i in range(4):
            t = k(f"buffer_load_dwordx4 v{self.V_WV+i}, s[{SRD_WSP}:{SRD_WSP+3}], s{self.S_WO} offen offset:{i*1024} lds")
        self.w_tag[g] = t
        self.w_g += 1
    def w_read(self):
        k = self.k
        g = self.w_r
        if g >= 16 or g >= self.w_g: return
        p = g >> 1; tp = g & 1
        k.wait_vm(self.w_tag[g])
        for t2 in range(2):
            for par in range(2):
                slot = 2*p + par; tau = 2*tp + t2
                ar = (slot * 4 + tau) * 4
                t = k(f"ds_read_b128 a[{ar}:{ar+3}], v{self.V_WR+par+2*t2} offset:{(g % 3) * 4096}")
        self.w_rtag[g] = t
        self.w_r += 1
    def w_tick(self):
        if self.w_g < 2:
            self.w_issue(); return
        self.w_read()
        self.w_issue()
    def w_finish(self):
        while self.w_r < 16: self.w_tick()

    def cmul(self, d, a_, b):
        self.k(f"""
        v_pk_mul_f32 v[{d}:{d+1}], v[{a_}:{a_+1}], v[{b}:{b+1}] op_sel:[0,0] op_sel_hi:[0,1]
        v_pk_fma_f32 v[{d}:{d+1}], v[{a_}:{a_+1}], v[{b}:{b+1}], v[{d}:{d+1}] op_sel:[1,1,0] op_sel_hi:[1,0,1] neg_lo:[0,1,0]
        """)
    def cexp(self, d, al, be, p, t):
        k = self.k
        pf = f2u(float(p))
        k(f"""
        v_mul_f32 v{t}, {pf}, v{al}
        v_mul_f32 v{d+1}, {pf}, v{be}
        v_exp_f32 v{t}, v{t}
        v_fract_f32 v{d+1}, v{d+1}
        v_cos_f32 v{d}, v{d+1}
        v_sin_f32 v{d+1}, v{d+1}
        v_mul_f32 v{d}, v{t}, v{d}
        v_mul_f32 v{d+1}, v{t}, v{d+1}
        """)
    def wave_sum(self, r, tmp):
        k = self.k
        for sh in (8, 4, 2, 1):
            k(f"v_add_f32_dpp v{r}, v{r}, v{r} row_ror:{sh} row_mask:0xf bank_mask:0xf")
        self.xreduce_g(r, tmp)

    V_PAR = 192
    def kparams_load(self):
        k = self.k
        P = self.V_PAR; T = self.V_S
        k(f"""
        s_and_b32 s56, s2, 7
        s_lshr_b32 s57, s2, 3
        s_sub_u32 s58, s57, 4
        s_cmp_ge_u32 s57, 28
        s_cselect_b32 s57, s58, s57
        s_mul_i32 s56, s56, 28
        s_add_u32 s{S_CP}, s56, s57
        s_add_u32 s58, s2, 0
        s_cmp_ge_u32 s2, 224
        s_cselect_b32 s{S_F4}, s2, s{S_CP}
        s_lshl_b32 s56, s{S_CP}, 10
        v_lshl_add_u32 v{T}, v0, 2, s56
        v_xor_b32 v{T+1}, 256, v{T}
        v_lshrrev_b32 v{T+2}, 7, v0
        s_lshl_b32 s56, s{S_CP}, 2
        v_lshl_add_u32 v{T+2}, v{T+2}, 1, s56
        global_load_dword v{P}, v{T}, s[{P_LOGA}:{P_LOGA+1}]
        global_load_dword v{P+1}, v{T}, s[{P_AIM}:{P_AIM+1}]
        global_load_dword v{P+2}, v{T}, s[{P_CRE}:{P_CRE+1}]
        global_load_dword v{P+3}, v{T}, s[{P_CIM}:{P_CIM+1}]
        global_load_dword v{P+4}, v{T+1}, s[{P_CRE}:{P_CRE+1}]
        global_load_dword v{P+5}, v{T+1}, s[{P_CIM}:{P_CIM+1}]
        global_load_ushort v{P+6}, v{T+2}, s[{P_LOGDT}:{P_LOGDT+1}]
        """)
        self.t_par = k(f"global_load_ushort v{P+7}, v{T+2}, s[{P_DSK}:{P_DSK+1}]")

    V_YS = 230; V_DS = 231
    def kgen(self):
        k = self.k
        P = self.V_PAR
        R = 16
        AL = R; BE = R + 2; CR = R + 4
        T = R + 8
        WA = R + 16
        RA = R + 24
        Q = R + 28
        Z8 = R + 44; Z128 = R + 46
        PA = R + 48; PB = R + 50; TM = R + 52
        PK = R + 56
        FR = R + 72
        AC = R + 104
        k.wait_vm(self.t_par)
        k(f"""
        v_lshlrev_b32 v{T}, 16, v{P+6}
        v_mul_f32 v{T}, {f2u(LOG2E)}, v{T}
        v_exp_f32 v{T}, v{T}
        v_lshlrev_b32 v{self.V_DS}, 16, v{P+7}
        """)
        self.rbf(T, T)
        for m in range(2):
            un = (lambda d, sr: f"v_lshlrev_b32 v{d}, 16, v{sr}") if m == 0 else (lambda d, sr: f"v_and_b32 v{d}, s{S_MASK}, v{sr}")
            k(un(AL + m, P)); k(un(BE + m, P + 1)); k(un(CR + 2*m, P + 2)); k(un(CR + 2*m + 1, P + 3))
            k(un(T + 2 + 2*m, P + 4)); k(un(T + 3 + 2*m, P + 5))
            k(f"v_mul_f32 v{AL+m}, {f2u(LOG2E)}, v{AL+m}")
            k(f"v_exp_f32 v{AL+m}, v{AL+m}")
        k(f"v_cvt_pk_bf16_f32 v{T+1}, v{AL}, v{AL+1}")
        k(f"v_lshlrev_b32 v{AL}, 16, v{T+1}\nv_and_b32 v{AL+1}, s{S_MASK}, v{T+1}")
        for m in range(2):
            k(f"v_mul_f32 v{AL+m}, v{AL+m}, v{T}")
            k(f"v_mul_f32 v{AL+m}, {f2u(-LOG2E)}, v{AL+m}")
            k(f"v_mul_f32 v{BE+m}, v{BE+m}, v{T}")
            k(f"v_mul_f32 v{BE+m}, {f2u(1.0/(2*math.pi))}, v{BE+m}")
        k(f"v_add_f32 v{T+1}, abs(v{CR}), abs(v{CR+1})")
        for r in (CR+2, CR+3, T+2, T+3, T+4, T+5):
            k(f"v_add_f32 v{T+1}, v{T+1}, abs(v{r})")
        self.wave_sum(T + 1, T + 2)
        k(f"""
        v_mul_f32 v{T+1}, v{T+1}, v{T}
        v_mul_f32 v{T+1}, {f2u(1.001)}, v{T+1}
        v_frexp_exp_i32_f32 v{T+1}, v{T+1}
        v_sub_u32 v{T+2}, 15, v{T+1}
        v_subrev_u32 v{T+3}, 14, v{T+1}
        v_ldexp_f32 v{self.V_YS}, 1.0, v{T+3}
        """)
        for r in range(4):
            k(f"v_mul_f32 v{CR+r}, v{CR+r}, v{T}")
            k(f"v_ldexp_f32 v{CR+r}, v{CR+r}, v{T+2}")
        k(f"s_lshl_b32 s56, s{S_W}, 14")
        k(f"v_lshl_add_u32 v{WA}, v1, 2, s56")
        for c in range(1, 8): k(f"v_xor_b32 v{WA+c}, {c*32}, v{WA}")
        k(f"""
        v_and_b32 v{T}, 15, v1
        v_and_b32 v{T+1}, 7, v1
        v_lshlrev_b32 v{T+1}, 5, v{T+1}
        v_and_b32 v{T+2}, 48, v1
        v_xor_b32 v{T+1}, v{T+1}, v{T+2}
        v_lshl_add_u32 v{T+1}, v{T}, 8, v{T+1}
        v_add_u32 v{RA}, s56, v{T+1}
        """)
        for kk in range(1, 4): k(f"v_xor_b32 v{RA+kk}, {kk*64}, v{RA}")
        for r in range(12): k(f"v_mov_b32 v{AC+r}, 0")
        HS = f2u(16384.0)
        def pack(dst, c, neg=False):
            k(f"v_cvt_pk_f16_f32 v{dst}, v{c}, {'-' if neg else ''}v{c+1}")
        def wr2(r0, p0, r1, p1):
            assert (r0 & 7) == (r1 & 7)
            k(f"ds_write2st64_b32 v{WA + (r0 & 7)}, v{p0}, v{p1} offset0:{r0} offset1:{r1}")
        def wr1(r0, p0):
            k(f"ds_write_b32 v{WA + (r0 & 7)}, v{p0} offset:{r0*256}")
        for ps in range(2):
            al = AL + ps; be = BE + ps; C = CR + 2*ps
            self.cexp(Q + 2, al, be, 1, T)
            self.cexp(Z8, al, be, 8, T + 1)
            self.cexp(Z128, al, be, 128, T + 2)
            self.w_tick()
            self.cmul(Q + 4, Q + 2, Q + 2)
            self.cmul(Q + 6, Q + 4, Q + 2)
            self.cmul(Q + 8, Q + 4, Q + 4)
            self.cmul(Q + 10, Q + 8, Q + 2)
            self.cmul(Q + 12, Q + 8, Q + 4)
            self.cmul(Q + 14, Q + 8, Q + 6)
            cur = C
            for r in range(16):
                pack(PK + (r & 7) + (8 if r >= 8 else 0), cur, neg=True)
                if r >= 8: wr2(r - 8, PK + (r & 7), r, PK + 8 + (r & 7))
                if r < 15:
                    nx = PA if cur != PA else PB
                    self.cmul(nx, cur, Z8); cur = nx
            self.w_tick()
            H0 = 16
            k(f"s_mov_b32 s57, {HS}")
            k(f"v_mul_f32 v{PA}, s57, v{Z128}\nv_mul_f32 v{PA+1}, s57, v{Z128+1}")
            k(f"v_mov_b32 v{PK}, 0x7400")
            pack(PK + 8, PA)
            wr2(H0, PK, H0 + 8, PK + 8)
            for j in range(1, 8):
                k(f"v_mul_f32 v{TM}, s57, v{Q+2*j}\nv_mul_f32 v{TM+1}, s57, v{Q+2*j+1}")
                pack(PK + j, TM)
                self.cmul(TM + 2, PA, Q + 2*j)
                pack(PK + 8 + j, TM + 2)
                wr2(H0 + j, PK + j, H0 + 8 + j, PK + 8 + j)
            self.w_tick()
            cur = PA
            def nextP():
                nonlocal cur
                nx = PA if cur != PA else PB
                self.cmul(nx, cur, Z128); cur = nx
            for i in (2, 3):
                nextP()
                for jj, j in enumerate((0, 2, 4, 6)):
                    idx = (i - 2) * 4 + jj
                    if j == 0: pack(PK + idx, cur)
                    else:
                        self.cmul(TM, cur, Q + 2*j); pack(PK + idx, TM)
            for i in (4, 5, 6, 7):
                nextP()
                for jj, j in enumerate((0, 4)):
                    idx = (i - 4) * 2 + jj
                    if j == 0: pack(PK + 8 + idx, cur)
                    else:
                        self.cmul(TM, cur, Q + 2*j); pack(PK + 8 + idx, TM)
                    wr2(H0 + 16 + idx, PK + idx, H0 + 24 + idx, PK + 8 + idx)
            for i in range(8, 17):
                nextP()
                pack(PK + (i - 8), cur)
                wr1(H0 + 32 + (i - 8), PK + (i - 8))
            self.w_tick()
            tg = {}
            def rd(kk):
                f = FR + (kk & 1) * 16
                for t in range(4):
                    tg[kk] = k(f"ds_read_b128 v[{f+4*t}:{f+4*t+3}], v{RA+kk} offset:{t*4096}")
            rd(0); rd(1)
            for kk in range(4):
                k.wait_lg(tg[kk])
                f = FR + (kk & 1) * 16
                for t in range(3):
                    k(f"v_mfma_f32_16x16x32_f16 v[{AC+4*t}:{AC+4*t+3}], v[{f+4+4*t}:{f+7+4*t}], v[{f}:{f+3}], v[{AC+4*t}:{AC+4*t+3}]")
                if kk + 2 < 4: rd(kk + 2)
        self.stamp("kgen mfma")
        A1 = T; A2 = T + 1
        k(f"""
        s_lshr_b32 s56, s{S_W}, 1
        s_mul_i32 s57, s56, 3072
        s_add_u32 s57, s57, {RED}
        v_lshl_add_u32 v{A1}, v1, 4, s57
        s_and_b32 s58, s{S_W}, 1
        s_cmp_eq_u32 s58, 0
        s_cbranch_scc1 L_kg_even
        """)
        for t in range(3):
            k(f"ds_write_b128 v{A1}, v[{AC+4*t}:{AC+4*t+3}] offset:{t*1024}")
        k(f"""
        s_mul_i32 s57, s56, {KXP}
        s_add_u32 s57, s57, {KX}
        v_lshl_add_u32 v{A2}, v1, 3, s57
        v_mov_b32 v{TM}, 0
        v_mov_b32 v{TM+1}, 0
        ds_write_b64 v{A2}, v[{TM}:{TM+1}]
        L_kg_even:
        s_waitcnt lgkmcnt(0)
        s_barrier
        s_cmp_lg_u32 s58, 0
        s_cbranch_scc1 L_kg_odd
        """)
        for t in range(3):
            k(f"ds_read_b128 v[{FR+4*t}:{FR+4*t+3}], v{A1} offset:{t*1024}")
        k(f"""
        v_and_b32 v{T+2}, 15, v1
        v_lshrrev_b32 v{T+3}, 4, v1
        s_mul_i32 s57, s56, {KXP}
        s_add_u32 s57, s57, {KX + 512}
        v_lshrrev_b32 v{T+4}, 5, v1
        v_lshlrev_b32 v{T+4}, 8, v{T+4}
        v_lshl_add_u32 v{T+4}, v{T+2}, 4, v{T+4}
        v_and_b32 v{T+5}, 1, v{T+3}
        v_xor_b32 v{T+5}, 1, v{T+5}
        v_lshl_add_u32 v{T+4}, v{T+5}, 3, v{T+4}
        v_add_u32 v{T+4}, s57, v{T+4}
        s_lshl_b32 s57, s56, 10
        s_add_u32 s57, s57, {KC}
        v_cmp_gt_u32 vcc, 32, v1
        v_lshlrev_b32 v{T+5}, 2, v{T+2}
        v_lshlrev_b32 v{T+6}, 3, v{T+2}
        v_cndmask_b32 v{T+5}, v{T+5}, v{T+6}, vcc
        v_lshl_add_u32 v{T+5}, v{T+3}, 7, v{T+5}
        v_add_u32 v{T+5}, s57, v{T+5}
        v_mov_b32 v{T+6}, 64
        v_cndmask_b32 v{T+6}, v{T+6}, 4, vcc
        v_add_u32 v{T+6}, v{T+6}, v{T+5}
        v_lshlrev_b32 v{T+7}, 1, v{T+2}
        v_lshl_add_u32 v{T+7}, v{T+3}, 7, v{T+7}
        v_add_u32 v{T+7}, s57, v{T+7}
        s_mov_b32 s59, {f2u(2.0**-14)}
        s_waitcnt lgkmcnt(0)
        """)
        for r in range(12):
            k(f"v_add_f32 v{AC+r}, v{AC+r}, v{FR+r}")
            k(f"v_mul_f32 v{AC+r}, s59, v{AC+r}")
        k(f"""
        v_cvt_pk_f16_f32 v{PK}, v{AC+3}, v{AC+2}
        v_cvt_pk_f16_f32 v{PK+1}, v{AC+1}, v{AC}
        ds_write_b64 v{T+4}, v[{PK}:{PK+1}]
        v_cvt_pk_f16_f32 v{PK+2}, v{AC+4}, v{AC+5}
        v_cvt_pk_f16_f32 v{PK+3}, v{AC+6}, v{AC+7}
        ds_write_b32 v{T+5}, v{PK+2}
        ds_write_b32 v{T+6}, v{PK+3}
        v_cvt_pk_f16_f32 v{PK+4}, v{AC+8}, v{AC+9}
        v_cvt_pk_f16_f32 v{PK+5}, v{AC+10}, v{AC+11}
        ds_write_b16 v{T+7}, v{PK+4} offset:512
        ds_write_b16_d16_hi v{T+7}, v{PK+4} offset:544
        ds_write_b16 v{T+7}, v{PK+5} offset:576
        ds_write_b16_d16_hi v{T+7}, v{PK+5} offset:608
        L_kg_odd:
        """)
        self.u_write_copy8()
        k("s_waitcnt lgkmcnt(0)\ns_barrier")
        self.w_tick()
        D = FR; O = FR + 4
        k(f"""
        s_lshl_b32 s57, s56, 10
        s_add_u32 s57, s57, {KC}
        s_mul_i32 s59, s56, {KXP}
        s_add_u32 s59, s59, {KX + 512}
        v_and_b32 v{T}, 127, v0
        v_lshrrev_b32 v{T+1}, 1, v{T}
        v_lshl_add_u32 v{T+1}, v{T+1}, 2, s57
        ds_read2_b32 v[{D}:{D+1}], v{T+1} offset0:128 offset1:129
        v_lshl_add_u32 v{T+2}, v{T}, 4, s59
        v_and_b32 v{T+3}, 1, v1
        v_cmp_eq_u32 vcc, 1, v{T+3}
        s_cmp_eq_u32 s58, 0
        s_cselect_b32 s60, 63, 31
        s_cselect_b32 s61, 2, 3
        s_cselect_b32 s62, 256, 0
        s_movk_i32 s63, 1024
        s_cselect_b32 s63, s63, 512
        v_and_b32 v{T+4}, s60, v1
        v_lshlrev_b32 v{T+5}, s61, v{T+4}
        s_add_u32 s62, s62, s57
        v_add_u32 v{T+5}, s62, v{T+5}
        ds_read2_b32 v[{D+8}:{D+9}], v{T+5} offset0:0 offset1:1
        ds_read_b32 v{D+10}, v{T+5} offset:8
        s_add_u32 s63, s63, s59
        v_lshl_add_u32 v{T+6}, v{T+4}, 4, s63
        s_waitcnt lgkmcnt(2)
        """)
        k(f"""
        v_alignbit_b32 v{D+2}, v{D+1}, v{D}, 16
        v_cndmask_b32 v{D}, v{D}, v{D+2}, vcc
        s_mov_b32 s60, 0x01000100
        s_mov_b32 s61, 0x03020302
        s_mov_b32 s62, 0x01000302
        v_perm_b32 v{O+3}, v{D}, v{D}, s60
        v_perm_b32 v{O}, v{D}, v{D}, s61
        v_perm_b32 v{O+1}, v{D}, v{D}, s62
        v_mov_b32 v{O+2}, v{O+3}
        v_cndmask_b32 v{O+1}, v{O+1}, v{O}, vcc
        ds_write_b128 v{T+2}, v[{O}:{O+3}] offset:2048
        """)
        E = D + 8; O2 = D + 12
        k(f"""
        s_cmp_eq_u32 s58, 0
        s_cselect_b32 s63, s62, 0x03020504
        s_cselect_b32 s62, s61, 0x05040504
        s_cselect_b32 s61, s60, 0x03020504
        s_waitcnt lgkmcnt(1)
        v_perm_b32 v{O2}, v{E+2}, v{E+1}, s61
        v_perm_b32 v{O2+1}, v{E+1}, v{E}, s62
        v_perm_b32 v{O2+2}, v{E+1}, v{E}, s63
        v_perm_b32 v{O2+3}, v{E}, v{E}, s60
        ds_write_b128 v{T+6}, v[{O2}:{O2+3}]
        """)

    V_U = 200
    def poll(self, addr_v, tmp_v, sleep=1, soff="0"):
        k = self.k
        L = k.label("L_poll")
        k(f"s_mov_b32 s56, 0\n{L}:")
        k.optional += 1
        k(f"buffer_load_dword v{tmp_v}, v{addr_v}, s[{SRD_WS}:{SRD_WS+3}], {soff} offen sc1")
        k.optional -= 1
        k(f"""
        s_waitcnt vmcnt(0)
        v_cmp_eq_u32 vcc, 0, v{tmp_v}
        s_add_u32 s56, s56, 1
        s_cbranch_vccz {L}_ok
        s_sleep {sleep}
        s_cmp_lt_u32 s56, 100000
        s_cbranch_scc1 {L}
        {L}_ok:
        """)
    def u_load(self):
        k = self.k
        T = self.V_S; U = self.V_U
        k(f"""
        v_bfe_u32 v{T}, v1, 2, 2
        s_lshl_b32 s57, s{S_W}, 2
        v_add_u32 v{T}, s57, v{T}
        v_and_b32 v{T+1}, 16, v1
        v_add_u32 v{T}, v{T}, v{T+1}
        v_and_b32 v{T+1}, 7, v{T}
        v_mul_u32_u24 v{T+1}, 7, v{T+1}
        v_lshrrev_b32 v{T+1}, 2, v{T+1}
        s_lshr_b32 s57, s{S_CP}, 4
        s_add_u32 s57, s57, 14
        v_sub_u32 v{T+1}, s57, v{T+1}
        v_subrev_u32 v{T+2}, 14, v{T+1}
        v_min_u32 v{T+1}, v{T+1}, v{T+2}
        v_lshrrev_b32 v{T+2}, 2, v{T+1}
        v_and_b32 v{T+1}, 2, v{T+1}
        v_lshl_add_u32 v{T+1}, v{T+1}, 1, v{T+2}
        v_lshl_add_u32 v{T}, v{T}, 3, v{T+1}
        v_lshlrev_b32 v{T}, 7, v{T}
        v_and_b32 v{T+1}, 3, v1
        v_lshl_add_u32 v{T}, v{T+1}, 2, v{T}
        """)
        self.poll(T, T + 1)
        k(f"""
        v_lshrrev_b32 v{T}, 1, v0
        v_mul_u32_u24 v{T}, 7168, v{T}
        v_and_b32 v{T+1}, 1, v0
        v_lshl_add_u32 v{T}, v{T+1}, 4, v{T}
        s_lshl_b32 s57, s{S_CP}, 5
        s_add_u32 s57, s57, {WS_UT}
        s_add_u32 s58, s57, {128*7168}
        buffer_load_dwordx4 v[{U}:{U+3}], v{T}, s[{SRD_WS}:{SRD_WS+3}], s57 offen sc1
        """)
        self.t_u = k(f"buffer_load_dwordx4 v[{U+4}:{U+7}], v{T}, s[{SRD_WS}:{SRD_WS+3}], s58 offen sc1")
    def u_write_copy8(self):
        k = self.k
        T = self.V_S; U = self.V_U
        k(f"""
        v_and_b32 v{T}, 1, v0
        v_mul_u32_u24 v{T}, {UCH}, v{T}
        v_lshrrev_b32 v{T+1}, 1, v0
        v_lshl_add_u32 v{T}, v{T+1}, 4, v{T}
        """)
        k.wait_vm(self.t_u)
        k(f"ds_write_b128 v{T}, v[{U}:{U+3}] offset:{UC + 7*UCP + 16}")
        k(f"ds_write_b128 v{T}, v[{U+4}:{U+7}] offset:{UC + 7*UCP + 16 + 2048}")
        k(f"""
        v_and_b32 v{T+1}, 15, v1
        v_mul_u32_u24 v{T+1}, {UCP}, v{T+1}
        v_mov_b32 v{U}, 0
        v_mov_b32 v{U+1}, 0
        v_mov_b32 v{U+2}, 0
        v_mov_b32 v{U+3}, 0
        ds_write_b128 v{T+1}, v[{U}:{U+3}] offset:{UC}
        """)

    def u_copies(self):
        k = self.k
        R = 16
        T = R; W0 = R + 4
        k(f"""
        s_lshr_b32 s56, s{S_W}, 1
        s_mul_i32 s56, s56, {UCH}
        v_and_b32 v{T}, 127, v0
        v_lshl_add_u32 v{T}, v{T}, 4, s56
        """)
        tg = []
        for r in range(2):
            w = W0 + 32 * r
            k(f"ds_read_b128 v[{w}:{w+3}], v{T} offset:{UC + 7*UCP + 2048*r}")
            tg.append(k(f"ds_read_b128 v[{w+4}:{w+7}], v{T} offset:{UC + 7*UCP + 2048*r + 16}"))
        for r in range(2):
            w = W0 + 32 * r
            base = UC + 2048 * r + 16
            k.wait_lg(tg[r])
            def wr(s_, reg): k(f"ds_write_b128 v{T}, v[{reg}:{reg+3}] offset:{base + (s_-1)*UCP}")
            wr(4, w + 2)
            for i in range(7): k(f"v_alignbit_b32 v{w+16+i}, v{w+i+1}, v{w+i}, 16")
            wr(1, w + 16); wr(5, w + 18)
            for i in range(6): k(f"v_mov_b32 v{w+8+i}, v{w+1+i}")
            wr(2, w + 8); wr(6, w + 10)
            for i in range(6): k(f"v_mov_b32 v{w+24+i}, v{w+17+i}")
            wr(3, w + 24); wr(7, w + 26)
            self.w_tick()
        k("s_waitcnt lgkmcnt(0)\ns_barrier")

    def conv(self):
        k = self.k
        R = 16
        AA = R; BA = R + 1; T = R + 2
        AC = R + 8
        F = R + 40
        k(f"""
        s_lshr_b32 s56, s{S_W}, 1
        s_and_b32 s58, s{S_W}, 1
        s_mul_i32 s57, s56, {UCH}
        s_lshl_b32 s59, s58, 8
        s_add_u32 s57, s57, s59
        s_add_u32 s57, s57, {UC + 48}
        v_and_b32 v{T}, 7, v1
        v_mul_u32_u24 v{T}, {UCP}, v{T}
        v_bfe_u32 v{T+1}, v1, 3, 1
        v_lshrrev_b32 v{T+2}, 4, v1
        v_sub_u32 v{T+1}, v{T+1}, v{T+2}
        v_lshl_add_u32 v{T}, v{T+1}, 4, v{T}
        v_add_u32 v{AA}, s57, v{T}
        s_mul_i32 s57, s56, {KXP}
        s_sub_u32 s57, s57, s59
        s_add_u32 s57, s57, {KX + 512 - 32 - 192}
        v_and_b32 v{T}, 15, v1
        v_lshlrev_b32 v{T}, 5, v{T}
        v_lshl_add_u32 v{T}, v{T+2}, 4, v{T}
        v_add_u32 v{BA}, s57, v{T}
        """)
        def rd(rp, i):
            f = F + (rp & 1) * 64
            j = i >> 1
            if i & 1: return k(f"ds_read_b128 v[{f+32+4*j}:{f+32+4*j+3}], v{BA} offset:{512*j + 64*(3-rp)}")
            return k(f"ds_read_b128 v[{f+4*j}:{f+4*j+3}], v{AA} offset:{512*j + 64*rp}")
        last = None
        for i in range(16): last = rd(0, i)
        first = set()
        for rp in range(4):
            k.wait_lg(last)
            f = F + (rp & 1) * 64
            cnt = 0; ri = 0
            for n in range(7, -1, -1):
                for a_ in range(n + 1):
                    b = n - a_
                    src = f"v[{AC+4*n}:{AC+4*n+3}]" if n in first else "0"
                    first.add(n)
                    k(f"v_mfma_f32_16x16x32_f16 v[{AC+4*n}:{AC+4*n+3}], v[{f+4*a_}:{f+4*a_+3}], v[{f+32+4*b}:{f+32+4*b+3}], {src}")
                    cnt += 1
                    if rp < 3 and cnt % 2 == 0 and ri < 16:
                        last = rd(rp + 1, ri); ri += 1
                    if cnt == 34: self.w_tick()
        self.stamp("conv mfma")
        X = T
        KEEP = F
        RX = F + 16
        k(f"""
        s_lshl_b32 s57, s{S_W}, 12
        s_add_u32 s57, s57, {CRED}
        v_lshl_add_u32 v{X}, v1, 4, s57
        s_cmp_eq_u32 s58, 0
        s_cbranch_scc1 L_cv_h0
        """)
        assert CRED % 8192 in (0, 2048) or True
        for n in range(4): k(f"ds_write_b128 v{X}, v[{AC+4*n}:{AC+4*n+3}] offset:{n*1024}")
        for r in range(16): k(f"v_mov_b32 v{KEEP+r}, v{AC+16+r}")
        k("s_branch L_cv_j\nL_cv_h0:")
        for n in range(4): k(f"ds_write_b128 v{X}, v[{AC+16+4*n}:{AC+16+4*n+3}] offset:{n*1024}")
        for r in range(16): k(f"v_mov_b32 v{KEEP+r}, v{AC+r}")
        k("L_cv_j:")
        k(f"""
        s_xor_b32 s57, s{S_W}, 1
        s_lshl_b32 s57, s57, 12
        s_add_u32 s57, s57, {CRED}
        v_lshl_add_u32 v{X+1}, v1, 4, s57
        s_mul_i32 s57, s56, {UCH}
        s_lshl_b32 s59, s58, 11
        s_add_u32 s57, s57, s59
        s_add_u32 s57, s57, {UC + 7*UCP + 16}
        v_and_b32 v{X+2}, 15, v1
        v_lshlrev_b32 v{X+2}, 5, v{X+2}
        v_lshrrev_b32 v{X+3}, 4, v1
        v_lshl_add_u32 v{X+3}, v{X+3}, 3, v{X+2}
        v_add_u32 v{X+3}, s57, v{X+3}
        """)
        UU = F + 32
        for n in range(4): k(f"ds_read_b64 v[{UU+2*n}:{UU+2*n+1}], v{X+3} offset:{n*512}")
        k("s_waitcnt lgkmcnt(0)\ns_barrier")
        for n in range(4): k(f"ds_read_b128 v[{RX+4*n}:{RX+4*n+3}], v{X+1} offset:{n*1024}")
        UD = F + 40
        for p in range(8):
            d = UD + 2*p
            k(f"v_fma_mix_f32 v{d}, v{UU+p}, v{self.V_DS}, 0 op_sel_hi:[1,0,0]")
            k(f"v_fma_mix_f32 v{d+1}, v{UU+p}, v{self.V_DS}, 0 op_sel:[1,0,0] op_sel_hi:[1,0,0]")
            k(f"v_cvt_pk_bf16_f32 v{d+1}, v{d}, v{d+1}")
            k(f"v_lshlrev_b32 v{d}, 16, v{d+1}\nv_and_b32 v{d+1}, s{S_MASK}, v{d+1}")
        k(f"""
        v_bfe_u32 v{X}, v1, 4, 1
        v_lshl_add_u32 v{X+2}, v{X}, 9, v{X+2}
        v_lshrrev_b32 v{X}, 5, v1
        v_lshl_add_u32 v{X+2}, v{X}, 4, v{X+2}
        s_lshl_b32 s57, s{S_CP}, 13
        s_lshl_b32 s59, s{S_W}, 11
        s_add_u32 s57, s57, s59
        s_add_u32 s57, s57, {WS_ST}
        s_waitcnt lgkmcnt(0)
        """)
        O = F + 56
        YS = self.V_YS
        for p in range(8):
            y = KEEP + 2*p; d = UD + 2*p
            k(f"""
            v_pk_add_f32 v[{y}:{y+1}], v[{y}:{y+1}], v[{RX+2*p}:{RX+2*p+1}]
            v_pk_mul_f32 v[{y}:{y+1}], v[{y}:{y+1}], v[{YS}:{YS+1}] op_sel_hi:[1,0]
            v_cvt_pk_bf16_f32 v{y+1}, v{y}, v{y+1}
            v_lshlrev_b32 v{y}, 16, v{y+1}
            v_and_b32 v{y+1}, s{S_MASK}, v{y+1}
            v_pk_add_f32 v[{y}:{y+1}], v[{y}:{y+1}], v[{d}:{d+1}]
            v_cvt_pk_bf16_f32 v{O+p}, v{y}, v{y+1}
            """)
        for pr in range(2):
            u = O + 4*pr
            k(f"v_permlane16_swap_b32 v{u}, v{u+2}")
            k(f"v_permlane16_swap_b32 v{u+1}, v{u+3}")
            self.t_s = k(f"buffer_store_dwordx4 v[{u}:{u+3}], v{X+2}, s[{SRD_WS}:{SRD_WS+3}], s57 offen offset:{pr*1024} sc1")
```

```python
import re

TRANS = ("v_exp_f32", "v_log_f32", "v_rcp_f32", "v_rsq_f32", "v_sqrt_f32", "v_sin_f32", "v_cos_f32",
         "v_rcp_iflag_f32", "v_exp_f16", "v_log_f16", "v_rcp_f16", "v_rsq_f16", "v_sqrt_f16", "v_sin_f16", "v_cos_f16")

_reg_re = re.compile(r"^(-|\|)?(abs\()?([vas])(\d+|\[(\d+):(\d+)\])")

def parse_regs(tok):
    t = tok.strip()
    t = t.lstrip("-")
    if t.startswith("abs("): t = t[4:]
    t = t.lstrip("|")
    if t.startswith("vcc"): return [("s", 106), ("s", 107)]
    if t.startswith("exec"): return [("s", 126), ("s", 127)]
    if t == "m0": return [("s", 124)]
    m = re.match(r"^([vas])(\d+)\b", t)
    if m: return [(m.group(1), int(m.group(2)))]
    m = re.match(r"^([vas])\[(\d+):(\d+)\]", t)
    if m: return [(m.group(1), i) for i in range(int(m.group(2)), int(m.group(3)) + 1)]
    return []

class Ins:
    __slots__ = ("text", "op", "ops", "mods", "kind", "wr", "rd", "srcc", "is_label", "dpp", "ws")
    def __init__(self, text):
        self.text = text
        self.is_label = text.endswith(":")
        self.op = ""; self.ops = []; self.mods = ""; self.kind = ""; self.wr = []; self.rd = []; self.srcc = []
        self.dpp = False; self.ws = 1
        if self.is_label or text.startswith(";") or text.startswith("."):
            self.kind = "meta"; self.ws = 0
            return
        body = text.split(";")[0].strip()
        sp = body.split(None, 1)
        self.op = sp[0]
        rest = sp[1] if len(sp) > 1 else ""
        ops = []; cur = ""; depth = 0
        for ch in rest:
            if ch == "[": depth += 1
            if ch == "]": depth -= 1
            if ch == "," and depth == 0:
                ops.append(cur.strip()); cur = ""
            else: cur += ch
        if cur.strip(): ops.append(cur.strip())
        if ops:
            last = ops[-1].split(None, 1)
            ops[-1] = last[0]
            self.mods = last[1] if len(last) > 1 else ""
        self.ops = ops
        op = self.op
        R = [parse_regs(o) for o in ops]
        flat = lambda xs: [r for x in xs for r in x]
        if op.startswith("v_mfma"):
            self.kind = "mfma"; self.wr = R[0]; self.rd = flat(R[1:3]); self.srcc = R[3] if len(R) > 3 else []
        elif op.startswith("v_"):
            self.kind = "trans" if op.replace("_e32", "").replace("_e64", "") in TRANS else "valu"
            self.dpp = "_dpp" in op or "row_" in self.mods or "quad_perm" in self.mods or "wave_" in self.mods
            if op.startswith("v_permlane") and "swap" in op:
                self.wr = flat(R[:2]); self.rd = flat(R[:2])
            elif op.startswith("v_cmp"):
                self.wr = R[0]; self.rd = flat(R[1:])
            elif "_co_" in op:
                self.wr = flat(R[:2]); self.rd = flat(R[2:])
            elif op.startswith("v_nop"):
                pass
            else:
                self.wr = R[0]; self.rd = flat(R[1:])
                if op.startswith(("v_fmac", "v_dot2c", "v_pk_fmac", "v_writelane")) or self.dpp or "sdwa" in op:
                    self.rd = self.rd + R[0]
                if op.startswith("v_cndmask") and len(ops) == 3:
                    self.rd = self.rd + [("s", 106), ("s", 107)]
        elif op.startswith("ds_"):
            self.kind = "ds"
            if op.startswith(("ds_read", "ds_bpermute", "ds_permute", "ds_swizzle")):
                self.wr = R[0]; self.rd = flat(R[1:])
            else:
                self.rd = flat(R)
        elif op.startswith(("buffer_", "global_", "flat_")):
            self.kind = "vmem"
            lds = " lds" in (" " + self.mods) or "_lds_" in op
            if "load" in op and not lds:
                self.wr = R[0]; self.rd = flat(R[1:])
            else:
                self.rd = flat(R)
            if lds: self.rd = self.rd + [("s", 124)]
        elif op.startswith("s_"):
            self.kind = "salu"
            if op == "s_nop":
                self.ws = int(ops[0], 0) + 1
            elif op.startswith(("s_cmp", "s_cbranch", "s_branch", "s_waitcnt", "s_barrier", "s_endpgm", "s_sleep", "s_setprio")):
                self.rd = flat(R)
            elif op.startswith(("s_load", "s_memtime", "s_memrealtime", "s_buffer_load")):
                self.kind = "smem"; self.wr = R[0]; self.rd = flat(R[1:])
            else:
                self.wr = R[0]; self.rd = flat(R[1:])
                if "saveexec" in op: self.wr = self.wr + [("s", 126), ("s", 127)]
        else:
            raise ValueError("unknown instr: " + text)

def mfma_passes(op):
    if "32x32x16" in op or "32x32x8" in op: return 8
    if "16x16x32" in op or "16x16x16" in op: return 4
    raise ValueError(op)

def required_gap(p, c):
    need = 0
    pw = set(p.wr); cr = set(c.rd); cw = set(c.wr); cc = set(c.srcc)
    vec = lambda s: {r for r in s if r[0] in "va"}
    sca = lambda s: {r for r in s if r[0] == "s"}
    if p.kind in ("valu", "trans"):
        if c.kind == "mfma" and vec(pw) & (cr | cc): need = max(need, 2)
        if c.kind in ("valu", "trans"):
            if c.dpp and vec(pw) & cr: need = max(need, 2)
            if c.op.startswith("v_permlane") and vec(pw) & cr: need = max(need, 2)
            if c.op.startswith(("v_readlane", "v_readfirstlane")) and vec(pw) & cr: need = max(need, 1)
            if sca(pw) & cr:
                need = max(need, 4 if c.op.startswith(("v_readlane", "v_writelane")) else 2)
            if p.kind == "trans" and vec(pw) & (cr | cw): need = max(need, 1)
            if ("sdwa" in p.op or "op_sel" in p.mods) and not p.op.startswith("v_pk") and vec(pw) & (cr | cw): need = max(need, 1)
            if p.op.startswith("v_dot") and vec(pw) & (cr | cw):
                if not (c.op == p.op and len(c.ops) == 4 and set(parse_regs(c.ops[3])) == vec(pw) and not (vec(pw) & set(parse_regs(c.ops[1]) + parse_regs(c.ops[2])))):
                    need = max(need, 3)
        if p.kind == "trans" and c.kind in ("vmem", "ds") and vec(pw) & cr: need = max(need, 1)
        if p.op.startswith("v_dot") and c.kind in ("vmem", "ds", "mfma") and vec(pw) & (cr | cc | cw): need = max(need, 3)
        if c.kind == "vmem" and sca(pw) & cr: need = max(need, 5)
        if c.kind in ("salu", "smem") and sca(pw) & cr: need = max(need, 1)
    if p.kind == "mfma":
        n = mfma_passes(p.op)
        t_ov = {4: 6, 8: 10}[n]; t_rd = {4: 8, 8: 12}[n]; t_war = {4: 3, 8: 7}[n]
        if c.kind == "mfma":
            if pw & cr: need = max(need, t_rd)
            if pw & cc:
                if not (p.wr == c.srcc and mfma_passes(c.op) == n): need = max(need, t_ov)
            elif pw & cw: need = max(need, t_ov)
        else:
            if pw & (cr | cw): need = max(need, t_rd)
            if c.kind in ("valu", "trans") and set(p.srcc) & cw: need = max(need, t_war)
    if p.kind == "salu":
        if ("s", 124) in pw and c.kind == "vmem" and ("s", 124) in cr: need = max(need, 1)
        if ("s", 124) in pw and c.op.startswith(("v_writelane", "v_readlane")) and ("s", 124) in cr: need = max(need, 1)
    if p.kind == "vmem" and ("store" in p.op) and ("x4" in p.op or "x3" in p.op):
        if vec(set(p.rd)) & cw: need = max(need, 2)
    return need

class K:
    def __init__(self):
        self.ins = []
        self.vm = 0
        self.lg = 0
        self.uid = 0
        self.optional = 0
    def __call__(self, s):
        last = None
        for l in s.split("\n"):
            l = l.strip()
            if not l: continue
            i = Ins(l)
            self.ins.append(i)
            if i.kind == "vmem" and not self.optional:
                self.vm += 1; last = self.vm
            if i.kind == "ds":
                self.lg += 1; last = self.lg
        return last
    def c(self, s): self.ins.append(Ins("; " + s))
    def label(self, base="L"):
        self.uid += 1
        return f"{base}_{self.uid}"
    def wait_vm(self, tag):
        n = self.vm - tag
        assert n >= 0
        self(f"s_waitcnt vmcnt({min(n, 63)})")
    def wait_lg(self, tag):
        n = self.lg - tag
        assert n >= 0
        self(f"s_waitcnt lgkmcnt({min(n, 15)})")
    def wait_both(self, vtag, ltag):
        self(f"s_waitcnt vmcnt({min(self.vm - vtag, 63)}) lgkmcnt({min(self.lg - ltag, 15)})")
    def finalize(self):
        out = []
        W = 24
        nn = 0
        for c in self.ins:
            if c.kind != "meta":
                need = 0; dist = 0
                for p in reversed(out[-60:]):
                    if p.kind == "meta": continue
                    g = required_gap(p, c)
                    if g > dist: need = max(need, g - dist)
                    dist += p.ws
                    if dist >= W: break
                while need > 0:
                    k = min(need, 16)
                    out.append(Ins(f"s_nop {k-1}")); need -= k; nn += 1
            out.append(c)
        self.n_nops = nn
        return "\n".join((i.text if i.is_label else "    " + i.text) for i in out) + "\n"

def v(b, n=1): return f"v{b}" if n == 1 else f"v[{b}:{b+n-1}]"
def s(b, n=1): return f"s{b}" if n == 1 else f"s[{b}:{b+n-1}]"
def a(b, n=1): return f"a{b}" if n == 1 else f"a[{b}:{b+n-1}]"
```

```python
from gen2 import *

X2 = 0
WO = 0
X3 = 114688

class Gen3(Gen2):
    V_BSP = 232; V_L16 = 233
    def set_flag_idx(self, stage, sidx):
        k = self.k
        T = self.V_S
        k(f"""
        s_lshl_b32 s56, s{sidx}, 7
        s_lshl_b32 s57, s{S_W}, 2
        s_add_u32 s56, s56, s57
        s_add_u32 s56, s56, {WS_FLAG + stage*32768}
        v_mov_b32 v{T}, 0
        v_mov_b32 v{T+1}, 1
        s_mov_b64 exec, 1
        buffer_store_dword v{T+1}, v{T}, s[{SRD_WS}:{SRD_WS+3}], s56 offen sc1
        s_mov_b64 exec, -1
        """)
    def misc_loads(self):
        k = self.k
        T = self.V_S
        k(f"""
        s_lshl_b32 s56, s{S_TB}, 7
        s_lshl_b32 s57, s{S_W}, 5
        s_add_u32 s56, s56, s57
        v_and_b32 v{T}, 15, v1
        v_lshl_add_u32 v{T}, v{T}, 1, s56
        v_lshlrev_b32 v{self.V_L16}, 4, v1
        global_load_ushort v{self.V_BSP}, v{T}, s[{P_BSP}:{P_BSP+1}]
        """)

    def phase2(self):
        k = self.k
        T = self.V_S
        AC = 16; ZR = 128
        SZ = 88; SZ2 = 89; SZB = 87
        k(f"""
        v_bfe_u32 v{T}, v1, 2, 3
        s_lshl_b32 s57, s{S_W}, 3
        v_add_u32 v{T}, s57, v{T}
        s_xor_b32 s57, s{S_FB}, 1
        v_lshl_add_u32 v{T}, v{T}, 3, s57
        v_lshlrev_b32 v{T}, 7, v{T}
        v_and_b32 v{T+1}, 3, v1
        v_lshl_add_u32 v{T}, v{T+1}, 2, v{T}
        s_mov_b32 s58, {WS_FLAG + 32768}
        s_lshl_b32 s57, s{S_FB}, 6
        s_lshl_b32 s59, s{S_W}, 4
        s_add_u32 s57, s57, s59
        s_mul_i32 s{SZB}, s57, 7168
        s_add_u32 s{SZB}, s{SZB}, {WS_Z}
        """)
        self.poll(T, T + 1, soff="s58")
        self.set_flag_idx(3, S_F4)
        self.stamp("z ready")
        tag = {}
        def zhead(sg):
            k(f"""
            s_add_u32 s{SZ}, s{S_RHO2}, {sg}
            s_and_b32 s{SZ}, s{SZ}, 15
            s_mul_i32 s{SZ}, s{SZ}, 7168
            s_add_u32 s{SZ}, s{SZ}, s{SZB}
            s_add_u32 s{SZ2}, s{SZ}, 4096
            """)
        def zload(sg, j):
            if j == 0: zhead(sg)
            r = ZR + (sg % 3) * 28 + 4 * j
            so = SZ if j < 4 else SZ2
            tag[(sg, j)] = k(f"buffer_load_dwordx4 v[{r}:{r+3}], v{self.V_L16}, s[{SRD_WS}:{SRD_WS+3}], s{so} offen offset:{(j & 3) * 1024} sc1")
        for sg in range(2):
            for j in range(7): zload(sg, j)
        for sg in range(16):
            for j in range(7):
                if j in (0, 4): k.wait_vm(tag[(sg, 3 if j == 0 else 6)])
                r = ZR + (sg % 3) * 28 + 4 * j
                for tau in range(4):
                    ac = AC + (tau * 7 + j) * 4
                    wr = (sg * 4 + tau) * 4
                    src = "0" if sg == 0 else f"v[{ac}:{ac+3}]"
                    k(f"v_mfma_f32_16x16x32_bf16 v[{ac}:{ac+3}], v[{r}:{r+3}], a[{wr}:{wr+3}], {src}")
                if sg + 2 < 16: zload(sg + 2, j)
        self.stamp("gemm2")
        for tp in range(1, 4):
            k(f"""
            s_xor_b32 s56, s{S_W}, {tp}
            s_mul_i32 s56, s56, 21504
            s_add_u32 s56, s56, {X2 + (tp-1)*7168}
            v_add_u32 v{T}, s56, v{self.V_L16}
            """)
            for j in range(7):
                ac = AC + (tp * 7 + j) * 4
                k(f"ds_write_b128 v{T}, v[{ac}:{ac+3}] offset:{j*1024}")
        k(f"""
        s_mul_i32 s56, s{S_W}, 21504
        s_add_u32 s56, s56, {X2}
        v_add_u32 v{T}, s56, v{self.V_L16}
        v_lshlrev_b32 v{self.V_BSP}, 16, v{self.V_BSP}
        s_waitcnt lgkmcnt(0)
        s_barrier
        """)
        RX = ZR
        tg = {}
        for j in range(7):
            for sidx in range(3):
                r = RX + (j * 3 + sidx) * 4
                tg[j] = k(f"ds_read_b128 v[{r}:{r+3}], v{T} offset:{sidx*7168 + j*1024}")
        P = 48
        Z = 64
        B = self.V_BSP
        for j in range(7):
            k.wait_lg(tg[j])
            for hh in range(2):
                g = AC + j * 4 + 2 * hh
                p = 2 * j + hh
                z = Z + 2 * (p & 1)
                for sidx in range(3):
                    r = RX + (j * 3 + sidx) * 4 + 2 * hh
                    k(f"v_pk_add_f32 v[{g}:{g+1}], v[{g}:{g+1}], v[{r}:{r+1}]")
                k(f"""
                v_cvt_pk_bf16_f32 v{g+1}, v{g}, v{g+1}
                v_lshlrev_b32 v{g}, 16, v{g+1}
                v_and_b32 v{g+1}, s{S_MASK}, v{g+1}
                v_pk_add_f32 v[{g}:{g+1}], v[{g}:{g+1}], v[{B}:{B+1}] op_sel_hi:[1,0]
                v_cvt_pk_bf16_f32 v{g+1}, v{g}, v{g+1}
                v_lshlrev_b32 v{g}, 16, v{g+1}
                v_and_b32 v{g+1}, s{S_MASK}, v{g+1}
                v_lshlrev_b32 v{z}, 16, v{self.V_Z1+p}
                v_and_b32 v{z+1}, s{S_MASK}, v{self.V_Z1+p}
                v_pk_mul_f32 v[{g}:{g+1}], v[{g}:{g+1}], v[{z}:{z+1}]
                v_cvt_pk_bf16_f32 v{P+p}, v{g}, v{g+1}
                """)
        k(f"v_mov_b32 v{P+14}, v{P+12}\nv_mov_b32 v{P+15}, v{P+13}")
        k(f"""
        s_lshl_b32 s56, s{S_TB}, 2
        s_add_u32 s56, s56, s{S_W}
        s_mul_i32 s56, s56, 28
        s_lshr_b32 s57, s{S_FB}, 1
        s_mul_i32 s57, s57, 7
        s_add_u32 s56, s56, s57
        s_lshl_b32 s56, s56, 10
        s_add_u32 s56, s56, {WS_H}
        s_and_b32 s58, s{S_FB}, 1
        s_lshl_b32 s57, s58, 12
        s_add_u32 s57, s57, s56
        s_lshl_b32 s58, s58, 9
        s_add_u32 s58, s58, s56
        v_lshrrev_b32 v{T}, 5, v1
        v_lshlrev_b32 v{T}, 8, v{T}
        v_and_b32 v{T+1}, 15, v1
        v_lshl_add_u32 v{T}, v{T+1}, 4, v{T}
        v_permlane16_swap_b32 v{P+12}, v{P+14}
        v_permlane16_swap_b32 v{P+13}, v{P+15}
        """)
        for i in range(3):
            k(f"buffer_store_dwordx4 v[{P+4*i}:{P+4*i+3}], v{self.V_L16}, s[{SRD_WS}:{SRD_WS+3}], s57 offen offset:{i*1024} sc1")
        self.t_h = k(f"buffer_store_dwordx4 v[{P+12}:{P+15}], v{T}, s[{SRD_WS}:{SRD_WS+3}], s58 offen offset:3072 sc1")
        self.stamp("h stored")
        k("s_barrier")
        k("s_waitcnt vmcnt(0)")
        self.set_flag(2)
        self.stamp("h out")

    def phase3(self):
        k = self.k
        T = self.V_S
        k(f"s_cmp_eq_u32 s{S_FB}, 7\ns_cbranch_scc1 L_done")
        HB = 16; AC = 128
        VN = 2; VS = 3; RA = 4
        k(f"""
        v_lshrrev_b32 v{T}, 3, v1
        v_and_b32 v{T+1}, 7, v1
        v_bfe_u32 v{T+2}, v1, 4, 1
        v_xor_b32 v{T+1}, v{T+1}, v{T+2}
        v_mul_u32_u24 v{VN}, 896, v{T}
        v_lshl_add_u32 v{VN}, v{T+1}, 4, v{VN}
        v_and_b32 v{T+2}, 3, v{T}
        v_and_b32 v{T}, 4, v{T}
        v_lshl_add_u32 v{T}, v{T}, 1, v{T+2}
        v_mul_u32_u24 v{VS}, 896, v{T}
        v_lshl_add_u32 v{VS}, v{T+1}, 4, v{VS}
        s_mul_i32 s60, s{S_W}, {224*896}
        s_lshl_b32 s61, s{S_FB}, 7
        s_add_u32 s60, s60, s61
        s_mul_i32 s61, s{S_W}, 28672
        """)
        tw = {}
        for i in range(7):
            for n in range(4):
                if i == 3:
                    row = (208 if n & 1 else 96) + 4 * (n >> 1); vo = VS
                else:
                    row = (32 * i if i < 3 else 112 + 32 * (i - 4)) + 8 * n; vo = VN
                k(f"s_add_u32 s62, s60, {row*896}")
                k(f"s_add_u32 m0, s61, {WO + i*4096 + n*1024}")
                tw[i] = k(f"buffer_load_dwordx4 v{vo}, s[{SRD_WOUT}:{SRD_WOUT+3}], s62 offen lds")
        XV = 192
        OA = 6
        k(f"""
        v_and_b32 v{T}, 15, v1
        v_mul_u32_u24 v{OA}, 896, v{T}
        v_lshrrev_b32 v{T+1}, 4, v1
        v_lshl_add_u32 v{OA}, v{T+1}, 5, v{OA}
        s_lshl_b32 s63, s{S_TB}, 2
        s_add_u32 s63, s63, s{S_W}
        s_mul_i32 s63, s63, {16*896}
        s_lshl_b32 s62, s{S_FB}, 7
        s_add_u32 s63, s63, s62
        buffer_load_dwordx4 v[{XV}:{XV+3}], v{OA}, s[{SRD_X}:{SRD_X+3}], s63 offen
        buffer_load_dwordx4 v[{XV+4}:{XV+7}], v{OA}, s[{SRD_X}:{SRD_X+3}], s63 offen offset:16
        v_lshrrev_b32 v{T}, 2, v1
        v_lshlrev_b32 v{T}, 7, v{T}
        v_and_b32 v{T+1}, 3, v1
        v_lshl_add_u32 v{T}, v{T+1}, 5, v{T}
        v_bfe_u32 v{T+1}, v1, 3, 1
        v_lshl_add_u32 v{T}, v{T+1}, 4, v{T}
        v_add_u32 v{RA}, s61, v{T}
        v_xor_b32 v{RA+1}, 16, v{RA}
        """)
        for i in range(7):
            k.wait_vm(tw[i])
            for tau in range(4):
                ar = (i * 4 + tau) * 4
                for h in range(2):
                    k(f"ds_read_b64_tr_b16 a[{ar+2*h}:{ar+2*h+1}], v{RA + (tau >> 1)} offset:{WO + i*4096 + h*2048 + (tau & 1)*8}")
        self.stamp("wout ready")
        k(f"""
        v_lshrrev_b32 v{T}, 1, v1
        v_lshlrev_b32 v{T}, 7, v{T}
        v_and_b32 v{T+1}, 1, v1
        v_lshl_add_u32 v{T}, v{T+1}, 3, v{T}
        s_lshl_b32 s58, s{S_FB}, 12
        s_lshr_b32 s59, s{S_TB}, 4
        s_lshl_b32 s59, s59, 2
        s_add_u32 s58, s58, s59
        s_add_u32 s58, s58, {WS_FLAG + 3*32768}
        """)
        self.poll(T, T + 1, soff="s58")
        SV = 200
        k(f"""
        v_lshrrev_b32 v{T}, 1, v1
        v_lshlrev_b32 v{T}, 12, v{T}
        v_and_b32 v{T+1}, 1, v1
        v_lshl_add_u32 v{T}, v{T+1}, 4, v{T}
        s_lshl_b32 s58, s{S_FB}, 18
        s_lshl_b32 s59, s{S_TB}, 7
        s_add_u32 s58, s58, s59
        s_lshl_b32 s59, s{S_W}, 5
        s_add_u32 s58, s58, s59
        s_add_u32 s58, s58, {WS_ST}
        s_add_u32 s59, s58, {32*4096}
        buffer_load_dwordx4 v[{SV}:{SV+3}], v{T}, s[{SRD_WS}:{SRD_WS+3}], s58 offen sc1
        buffer_load_dwordx4 v[{SV+4}:{SV+7}], v{T}, s[{SRD_WS}:{SRD_WS+3}], s59 offen sc1
        v_bfe_u32 v{T}, v1, 2, 1
        v_lshlrev_b32 v{T}, 7, v{T}
        v_and_b32 v{T+1}, 3, v1
        v_lshl_add_u32 v{T}, v{T+1}, 2, v{T}
        s_lshl_b32 s58, s{S_TB}, 10
        s_lshl_b32 s59, s{S_W}, 8
        s_add_u32 s58, s58, s59
        s_add_u32 s58, s58, {WS_FLAG + 2*32768}
        """)
        self.poll(T, T + 1, soff="s58")
        self.stamp("h ready")
        for tp in range(4):
            k(f"""
            s_xor_b32 s56, s{S_W}, {tp}
            s_lshl_b32 s57, s{S_TB}, 2
            s_add_u32 s56, s56, s57
            s_mul_i32 s56, s56, 28
            s_mul_i32 s57, s{S_W}, 7
            s_add_u32 s56, s56, s57
            s_lshl_b32 s56, s56, 10
            s_add_u32 s{64+2*tp}, s56, {WS_H}
            s_add_u32 s{65+2*tp}, s{64+2*tp}, 4096
            """)
        th = {}
        for i in range(7):
            for tp in range(4):
                r = HB + (i * 4 + tp) * 4
                th[i] = k(f"buffer_load_dwordx4 v[{r}:{r+3}], v{self.V_L16}, s[{SRD_WS}:{SRD_WS+3}], s{64+2*tp+(i>>2)} offen offset:{(i&3)*1024} sc1")
        k(f"""
        v_add_u32 v{T}, s61, v{self.V_L16}
        ds_write_b128 v{T}, v[{SV}:{SV+3}] offset:{WO}
        ds_write_b128 v{T}, v[{SV+4}:{SV+7}] offset:{WO+1024}
        v_lshrrev_b32 v{T+1}, 4, v1
        v_lshlrev_b32 v{T+1}, 9, v{T+1}
        v_and_b32 v{T+2}, 15, v1
        v_lshl_add_u32 v{T+1}, v{T+2}, 3, v{T+1}
        v_add_u32 v{T+1}, s61, v{T+1}
        """)
        for tau in range(4):
            k(f"ds_read_b64_tr_b16 v[{SV+2*tau}:{SV+2*tau+1}], v{T+1} offset:{WO + tau*128}")
        k("s_waitcnt lgkmcnt(0)")
        for i in range(7):
            k.wait_vm(th[i])
            for tp in range(4):
                r = HB + (i * 4 + tp) * 4
                for tau in range(4):
                    ac = AC + (tp * 4 + tau) * 4
                    ar = (i * 4 + tau) * 4
                    src = "0" if i == 0 else f"v[{ac}:{ac+3}]"
                    k(f"v_mfma_f32_16x16x32_bf16 v[{ac}:{ac+3}], a[{ar}:{ar+3}], v[{r}:{r+3}], {src}")
        self.stamp("gemm3")
        for tp in range(1, 4):
            k(f"""
            s_xor_b32 s56, s{S_W}, {tp}
            s_mul_i32 s56, s56, 12288
            s_add_u32 s56, s56, {X3 + (tp-1)*4096}
            v_add_u32 v{T}, s56, v{self.V_L16}
            """)
            for tau in range(4):
                ac = AC + (tp * 4 + tau) * 4
                k(f"ds_write_b128 v{T}, v[{ac}:{ac+3}] offset:{tau*1024}")
        k(f"""
        s_mul_i32 s56, s{S_W}, 12288
        s_add_u32 s56, s56, {X3}
        v_add_u32 v{T}, s56, v{self.V_L16}
        s_waitcnt lgkmcnt(0)
        s_barrier
        """)
        RX = HB
        tg = {}
        for tau in range(4):
            for sidx in range(3):
                r = RX + (tau * 3 + sidx) * 4
                tg[tau] = k(f"ds_read_b128 v[{r}:{r+3}], v{T} offset:{sidx*4096 + tau*1024}")
        E = 80; O = 96; C = 104
        k(f"v_mov_b32 v{C}, {f2u(-LOG2E)}")
        for tau in range(4):
            k.wait_lg(tg[tau])
            for hh in range(2):
                g = AC + tau * 4 + 2 * hh
                e = E + 4 * hh
                for sidx in range(3):
                    r = RX + (tau * 3 + sidx) * 4 + 2 * hh
                    k(f"v_pk_add_f32 v[{g}:{g+1}], v[{g}:{g+1}], v[{r}:{r+1}]")
                k(f"""
                v_cvt_pk_bf16_f32 v{g+1}, v{g}, v{g+1}
                v_lshlrev_b32 v{g}, 16, v{g+1}
                v_and_b32 v{g+1}, s{S_MASK}, v{g+1}
                v_pk_mul_f32 v[{e}:{e+1}], v[{g}:{g+1}], v[{C}:{C+1}] op_sel_hi:[1,0]
                v_exp_f32 v{e}, v{e}
                v_exp_f32 v{e+1}, v{e+1}
                """)
            for hh in range(2):
                e = E + 4 * hh
                k(f"""
                v_pk_add_f32 v[{e}:{e+1}], v[{e}:{e+1}], 1.0 op_sel_hi:[1,0]
                v_rcp_f32 v{e}, v{e}
                v_rcp_f32 v{e+1}, v{e+1}
                """)
            for hh in range(2):
                g = AC + tau * 4 + 2 * hh
                e = E + 4 * hh
                p = 2 * tau + hh
                k(f"""
                v_pk_mul_f32 v[{g}:{g+1}], v[{g}:{g+1}], v[{e}:{e+1}]
                v_cvt_pk_bf16_f32 v{g+1}, v{g}, v{g+1}
                v_lshlrev_b32 v{g}, 16, v{g+1}
                v_and_b32 v{g+1}, s{S_MASK}, v{g+1}
                v_lshlrev_b32 v{e}, 16, v{SV+p}
                v_and_b32 v{e+1}, s{S_MASK}, v{SV+p}
                v_pk_mul_f32 v[{g}:{g+1}], v[{g}:{g+1}], v[{e}:{e+1}]
                v_cvt_pk_bf16_f32 v{g+1}, v{g}, v{g+1}
                v_lshlrev_b32 v{g}, 16, v{g+1}
                v_and_b32 v{g+1}, s{S_MASK}, v{g+1}
                v_lshlrev_b32 v{e}, 16, v{XV+p}
                v_and_b32 v{e+1}, s{S_MASK}, v{XV+p}
                v_pk_add_f32 v[{g}:{g+1}], v[{g}:{g+1}], v[{e}:{e+1}]
                v_cvt_pk_bf16_f32 v{O+p}, v{g}, v{g+1}
                """)
        k(f"buffer_store_dwordx4 v[{O}:{O+3}], v{OA}, s[{SRD_OUT}:{SRD_OUT+3}], s63 offen")
        k(f"buffer_store_dwordx4 v[{O+4}:{O+7}], v{OA}, s[{SRD_OUT}:{SRD_OUT+3}], s63 offen offset:16")
        self.stamp("out stored")
        k("L_done:")

    def build(self):
        k = self.k
        self.prologue()
        self.ln1()
        self.ut_out()
        self.gemm1(0)
        self.stamp("gemm z2")
        self.gelu(0)
        self.bg_flush()
        self.stamp("gelu z2")
        self.check_go()
        self.stats_publish()
        self.set_flag(0)
        self.kparams_load()
        self.misc_loads()
        self.w_setup()
        self.stamp("stats out")
        self.gemm1(1)
        self.stamp("gemm z1")
        self.w_tick(); self.w_tick()
        self.gelu(1)
        self.stamp("gelu z1")
        self.stats_collect_normalize()
        self.stamp("z2 stored")
        k("s_waitcnt vmcnt(0)")
        self.set_flag(1)
        k("s_barrier")
        self.stamp("z2 out")
        self.u_load()
        self.stamp("u polled")
        self.kgen()
        self.stamp("kgen done")
        self.u_copies()
        self.stamp("copies")
        self.conv()
        self.w_finish()
        self.stamp("conv done")
        if self.stop == "conv":
            k("s_waitcnt lgkmcnt(0)")
            self.dump(list(range(0, 256)), 0, file="a"); return self.finish()
        k("s_waitcnt lgkmcnt(0)\ns_barrier")
        self.phase2()
        if self.stop == "p2": return self.finish()
        self.phase3()
        self.finish()

import gen as _g
def generate(stop=None, stamps=False, name=NAME):
    _g.Gen = Gen3
    return _g.generate(stop, stamps, name)

if __name__ == "__main__":
    stop = sys.argv[1] if len(sys.argv) > 1 and sys.argv[1] != "-" else None
    out = sys.argv[2] if len(sys.argv) > 2 else "k.s"
    txt, g = generate(stop, stamps=len(sys.argv) > 3)
    open(out, "w").write(txt)
    print("nops inserted", g.k.n_nops, "instr", sum(1 for i in g.k.ins if i.kind != "meta"))
```

```python
import sys, math, struct
sys.path.insert(0, "work")
from kg import *

NAME = "recurrent_scan__ssm_conv_s4d__mixer_gmlp__prompt_kernel"

def f2u(x): return struct.unpack("<I", struct.pack("<f", x))[0]

WS_FLAG = 0x0
WS_STAT = 0x20000
WS_UT   = 0x100000
WS_Z    = 0x400000
WS_ST   = 0x800000
WS_H    = 0xC00000
WS_DBG  = 0x2000000
WS_SIZE = 0x10000000

S_WG = 2; S_W = 3; S_TB = 4; S_FB = 5; S_RHO = 6; S_RHO2 = 7
SRD_X = 8; SRD_WIN = 12; SRD_WSP = 16; SRD_WOUT = 20; SRD_WS = 24; SRD_OUT = 28; SRD_DBG = 32
P_LOGA = 36; P_AIM = 38; P_CRE = 40; P_CIM = 42; P_LOGDT = 44; P_DSK = 46; P_BSP = 48
S_T0 = 50
S_OFF1 = 52; S_OFF2 = 53
S_MASK = 54
S_ONES = 55
S_TMP = 56

XB = 0
W2B = 57344
def chunk_lds(c):
    if c < 14: return W2B + 7168 * c
    if c < 22: return (c % 4) * 14336 + ((c - 14) >> 2) * 7168
    return W2B + 7168 * (c - 22)

class Gen:
    def __init__(self, stop=None, stamps=False):
        self.k = K()
        self.stop = stop
        self.stamps = stamps
        self.nstamp = 0
        self.bgq = []
        self.stamp_names = []
    def bg(self, n=1):
        for _ in range(n):
            if self.bgq:
                f = self.bgq.pop(0)
                f()
    def bg_flush(self):
        while self.bgq: self.bg()
    def stamp(self, name):
        if not self.stamps: return
        k = self.k
        k(f"s_memtime s[98:99]")
        k("s_waitcnt lgkmcnt(0)")
        k(f"s_sub_u32 s98, s98, s{S_T0}")
        k(f"v_writelane_b32 v{self.V_STAMP}, s98, {self.nstamp}")
        self.stamp_names.append(name)
        self.nstamp += 1
    def srd(self, dst, src, nbytes):
        self.k(f"""
        s_mov_b32 s{dst}, s{src}
        s_mov_b32 s{dst+1}, s{src+1}
        s_mov_b32 s{dst+2}, {nbytes}
        s_mov_b32 s{dst+3}, 0x20000
        """)
    def dump(self, regs, slot, file="v"):
        k = self.k
        n = len(regs)
        k(f"""
        s_lshl_b32 s96, s{S_WG}, 2
        s_add_u32 s96, s96, s{S_W}
        s_mul_i32 s96, s96, {n*256}
        s_add_u32 s96, s96, {WS_DBG + slot * 0x1000000}
        v_lshlrev_b32 v{self.V_DT}, 2, v1
        """)
        for i, r in enumerate(regs):
            k(f"buffer_store_dword {file}{r}, v{self.V_DT}, s[{SRD_WS}:{SRD_WS+3}], s96 offen")
            k("s_add_u32 s96, s96, 256")
    def finish(self):
        k = self.k
        if self.stamps:
            self.dump([self.V_STAMP], 7)
        k("s_endpgm")

    V_XD = 2; V_XR = 3; V_WD = 4
    V_TR = 11
    V_T = 14; V_T2 = 15
    V_X = 16
    V_B = 72
    V_ACC = 128
    V_Z = 156
    V_ID = 184
    V_TMP = 88
    V_S = 212
    V_DT = 238; V_STAMP = 239
    V_Z1 = 240

    def prologue(self):
        k = self.k
        k(f"""
        s_cmp_ge_u32 s2, 256
        s_cbranch_scc1 L_exit
        s_load_dwordx16 s[64:79], s[0:1], 0
        s_load_dwordx8 s[80:87], s[0:1], 64
        s_load_dwordx4 s[88:91], s[0:1], 96
        s_load_dwordx2 s[92:93], s[0:1], 112
        """)
        k(f"""
        s_getpc_b64 s[96:97]
        s_and_b32 s96, s96, 0xffffff00
        s_mov_b32 s98, CODE_BYTES
        s_mov_b32 s99, 0x20000
        s_lshr_b32 s56, s2, 3
        s_lshl_b32 s56, s56, 11
        v_lshl_add_u32 v{self.V_T2}, v0, 3, s56
        buffer_load_dwordx2 v[{self.V_S+6}:{self.V_S+7}], v{self.V_T2}, s[96:99], 0 offen
        """)
        if self.stamps:
            k(f"s_memtime s[{S_T0}:{S_T0+1}]")
            k(f"v_mov_b32 v{self.V_STAMP}, 0")
        k(f"""
        v_lshrrev_b32 v{self.V_T}, 6, v0
        v_and_b32 v1, 63, v0
        v_readfirstlane_b32 s{S_W}, v{self.V_T}
        s_and_b32 s56, s2, 7
        s_lshr_b32 s57, s2, 3
        s_lshr_b32 s58, s56, 1
        s_lshl_b32 s58, s58, 3
        s_and_b32 s59, s57, 7
        s_add_u32 s{S_TB}, s58, s59
        s_and_b32 s58, s56, 1
        s_lshl_b32 s58, s58, 2
        s_lshr_b32 s60, s57, 3
        s_add_u32 s{S_FB}, s58, s60
        s_mul_i32 s58, s59, 7
        s_lshr_b32 s58, s58, 2
        s_lshl_b32 s61, s60, 2
        s_add_u32 s58, s58, s61
        s_and_b32 s61, s56, 1
        s_lshl_b32 s61, s61, 1
        s_add_u32 s58, s58, s61
        s_sub_u32 s61, s58, 14
        s_cmp_ge_u32 s58, 14
        s_cselect_b32 s{S_RHO}, s61, s58
        s_lshl_b32 s61, s60, 1
        s_add_u32 s61, s61, s59
        s_and_b32 s61, s61, 7
        s_lshl_b32 s{S_RHO2}, s61, 1
        s_mul_i32 s{S_OFF1}, s{S_FB}, 224
        s_xor_b32 s61, s{S_FB}, 1
        s_mul_i32 s{S_OFF2}, s61, 224
        s_add_u32 s{S_OFF2}, s{S_OFF2}, 1792
        s_mov_b32 s{S_MASK}, 0xffff0000
        s_mov_b32 s{S_ONES}, 0x3f803f80
        v_lshrrev_b32 v{self.V_T}, 2, v0
        v_mul_u32_u24 v{self.V_XD}, 896, v{self.V_T}
        v_lshrrev_b32 v{self.V_T}, 4, v1
        v_and_b32 v{self.V_T}, 2, v{self.V_T}
        v_and_b32 v{self.V_T2}, 3, v1
        v_xor_b32 v{self.V_T}, v{self.V_T}, v{self.V_T2}
        v_lshl_add_u32 v{self.V_XD}, v{self.V_T}, 4, v{self.V_XD}
        s_waitcnt lgkmcnt(0)
        """)
        self.stamp("kernarg")
        self.srd(SRD_X, 64, 2048 * 448 * 2)
        self.srd(SRD_WS, 92, WS_SIZE)
        k(f"""
        s_or_b32 s56, s{S_FB}, s{S_W}
        s_cmp_lg_u32 s56, 0
        s_cbranch_scc1 L_noclear
        """)
        k.optional += 1
        T = self.V_TMP
        k(f"""
        v_mov_b32 v{T}, -1
        v_mov_b32 v{T+1}, -1
        v_mov_b32 v{T+2}, -1
        v_mov_b32 v{T+3}, -1
        v_lshlrev_b32 v{T+8}, 4, v1
        s_lshl_b32 s56, s{S_TB}, 12
        s_add_u32 s56, s56, {WS_STAT}
        buffer_store_dwordx4 v[{T}:{T+3}], v{T+8}, s[{SRD_WS}:{SRD_WS+3}], s56 offen sc1
        buffer_store_dwordx4 v[{T}:{T+3}], v{T+8}, s[{SRD_WS}:{SRD_WS+3}], s56 offen offset:1024 sc1
        buffer_store_dwordx4 v[{T}:{T+3}], v{T+8}, s[{SRD_WS}:{SRD_WS+3}], s56 offen offset:2048 sc1
        buffer_store_dwordx4 v[{T}:{T+3}], v{T+8}, s[{SRD_WS}:{SRD_WS+3}], s56 offen offset:3072 sc1
        v_mov_b32 v{T+4}, 0
        v_mov_b32 v{T+5}, 0
        v_mov_b32 v{T+6}, 0
        v_mov_b32 v{T+7}, 0
        v_lshrrev_b32 v{T+9}, 3, v1
        v_and_b32 v{T+9}, 3, v{T+9}
        v_lshlrev_b32 v{T+9}, 15, v{T+9}
        v_and_b32 v{T+10}, 7, v1
        v_lshl_add_u32 v{T+9}, v{T+10}, 7, v{T+9}
        s_lshl_b32 s56, s{S_TB}, 10
        buffer_store_dwordx4 v[{T+4}:{T+7}], v{T+9}, s[{SRD_WS}:{SRD_WS+3}], s56 offen sc1
        L_noclear:
        """)
        k.optional -= 1
        k(f"""
        s_mul_i32 s56, s{S_TB}, {64*896}
        s_mul_i32 s57, s{S_W}, 14336
        s_mov_b32 s58, s{S_RHO}
        """)
        for i in range(14):
            k(f"""
            s_lshl_b32 s59, s58, 6
            s_add_u32 s59, s59, s56
            s_add_u32 m0, s57, {XB + i*1024}
            s_add_u32 s58, s58, 1
            """)
            self.t_x = k(f"buffer_load_dwordx4 v{self.V_XD}, s[{SRD_X}:{SRD_X+3}], s59 offen lds")
            k(f"""
            s_cmp_ge_u32 s58, 14
            s_cselect_b32 s58, 0, s58
            """)
        self.stamp("x issued")
        self.srd(SRD_WIN, 80, 448 * 1792 * 2)
        self.srd(SRD_WSP, 82, 2048 * 2048 * 2)
        self.srd(SRD_WOUT, 86, 896 * 448 * 2)
        self.srd(SRD_OUT, 88, 2048 * 448 * 2)
        self.srd(SRD_DBG, 90, 256)
        for dst, src in [(P_LOGA, 66), (P_AIM, 68), (P_CRE, 70), (P_CIM, 72), (P_LOGDT, 74), (P_DSK, 76), (P_BSP, 84)]:
            k(f"s_mov_b64 s[{dst}:{dst+1}], s[{src}:{src+1}]")
        WD = self.V_WD
        for n in range(7):
            k(f"""
            v_add_u32 v{T}, {64*n}, v1
            v_mul_u32_u24 v{T+1}, 4682, v{T}
            v_lshrrev_b32 v{T+1}, 16, v{T+1}
            v_mul_u32_u24 v{T+2}, 14, v{T+1}
            v_sub_u32 v{T+2}, v{T}, v{T+2}
            v_and_b32 v{T+3}, 0x13, v{T+1}
            v_and_b32 v{T+4}, 4, v{T+1}
            v_lshl_or_b32 v{T+3}, v{T+4}, 1, v{T+3}
            v_and_b32 v{T+4}, 8, v{T+1}
            v_lshrrev_b32 v{T+4}, 1, v{T+4}
            v_or_b32 v{T+3}, v{T+3}, v{T+4}
            v_mul_u32_u24 v{T+3}, 3584, v{T+3}
            v_lshl_add_u32 v{WD+n}, v{T+2}, 4, v{T+3}
            """)
        self.t_chunk = {}
        self.stamp("wd calc")
        self.queue_chunk(0); self.bg_flush()
        self.stamp("c0 issued")
        k(f"""
        v_and_b32 v{T}, 15, v1
        v_lshrrev_b32 v{T+1}, 4, v1
        v_lshrrev_b32 v{T+2}, 2, v{T}
        v_and_b32 v{T+2}, 2, v{T+2}
        v_xor_b32 v{T+2}, v{T+2}, v{T+1}
        v_lshl_add_u32 v{T+2}, v{T}, 2, v{T+2}
        v_lshlrev_b32 v{T+2}, 4, v{T+2}
        s_mul_i32 s57, s{S_W}, 14336
        v_add_u32 v{self.V_XR}, s57, v{T+2}
        v_lshrrev_b32 v{T+3}, 2, v1
        v_and_b32 v{T+4}, 7, v{T+3}
        v_and_b32 v{T+3}, 8, v{T+3}
        v_lshl_add_u32 v{T+3}, v{T+3}, 1, v{T+4}
        v_mul_u32_u24 v{T+3}, 224, v{T+3}
        v_and_b32 v{T+4}, 3, v1
        v_lshl_add_u32 v{self.V_TR}, v{T+4}, 3, v{T+3}
        v_add_u32 v{self.V_TR+1}, 0x10000, v{self.V_TR}
        v_add_u32 v{self.V_TR+2}, 0x20000, v{self.V_TR}
        """)
        ID = self.V_ID
        k(f"""
        v_and_b32 v{T+3}, 1, v1
        v_lshlrev_b32 v{T+3}, 4, v{T+3}
        v_mov_b32 v{T+4}, 0x3f80
        v_lshlrev_b32 v{T+3}, v{T+3}, v{T+4}
        v_lshrrev_b32 v{T+4}, 3, v{T}
        v_sub_u32 v{T+4}, v{T+1}, v{T+4}
        v_bfe_u32 v{T+5}, v1, 1, 2
        v_lshl_or_b32 v{T+4}, v{T+4}, 2, v{T+5}
        """)
        for h in range(2):
            for r in range(4):
                k(f"v_cmp_eq_u32 vcc, {h*8+r}, v{T+4}")
                k(f"v_cndmask_b32 v{ID+h*4+r}, 0, v{T+3}, vcc")
        self.queue_chunk(1); self.bg(4)
        self.stamp("c1 part issued")

    def leader_go(self):
        k = self.k
        T = self.V_S
        k(f"""
        s_or_b32 s56, s{S_FB}, s{S_W}
        s_cmp_lg_u32 s56, 0
        s_cbranch_scc1 L_nogo
        """)
        k.optional += 1
        k(f"""
        v_mov_b32 v{T}, 1
        v_mov_b32 v{T+1}, 0
        s_lshl_b32 s56, s{S_TB}, 2
        s_mov_b64 exec, 1
        buffer_store_dword v{T}, v{T+1}, s[{SRD_DBG}:{SRD_DBG+3}], s56 offen sc1
        s_mov_b64 exec, -1
        L_nogo:
        """)
        k.optional -= 1

    def queue_chunk(self, kk):
        k = self.k
        SL, SO = 94, 95
        def head():
            k(f"""
            s_add_u32 s60, s{S_W}, {4*kk}
            s_sub_u32 s61, s60, 14
            s_cmp_ge_u32 s60, 14
            s_cselect_b32 s62, s61, s60
            s_cselect_b32 s63, s{S_OFF1}, s{S_OFF2}
            s_add_u32 s62, s62, s{S_RHO}
            s_sub_u32 s61, s62, 14
            s_cmp_ge_u32 s62, 14
            s_cselect_b32 s62, s61, s62
            s_mul_i32 s62, s62, {32*3584}
            s_add_u32 s{SO}, s62, s63
            s_mul_i32 s61, s{S_W}, 7168
            s_mul_i32 s62, s{S_W}, 14336
            """)
            A = lambda c0: f"s_add_u32 s61, s61, {c0}"
            if kk <= 2:
                k(f"s_add_u32 s{SL}, s61, {W2B + 7168*4*kk}")
            elif kk == 3:
                k(f"s_add_u32 s61, s61, {W2B + 7168*12}\ns_cmp_lt_u32 s{S_W}, 2\ns_cselect_b32 s{SL}, s61, s62")
            elif kk == 4:
                k(f"s_add_u32 s61, s62, 7168\ns_cmp_lt_u32 s{S_W}, 2\ns_cselect_b32 s{SL}, s62, s61")
            elif kk == 5:
                k(f"s_add_u32 s62, s62, 7168\ns_add_u32 s61, s61, {W2B - 7168*2}\ns_cmp_lt_u32 s{S_W}, 2\ns_cselect_b32 s{SL}, s62, s61")
            else:
                k(f"s_add_u32 s{SL}, s61, {W2B + 7168*2}")
        def mk(n):
            def f():
                if n == 0: head()
                k(f"s_add_u32 m0, s{SL}, {n*1024}")
                t = k(f"buffer_load_dwordx4 v{self.V_WD+n}, s[{SRD_WIN}:{SRD_WIN+3}], s{SO} offen lds")
                if n == 6: self.t_chunk[kk] = t
            return f
        for n in range(7): self.bgq.append(mk(n))

    def xreduce_g(self, r, tmp):
        k = self.k
        k(f"""
        v_mov_b32 v{tmp}, v{r}
        v_permlane16_swap_b32 v{r}, v{tmp}
        v_add_f32 v{r}, v{r}, v{tmp}
        v_mov_b32 v{tmp}, v{r}
        v_permlane32_swap_b32 v{r}, v{tmp}
        v_add_f32 v{r}, v{r}, v{tmp}
        """)
    def rbf(self, dst, src):
        self.k(f"v_cvt_pk_bf16_f32 v{dst}, v{src}, v{src}\nv_and_b32 v{dst}, s{S_MASK}, v{dst}")

    def ln1(self):
        k = self.k
        X = self.V_X; T = self.V_TMP
        k.wait_vm(self.t_x)
        self.leader_go()
        self.stamp("x landed")
        for i in range(14):
            k(f"ds_read_b128 v[{X+4*i}:{X+4*i+3}], v{self.V_XR} offset:{XB + i*1024}")
        lg0 = k.lg - 14
        self.queue_chunk(2)
        S = T; M = T + 2; D = T + 4; Q = T + 12
        k(f"v_mov_b32 v{S}, 0\nv_mov_b32 v{S+1}, 0")
        for i in range(14):
            k.wait_lg(lg0 + i + 1)
            for j in range(4):
                k(f"v_dot2_f32_bf16 v{S + (j&1)}, v{X+4*i+j}, s{S_ONES}, v{S + (j&1)}")
            if i % 4 == 3: self.bg()
        self.stamp("ln passA")
        self.queue_chunk(3); self.queue_chunk(4)
        k(f"v_add_f32 v{S}, v{S}, v{S+1}")
        self.xreduce_g(S, S + 1)
        k(f"v_mul_f32 v{S}, {f2u(1.0/448)}, v{S}")
        self.rbf(M, S)
        k(f"v_sub_f32 v{S}, v{S}, v{M}")
        k(f"v_mov_b32 v{Q}, 0\nv_mov_b32 v{Q+1}, 0")
        for p in range(56):
            d = D + (p & 3) * 2
            k(f"""
            v_lshlrev_b32 v{d}, 16, v{X+p}
            v_and_b32 v{d+1}, s{S_MASK}, v{X+p}
            v_pk_add_f32 v[{d}:{d+1}], v[{d}:{d+1}], v[{M}:{M+1}] op_sel_hi:[1,0] neg_lo:[0,1] neg_hi:[0,1]
            v_pk_fma_f32 v[{Q}:{Q+1}], v[{d}:{d+1}], v[{d}:{d+1}], v[{Q}:{Q+1}]
            v_cvt_pk_bf16_f32 v{X+p}, v{d}, v{d+1}
            """)
            if p % 5 == 4: self.bg()
        self.stamp("ln passB")
        k(f"v_add_f32 v{Q}, v{Q}, v{Q+1}")
        self.xreduce_g(Q, Q + 1)
        k(f"v_mul_f32 v{Q}, {f2u(1.0/448)}, v{Q}")
        k(f"v_fma_f32 v{Q}, -v{S}, v{S}, v{Q}")
        k(f"v_max_f32 v{Q}, 0, v{Q}")
        self.rbf(Q, Q)
        k(f"v_add_f32 v{Q}, {f2u(1e-5)}, v{Q}")
        self.rbf(Q, Q)
        k(f"v_sqrt_f32 v{Q}, v{Q}")
        self.rbf(Q, Q)
        k(f"v_rcp_f32 v{M}, v{Q}")
        k(f"v_fma_f32 v{Q}, -v{Q}, v{M}, 1.0")
        k(f"v_fma_f32 v{M}, v{Q}, v{M}, v{M}")
        for p in range(56):
            d = D + (p & 3) * 2
            k(f"""
            v_lshlrev_b32 v{d}, 16, v{X+p}
            v_and_b32 v{d+1}, s{S_MASK}, v{X+p}
            v_pk_mul_f32 v[{d}:{d+1}], v[{d}:{d+1}], v[{M}:{M+1}] op_sel_hi:[1,0]
            v_cvt_pk_bf16_f32 v{X+p}, v{d}, v{d+1}
            """)
            if p % 5 == 4: self.bg()
        self.bg_flush()
        self.stamp("ln1 done")

    def ut_out(self):
        k = self.k
        X = self.V_X; T = self.V_TMP; ID = self.V_ID
        A = self.V_ACC
        for i in range(2):
            for h in range(2):
                k(f"v_mfma_f32_16x16x32_bf16 v[{A+(2*i+h)*4}:{A+(2*i+h)*4+3}], v[{X+4*i}:{X+4*i+3}], v[{ID+4*h}:{ID+4*h+3}], 0")
        k(f"""
        v_lshrrev_b32 v{T+8}, 5, v1
        v_mul_u32_u24 v{T+8}, 7168, v{T+8}
        v_and_b32 v{T+9}, 31, v1
        v_lshl_add_u32 v{T+8}, v{T+9}, 4, v{T+8}
        s_lshl_b32 s56, s{S_TB}, 2
        s_add_u32 s56, s56, s{S_W}
        s_mul_i32 s56, s56, {2*7168}
        s_add_u32 s56, s56, {WS_UT}
        s_lshl_b32 s57, s{S_RHO}, 9
        s_add_u32 s57, s57, s56
        s_add_u32 s58, s{S_RHO}, 1
        s_cmp_ge_u32 s58, 14
        s_cselect_b32 s58, 0, s58
        s_lshl_b32 s58, s58, 9
        s_add_u32 s58, s58, s56
        """)
        for i in range(2):
            U = T + 4 * i
            for h in range(2):
                b = A + (2*i+h)*4
                k(f"v_cvt_pk_f16_f32 v{U+2*h}, v{b}, v{b+1}")
                k(f"v_cvt_pk_f16_f32 v{U+2*h+1}, v{b+2}, v{b+3}")
            k(f"v_permlane16_swap_b32 v{U}, v{U+2}")
            k(f"v_permlane16_swap_b32 v{U+1}, v{U+3}")
            self.t_ut = k(f"buffer_store_dwordx4 v[{U}:{U+3}], v{T+8}, s[{SRD_WS}:{SRD_WS+3}], s{57+i} offen sc1")

    def tr_addr(self, off):
        return f"v{self.V_TR + (off >> 16)} offset:{off & 0xffff}"

    def gemm1(self, part):
        k = self.k
        X = self.V_X; B = self.V_B; A = self.V_ACC
        c0 = 14 * part
        def sync_group(g):
            k.wait_vm(self.t_chunk[g])
            k("s_barrier")
        def reads(c, j):
            b = B + (c & 1) * 28 + 4 * j
            base = chunk_lds(c) + 32 * j
            k(f"ds_read_b64_tr_b16 v[{b}:{b+1}], {self.tr_addr(base)}")
            return k(f"ds_read_b64_tr_b16 v[{b+2}:{b+3}], {self.tr_addr(base + 1792)}")
        tags = {}
        if part == 0:
            sync_group(0)
            self.stamp("grp0 ready")
        for j in range(7): tags[(c0, j)] = reads(c0, j)
        for i in range(14):
            c = c0 + i
            nxt = c + 1 if i < 13 else None
            if nxt is not None and nxt % 4 == 0:
                sync_group(nxt // 4)
                if nxt == 4: self.queue_chunk(5)
                if nxt == 8: self.queue_chunk(6)
            for j in range(7):
                k.wait_lg(tags[(c, j)])
                b = B + (c & 1) * 28 + 4 * j
                src = "0" if i == 0 else f"v[{A+4*j}:{A+4*j+3}]"
                if part == 0:
                    k(f"v_mfma_f32_16x16x32_bf16 v[{A+4*j}:{A+4*j+3}], v[{X+4*i}:{X+4*i+3}], v[{b}:{b+3}], {src}")
                else:
                    k(f"v_mfma_f32_16x16x32_bf16 v[{A+4*j}:{A+4*j+3}], v[{b}:{b+3}], v[{X+4*i}:{X+4*i+3}], {src}")
                if nxt is not None: tags[(nxt, j)] = reads(nxt, j)
                if j % 3 == 2: self.bg()

    def gelu_pair(self, a0, dst_pk, t):
        k = self.k
        C1, C3 = self.S_C1, self.S_C3
        k(f"""
        v_cvt_pk_bf16_f32 v{t+2}, v{a0}, v{a0+1}
        v_lshlrev_b32 v{t}, 16, v{t+2}
        v_and_b32 v{t+1}, s{S_MASK}, v{t+2}
        v_pk_mul_f32 v[{t+2}:{t+3}], v[{t}:{t+1}], v[{t}:{t+1}]
        v_pk_fma_f32 v[{t+2}:{t+3}], v[{t+2}:{t+3}], v[{C3}:{C3+1}], v[{C1}:{C1+1}]
        v_pk_mul_f32 v[{t+2}:{t+3}], v[{t+2}:{t+3}], v[{t}:{t+1}]
        v_exp_f32 v{t+2}, v{t+2}
        v_exp_f32 v{t+3}, v{t+3}
        """)
    def gelu_pair2(self, dst_pk, t):
        k = self.k
        k(f"""
        v_pk_add_f32 v[{t+2}:{t+3}], v[{t+2}:{t+3}], 1.0 op_sel_hi:[1,0]
        v_rcp_f32 v{t+2}, v{t+2}
        v_rcp_f32 v{t+3}, v{t+3}
        """)
    def gelu_pair3(self, dst_pk, t):
        k = self.k
        k(f"""
        v_pk_mul_f32 v[{t}:{t+1}], v[{t}:{t+1}], v[{t+2}:{t+3}]
        v_cvt_pk_bf16_f32 v{dst_pk}, v{t}, v{t+1}
        """)

    def gelu(self, part):
        k = self.k
        A = self.V_ACC; T = self.V_TMP
        self.S_C1 = T + 32; self.S_C3 = T + 34
        c1 = -2.0 * 0.7978845608028654 * math.log2(math.e)
        c3 = c1 * 0.044715
        k(f"v_mov_b32 v{T+32}, {f2u(c1)}\nv_mov_b32 v{T+33}, {f2u(c1)}\nv_mov_b32 v{T+34}, {f2u(c3)}\nv_mov_b32 v{T+35}, {f2u(c3)}")
        SUM = T + 24
        for p in range(0, 14, 2):
            ts = [T + 0, T + 4]
            pk = [T + 8, T + 9] if part == 0 else [self.V_Z1 + p, self.V_Z1 + p + 1]
            for q in range(2): self.gelu_pair(A + 2*(p+q), pk[q], ts[q])
            for q in range(2): self.gelu_pair2(pk[q], ts[q])
            for q in range(2): self.gelu_pair3(pk[q], ts[q])
            if part == 0:
                for q in range(2):
                    z = self.V_Z + 2*(p+q)
                    k(f"v_lshlrev_b32 v{z}, 16, v{pk[q]}\nv_and_b32 v{z+1}, s{S_MASK}, v{pk[q]}")
                    sm = SUM + 2*q; sq = SUM + 4 + 2*q
                    if p == 0:
                        k(f"v_pk_mul_f32 v[{sq}:{sq+1}], v[{z}:{z+1}], v[{z}:{z+1}]")
                        k(f"v_mov_b32 v{sm}, v{z}\nv_mov_b32 v{sm+1}, v{z+1}")
                    else:
                        k(f"v_pk_fma_f32 v[{sq}:{sq+1}], v[{z}:{z+1}], v[{z}:{z+1}], v[{sq}:{sq+1}]")
                        k(f"v_pk_add_f32 v[{sm}:{sm+1}], v[{sm}:{sm+1}], v[{z}:{z+1}]")
            self.bg()
        self.V_SUM = SUM

    def check_go(self):
        k = self.k
        T = self.V_S
        L = k.label("L_go")
        k(f"""
        v_and_b32 v{T}, 31, v1
        v_lshlrev_b32 v{T}, 2, v{T}
        s_mov_b32 s56, 0
        {L}:
        """)
        k.optional += 1
        k(f"buffer_load_dword v{T+1}, v{T}, s[{SRD_DBG}:{SRD_DBG+3}], 0 offen sc1")
        k.optional -= 1
        k(f"""
        s_waitcnt vmcnt(0)
        v_cmp_eq_u32 vcc, 0, v{T+1}
        s_add_u32 s56, s56, 1
        s_cbranch_vccz {L}_ok
        s_sleep 8
        s_cmp_lt_u32 s56, 100000
        s_cbranch_scc1 {L}
        {L}_ok:
        """)

    def set_flag(self, stage):
        k = self.k
        T = self.V_S
        k(f"""
        s_lshl_b32 s56, s{S_TB}, 3
        s_add_u32 s56, s56, s{S_FB}
        s_lshl_b32 s56, s56, 7
        s_lshl_b32 s57, s{S_W}, 2
        s_add_u32 s56, s56, s57
        s_add_u32 s56, s56, {WS_FLAG + stage*32768}
        v_mov_b32 v{T}, 0
        v_mov_b32 v{T+1}, 1
        s_mov_b64 exec, 1
        buffer_store_dword v{T+1}, v{T}, s[{SRD_WS}:{SRD_WS+3}], s56 offen sc1
        s_mov_b64 exec, -1
        """)

    def stats_publish(self):
        k = self.k
        SUM = self.V_SUM; T = self.V_TMP
        for sh in (8, 4, 2, 1):
            for r in range(8):
                k(f"v_add_f32_dpp v{SUM+r}, v{SUM+r}, v{SUM+r} row_ror:{sh} row_mask:0xf bank_mask:0xf")
        P = T
        k(f"""
        v_and_b32 v{T+8}, 1, v1
        v_cmp_eq_u32 vcc, 1, v{T+8}
        v_cndmask_b32 v{P}, v{SUM}, v{SUM+2}, vcc
        v_cndmask_b32 v{P+1}, v{SUM+4}, v{SUM+6}, vcc
        v_cndmask_b32 v{P+2}, v{SUM+1}, v{SUM+3}, vcc
        v_cndmask_b32 v{P+3}, v{SUM+5}, v{SUM+7}, vcc
        v_lshrrev_b32 v{T+9}, 4, v1
        v_lshl_add_u32 v{T+9}, v{T+9}, 1, v{T+8}
        v_lshlrev_b32 v{T+9}, 4, v{T+9}
        s_lshl_b32 s56, s{S_TB}, 2
        s_add_u32 s56, s56, s{S_W}
        s_lshl_b32 s56, s56, 10
        s_add_u32 s{S_TMP+40}, s56, {WS_STAT}
        s_lshl_b32 s57, s{S_FB}, 7
        s_add_u32 s56, s{S_TMP+40}, s57
        s_mov_b32 s58, 0x00030003
        s_mov_b32 s59, 0x00030003
        s_mov_b64 exec, s[58:59]
        buffer_store_dwordx4 v[{P}:{P+3}], v{T+9}, s[{SRD_WS}:{SRD_WS+3}], s56 offen sc1
        s_mov_b64 exec, -1
        """)

    def stats_collect_normalize(self):
        k = self.k
        T = self.V_TMP; Z = self.V_Z
        L = k.label("L_st")
        k(f"""
        v_bfe_u32 v{T+8}, v1, 1, 3
        v_lshlrev_b32 v{T+8}, 7, v{T+8}
        v_lshrrev_b32 v{T+9}, 4, v1
        v_lshl_add_u32 v{T+8}, v{T+9}, 5, v{T+8}
        v_and_b32 v{T+9}, 1, v1
        v_lshl_add_u32 v{T+8}, v{T+9}, 4, v{T+8}
        s_lshl_b32 s56, s{S_TB}, 2
        s_add_u32 s56, s56, s{S_W}
        s_lshl_b32 s56, s56, 10
        s_add_u32 s57, s56, {WS_STAT}
        s_mov_b32 s56, 0
        {L}:
        """)
        k.optional += 1
        k(f"buffer_load_dwordx4 v[{T}:{T+3}], v{T+8}, s[{SRD_WS}:{SRD_WS+3}], s57 offen sc1")
        k.optional -= 1
        k(f"""
        s_waitcnt vmcnt(0)
        v_max3_u32 v{T+4}, v{T}, v{T+1}, v{T+2}
        v_max_u32 v{T+4}, v{T+4}, v{T+3}
        v_cmp_eq_u32 vcc, -1, v{T+4}
        s_add_u32 s56, s56, 1
        s_cbranch_vccz {L}_ok
        s_sleep 1
        s_cmp_lt_u32 s56, 100000
        s_cbranch_scc1 {L}
        {L}_ok:
        """)
        self.stamp("stats in")
        for sh in (8, 4, 2):
            for r in range(4):
                k(f"v_add_f32_dpp v{T+r}, v{T+r}, v{T+r} row_ror:{sh} row_mask:0xf bank_mask:0xf")
        inv = f2u(1.0 / 896)
        for (sm, sq) in ((T, T+1), (T+2, T+3)):
            k(f"v_mul_f32 v{sm}, {inv}, v{sm}")
            k(f"v_mul_f32 v{sq}, {inv}, v{sq}")
            k(f"v_fma_f32 v{sq}, -v{sm}, v{sm}, v{sq}")
            k(f"v_max_f32 v{sq}, 0, v{sq}")
        k(f"v_cvt_pk_bf16_f32 v{T+4}, v{T}, v{T+2}")
        k(f"v_cvt_pk_bf16_f32 v{T+5}, v{T+1}, v{T+3}")
        k(f"v_lshlrev_b32 v{T}, 16, v{T+5}\nv_and_b32 v{T+1}, s{S_MASK}, v{T+5}")
        k(f"v_add_f32 v{T}, {f2u(1e-5)}, v{T}\nv_add_f32 v{T+1}, {f2u(1e-5)}, v{T+1}")
        k(f"v_cvt_pk_bf16_f32 v{T+5}, v{T}, v{T+1}")
        k(f"v_lshlrev_b32 v{T}, 16, v{T+5}\nv_and_b32 v{T+1}, s{S_MASK}, v{T+5}")
        k(f"v_sqrt_f32 v{T}, v{T}\nv_sqrt_f32 v{T+1}, v{T+1}")
        k(f"v_cvt_pk_bf16_f32 v{T+5}, v{T}, v{T+1}")
        k(f"v_mov_b32_dpp v{T+6}, v{T+4} quad_perm:[0,0,2,2] row_mask:0xf bank_mask:0xf")
        k(f"v_mov_b32_dpp v{T+7}, v{T+4} quad_perm:[1,1,3,3] row_mask:0xf bank_mask:0xf")
        k(f"v_mov_b32_dpp v{T+8}, v{T+5} quad_perm:[0,0,2,2] row_mask:0xf bank_mask:0xf")
        k(f"v_mov_b32_dpp v{T+9}, v{T+5} quad_perm:[1,1,3,3] row_mask:0xf bank_mask:0xf")
        M = T + 12; R = T + 16; SD = T + 20
        for h in range(2):
            k(f"v_lshlrev_b32 v{M+2*h}, 16, v{T+6+h}\nv_and_b32 v{M+2*h+1}, s{S_MASK}, v{T+6+h}")
            k(f"v_lshlrev_b32 v{SD+2*h}, 16, v{T+8+h}\nv_and_b32 v{SD+2*h+1}, s{S_MASK}, v{T+8+h}")
        for r in range(4): k(f"v_rcp_f32 v{R+r}, v{SD+r}")
        for r in range(4): k(f"v_fma_f32 v{SD+r}, -v{SD+r}, v{R+r}, 1.0")
        for r in range(4): k(f"v_fma_f32 v{R+r}, v{SD+r}, v{R+r}, v{R+r}")
        P = self.V_B
        for p in range(14):
            z = Z + 2*p; h = p & 1
            k(f"""
            v_pk_add_f32 v[{z}:{z+1}], v[{z}:{z+1}], v[{M+2*h}:{M+2*h+1}] neg_lo:[0,1] neg_hi:[0,1]
            v_cvt_pk_bf16_f32 v{z+1}, v{z}, v{z+1}
            v_lshlrev_b32 v{z}, 16, v{z+1}
            v_and_b32 v{z+1}, s{S_MASK}, v{z+1}
            v_pk_mul_f32 v[{z}:{z+1}], v[{z}:{z+1}], v[{R+2*h}:{R+2*h+1}]
            v_cvt_pk_bf16_f32 v{P+p}, v{z}, v{z+1}
            """)
        k(f"v_mov_b32 v{P+14}, v{P+12}\nv_mov_b32 v{P+15}, v{P+13}")
        k(f"""
        v_bfe_u32 v{T}, v1, 4, 1
        v_lshlrev_b32 v{T}, 10, v{T}
        v_lshrrev_b32 v{T+1}, 5, v1
        v_lshlrev_b32 v{T+1}, 8, v{T+1}
        v_and_b32 v{T+2}, 15, v1
        v_lshl_add_u32 v{T+1}, v{T+2}, 4, v{T+1}
        v_add_u32 v{T}, v{T}, v{T+1}
        s_xor_b32 s56, s{S_FB}, 1
        s_lshl_b32 s56, s56, 6
        s_lshl_b32 s57, s{S_TB}, 1
        s_add_u32 s56, s56, s57
        s_lshr_b32 s57, s{S_W}, 1
        s_add_u32 s56, s56, s57
        s_mul_i32 s56, s56, 7168
        s_and_b32 s57, s{S_W}, 1
        s_lshl_b32 s57, s57, 9
        s_add_u32 s56, s56, s57
        s_add_u32 s56, s56, {WS_Z}
        s_add_u32 s57, s56, 4096
        """)
        for pr in range(4):
            u = P + 4*pr
            k(f"v_permlane16_swap_b32 v{u}, v{u+2}")
            k(f"v_permlane16_swap_b32 v{u+1}, v{u+3}")
            va = T if pr < 3 else T + 1
            so = 56 if pr < 2 else 57
            self.t_z = k(f"buffer_store_dwordx4 v[{u}:{u+3}], v{va}, s[{SRD_WS}:{SRD_WS+3}], s{so} offen offset:{(pr&1)*2048} sc1")

    def build(self):
        k = self.k
        self.prologue()
        self.ln1()
        if self.stop == "ln1":
            self.dump(list(range(self.V_X, self.V_X + 56)), 0); return self.finish()
        self.ut_out()
        self.gemm1(0)
        self.stamp("gemm z2")
        if self.stop == "gemm0":
            self.dump(list(range(self.V_ACC, self.V_ACC + 28)), 0); return self.finish()
        self.gelu(0)
        self.bg_flush()
        self.stamp("gelu z2")
        self.check_go()
        self.stamp("go")
        self.stats_publish()
        self.set_flag(0)
        self.stamp("stats out")
        self.gemm1(1)
        self.stamp("gemm z1")
        self.gelu(1)
        self.stamp("gelu z1")
        self.stats_collect_normalize()
        self.stamp("z2 stored")
        k("s_waitcnt vmcnt(0)")
        self.set_flag(1)
        self.stamp("z2 out")
        if self.stop == "p1":
            self.dump(list(range(self.V_Z1, self.V_Z1 + 14)), 0); return self.finish()
        self.finish()

HEADER_IN = open("recurrent_scan__ssm_conv_s4d__mixer_gmlp__prompt.s.ref").read().split("; Override")[0]

def generate(stop=None, stamps=False, name=NAME):
    g = Gen(stop, stamps)
    g.build()
    body = g.k.finalize()
    txt = HEADER_IN
    txt += f"; @launch grid=(256,1,1) block=(256,1,1) lds=163840\n"
    txt += '.amdgcn_target "amdgcn-amd-amdhsa--gfx950"\n.text\n'
    txt += f".globl {name}\n.p2align 8\n.type {name},@function\n{name}:\n"
    txt += body
    txt += "L_exit:\n    s_endpgm\nL_code_end:\n"
    txt += f".set CODE_BYTES, L_code_end - {name}\n"
    txt += f""".section .rodata,"a"
.p2align 6
.amdhsa_kernel {name}
  .amdhsa_next_free_vgpr 512
  .amdhsa_next_free_sgpr 102
  .amdhsa_accum_offset 256
  .amdhsa_group_segment_fixed_size 0
  .amdhsa_kernarg_size 120
  .amdhsa_user_sgpr_count 2
  .amdhsa_user_sgpr_kernarg_segment_ptr 1
  .amdhsa_system_sgpr_workgroup_id_x 1
  .amdhsa_float_denorm_mode_32 3
.end_amdhsa_kernel
"""
    return txt, g

if __name__ == "__main__":
    stop = sys.argv[1] if len(sys.argv) > 1 and sys.argv[1] != "-" else None
    out = sys.argv[2] if len(sys.argv) > 2 else "k.s"
    txt, g = generate(stop, stamps=len(sys.argv) > 3)
    open(out, "w").write(txt)
    print("nops inserted", g.k.n_nops, "instr", sum(1 for i in g.k.ins if i.kind != "meta"))
```

```python
import sys, math, struct
sys.path.insert(0, "work")
from kg import *

NAME = "recurrent_scan__ssm_conv_s4d__mixer_gmlp__prompt_kernel"
def f2u(x): return struct.unpack("<I", struct.pack("<f", x))[0]
LOG2E = math.log2(math.e)

WS_FLAG = 0x0
WS_STAT = 0x40000
WS_UT   = 0x100000
WS_Z    = 0x400000
WS_ST   = 0x800000
WS_H    = 0xC00000
WS_XN   = 0x1000000
WS_DBG  = 0x2000000
WS_SIZE = 0x10000000

S_WG = 2; S_W = 3; S_TB = 4; S_FB = 5; S_RHO = 6; S_RHO2 = 7
SRD_X = 8; SRD_WIN = 12; SRD_WSP = 16; SRD_WOUT = 20; SRD_WS = 24; SRD_OUT = 28; SRD_DBG = 32
S_CO = 36
S_XL = 44
S_W7 = 45
S_CP = 46; S_F4 = 47
S_TB3 = 48; S_DB = 49
S_T0 = 50
S_XO = 52; S_XB = 53
S_MASK = 54
S_ONES = 55
S_XF = 100
S_WB = 94; S_WO = 95; S_XE = 96; S_FL = 97

RB = 0
RA = 57344
SP = RA + 14 * 7168
UC = RA
UCP = 4160
UCH = 8 * UCP
KX = UC + 2 * UCH
KXP = 4608
KC = KX + 2 * KXP
CRED = 139264
assert CRED >= KC + 2048
X2 = RA
X3 = RA
SX = RA + 16384
assert CRED + 16384 <= SP

class Gen:
    V_XD = 2; V_XR = 4; V_WD = 6; V_TR = 13; V_T = 15
    V_X = 16; V_B = 72; V_TMP = 88; V_ACC = 128; V_Z = 156; V_ID = 184
    V_PAR = 192; V_U = 192; V_KP = 200; V_P = 206
    V_S = 212; V_WR = 220; V_WV = 224
    V_G = 228; V_GD = 229; V_XS = 234
    V_YS = 230; V_DS = 231; V_BSP = 232; V_L16 = 233
    V_DT = 238; V_STAMP = 239; V_Z1 = 240

    def __init__(self, stop=None, stamps=False, opt=None):
        self.k = K()
        self.stop = stop
        self.stamps = stamps
        self.opt = opt or {}
        self.nstamp = 0
        self.stamp_names = []
        self.q = []
        self.ev = []
        self.pace = 64
        self.next_bg = 0
        self.w_on = False
        self.k.bg_hook = self.bg_hook
        self.t_chunk = {}

    def bg_hook(self):
        k = self.k
        if k.est < self.next_bg: return
        if self.ev and k.est >= self.ev[0][0]:
            g = self.ev.pop(0)[1]()
            self.next_bg = k.est + (g if g is not None else 32)
            return
        if self.q:
            if k.est < getattr(self.q[0], "nb", 0): return
            f = self.q.pop(0)
            g = f()
            self.next_bg = k.est + (g if g is not None else self.pace)
        elif self.w_on:
            g = self.w_step()
            if g: self.next_bg = k.est + g
    def at(self, f, nb):
        f.nb = nb
        self.q.append(f)
    def bg_flush(self):
        self.k.in_bg += 1
        while self.ev: self.ev.pop(0)[1]()
        while self.q: self.q.pop(0)()
        self.k.in_bg -= 1
    def stamp(self, name):
        if not self.stamps: return
        k = self.k
        with k.atomic():
            k(f"""
            s_memtime s[98:99]
            s_waitcnt lgkmcnt(0)
            s_sub_u32 s98, s98, s{S_T0}
            v_writelane_b32 v{self.V_STAMP}, s98, {self.nstamp}
            """)
        self.stamp_names.append(name)
        self.nstamp += 1
    def srd(self, dst, src, nbytes):
        self.k(f"""
        s_mov_b64 s[{dst}:{dst+1}], s[{src}:{src+1}]
        s_mov_b32 s{dst+2}, {nbytes}
        s_mov_b32 s{dst+3}, 0x20000
        """)
    def dump(self, regs, slot, file="v"):
        k = self.k
        n = len(regs)
        k.nobg += 1
        k(f"""
        s_lshl_b32 s98, s{S_WG}, 2
        s_add_u32 s98, s98, s{S_W}
        s_mul_i32 s98, s98, {n*256}
        s_add_u32 s98, s98, {WS_DBG + slot * 0x1000000}
        v_lshlrev_b32 v{self.V_DT}, 2, v1
        """)
        for i, r in enumerate(regs):
            k(f"buffer_store_dword {file}{r}, v{self.V_DT}, s[{SRD_WS}:{SRD_WS+3}], s98 offen")
            k("s_add_u32 s98, s98, 256")
        k.nobg -= 1
    def finish(self):
        k = self.k
        self.w_on = False; self.q = []
        if self.stamps:
            self.dump([self.V_STAMP], 7)
        k("s_endpgm")
    def xreduce_g(self, r, tmp):
        self.k(f"""
        v_mov_b32 v{tmp}, v{r}
        v_permlane16_swap_b32 v{r}, v{tmp}
        v_add_f32 v{r}, v{r}, v{tmp}
        v_mov_b32 v{tmp}, v{r}
        v_permlane32_swap_b32 v{r}, v{tmp}
        v_add_f32 v{r}, v{r}, v{tmp}
        """)
    def rbf(self, dst, src):
        self.k(f"v_cvt_pk_bf16_f32 v{dst}, v{src}, v{src}\nv_and_b32 v{dst}, s{S_MASK}, v{dst}")

    def poll_issue(self, addr_v, dst_v, srd=SRD_WS, soff="0"):
        t = self.k(f"buffer_load_dword v{dst_v}, v{addr_v}, s[{srd}:{srd+3}], {soff} offen sc1")
        return (t, addr_v, dst_v, srd, soff)
    def poll_check(self, h, sleep=1, sc=56, old='0', bump=False):
        k = self.k
        t, addr_v, dst_v, srd, soff = h
        L = k.label("L_poll")
        with k.atomic():
            k.wait_vm(t)
            k(f"""
            v_cmp_eq_u32 vcc, {old}, v{dst_v}
            s_cbranch_vccz {L}_ok
            """)
            with k.branch():
                k(f"""
                s_mov_b32 s{sc}, 0
                {L}:
                buffer_load_dword v{dst_v}, v{addr_v}, s[{srd}:{srd+3}], {soff} offen sc1
                s_add_u32 s{sc}, s{sc}, 1
                s_waitcnt vmcnt(0)
                v_cmp_eq_u32 vcc, {old}, v{dst_v}
                s_cbranch_vccz {L}_ok
                {self.bump_txt() if bump else ''}
                s_sleep {sleep}
                s_cmp_lt_u32 s{sc}, 100000
                s_cbranch_scc1 {L}
                """)
            k(f"{L}_ok:")
    def set_flag(self, soff_expr_setup, sreg):
        k = self.k
        T = self.V_S
        k(soff_expr_setup + f"""
        v_mov_b32 v{T+6}, 0
        v_mov_b32 v{T+7}, 1
        s_mov_b64 exec, 1
        buffer_store_dword v{T+7}, v{T+6}, s[{SRD_WS}:{SRD_WS+3}], s{sreg} offen sc1
        s_mov_b64 exec, -1
        """)
    def flag(self, stage):
        if stage == 0: self.set_flag("", S_FL)
        else: self.set_flag(f"s_add_u32 s56, s{S_FL}, {stage*32768}\n", 56)

    def prologue(self):
        k = self.k
        T = self.V_TMP; P = self.V_PAR; XD = self.V_XD; X = self.V_X; XS = self.V_XS
        k.nobg += 1
        k(f"""
        s_cmp_ge_u32 s2, 256
        s_cbranch_scc1 L_exit
        s_load_dwordx16 s[64:79], s[0:1], 0
        s_load_dwordx8 s[80:87], s[0:1], 64
        s_load_dwordx4 s[88:91], s[0:1], 96
        s_load_dwordx2 s[92:93], s[0:1], 112
        """)
        if self.stamps:
            k(f"s_memtime s[{S_T0}:{S_T0+1}]")
            k(f"v_mov_b32 v{self.V_STAMP}, 0")
        k(f"""
        s_getpc_b64 s[56:57]
        s_and_b32 s56, s56, 0xffffff00
        s_mov_b32 s58, CODE_BYTES
        s_mov_b32 s59, 0x20000
        s_lshr_b32 s61, s2, 3
        s_lshl_b32 s60, s61, 11
        v_lshl_add_u32 v{T}, v0, 3, s60
        buffer_load_dwordx2 v[{self.V_S}:{self.V_S+1}], v{T}, s[56:59], 0 offen
        v_lshrrev_b32 v{T+1}, 6, v0
        v_and_b32 v1, 63, v0
        v_readfirstlane_b32 s{S_W}, v{T+1}
        s_and_b32 s60, s2, 7
        s_sub_u32 s62, s61, 4
        s_cmp_ge_u32 s61, 28
        s_cselect_b32 s62, s62, s61
        s_mul_i32 s63, s60, 28
        s_add_u32 s{S_CP}, s63, s62
        s_lshl_b32 s62, s{S_CP}, 10
        v_lshl_add_u32 v{T+2}, v0, 2, s62
        v_xor_b32 v{T+3}, 256, v{T+2}
        v_lshrrev_b32 v{T+4}, 7, v0
        s_lshl_b32 s62, s{S_CP}, 2
        v_lshl_add_u32 v{T+4}, v{T+4}, 1, s62
        s_lshr_b32 s62, s60, 1
        s_lshl_b32 s62, s62, 3
        s_and_b32 s63, s61, 7
        s_add_u32 s{S_TB}, s62, s63
        s_and_b32 s62, s60, 1
        s_lshr_b32 s{S_RHO2}, s61, 3
        s_lshl2_add_u32 s{S_FB}, s62, s{S_RHO2}
        s_lshl1_add_u32 s{S_RHO2}, s{S_RHO2}, s63
        s_add_u32 s{S_RHO}, s{S_RHO2}, s62
        s_sub_u32 s62, s{S_RHO}, 7
        s_min_u32 s{S_RHO}, s{S_RHO}, s62
        s_sub_u32 s62, s{S_RHO}, 7
        s_min_u32 s{S_RHO}, s{S_RHO}, s62
        s_and_b32 s{S_RHO2}, s{S_RHO2}, 7
        s_lshl_b32 s{S_RHO2}, s{S_RHO2}, 1
        v_lshrrev_b32 v{T+5}, 5, v0
        v_mul_u32_u24 v{XD}, 896, v{T+5}
        v_and_b32 v{T+7}, 31, v1
        v_min_u32 v{T+7}, 27, v{T+7}
        v_lshl_add_u32 v{XD}, v{T+7}, 5, v{XD}
        s_lshl3_add_u32 s{S_FL}, s{S_TB}, s{S_FB}
        s_mul_i32 s{S_XO}, s{S_FL}, {8*896}
        s_mov_b32 s{SRD_X+2}, {2048*448*2}
        s_mov_b32 s{SRD_X+3}, 0x20000
        s_mov_b32 s{SRD_WS+2}, {WS_SIZE}
        s_mov_b32 s{SRD_WS+3}, 0x20000
        v_lshlrev_b32 v{self.V_L16}, 4, v1
        v_bfe_u32 v{XS}, v1, 2, 1
        v_lshlrev_b32 v{XS}, 7, v{XS}
        v_and_b32 v{XS+1}, 3, v1
        v_lshl_add_u32 v{XS}, v{XS+1}, 2, v{XS}
        s_lshl2_add_u32 s{S_XF}, s{S_TB}, s{S_W}
        s_lshl_b32 s{S_XF}, s{S_XF}, 8
        s_add_u32 s{S_XF}, s{S_XF}, {4*32768}
        s_waitcnt lgkmcnt(0)
        s_mov_b64 s[{SRD_X}:{SRD_X+1}], s[64:65]
        s_mov_b64 s[{SRD_WS}:{SRD_WS+1}], s[92:93]
        buffer_load_dword v{XS+1}, v{XS}, s[{SRD_WS}:{SRD_WS+3}], s{S_XF} offen sc1
        buffer_load_dwordx4 v[{X}:{X+3}], v{XD}, s[{SRD_X}:{SRD_X+3}], s{S_XO} offen
        """)
        self.t_x = k(f"buffer_load_dwordx4 v[{X+4}:{X+7}], v{XD}, s[{SRD_X}:{SRD_X+3}], s{S_XO} offen offset:16")
        k(f"""
        global_load_dword v{P}, v{T+2}, s[66:67]
        global_load_dword v{P+1}, v{T+2}, s[68:69]
        global_load_dword v{P+2}, v{T+2}, s[70:71]
        global_load_dword v{P+3}, v{T+2}, s[72:73]
        global_load_dword v{P+4}, v{T+3}, s[70:71]
        global_load_dword v{P+5}, v{T+3}, s[72:73]
        global_load_ushort v{P+6}, v{T+4}, s[74:75]
        """)
        self.t_par = k(f"global_load_ushort v{P+7}, v{T+4}, s[76:77]")
        self.stamp("x issued")
        self.srd(SRD_WIN, 80, 448 * 1792 * 2)
        self.srd(SRD_DBG, 90, 256)
        if self.opt.get("wing", 1): self.win_gather()
        self.stamp("wing")
        self.srd(SRD_WSP, 82, 2048 * 2048 * 2)
        self.srd(SRD_WOUT, 86, 896 * 448 * 2)
        self.srd(SRD_OUT, 88, 2048 * 448 * 2)
        k(f"""
        s_mul_i32 s{S_XL}, s{S_W}, 14336
        s_mov_b32 s{S_MASK}, 0xffff0000
        s_mov_b32 s{S_ONES}, 0x3f803f80
        s_cmp_ge_u32 s2, 224
        s_cselect_b32 s{S_F4}, s2, s{S_CP}
        s_lshl_b32 s{S_FL}, s{S_FL}, 7
        s_lshl2_add_u32 s{S_FL}, s{S_W}, s{S_FL}
        s_and_b32 s56, s61, 3
        s_lshl2_add_u32 s{S_TB3}, s60, s56
        s_lshr_b32 s{S_DB}, s61, 2
        s_mul_i32 s{S_W7}, s{S_W}, 7168
        s_add_u32 s{S_W7}, s{S_W7}, {RA}
        s_lshl_b32 s56, s{S_TB}, 7
        s_lshl_b32 s57, s{S_W}, 5
        s_add_u32 s56, s56, s57
        v_and_b32 v{T}, 15, v1
        v_lshl_add_u32 v{T+2}, v{T}, 1, s56
        global_load_ushort v{self.V_BSP}, v{T+2}, s[84:85]
        v_lshlrev_b32 v{XD+1}, 9, v{T+7}
        v_lshl_add_u32 v{XD+1}, v{T+5}, 4, v{XD+1}
        s_lshr_b32 s56, s{S_FB}, 1
        s_lshl2_add_u32 s56, s{S_TB}, s56
        s_mul_i32 s56, s56, 14336
        s_and_b32 s57, s{S_FB}, 1
        s_lshl_b32 s57, s57, 7
        s_add_u32 s56, s56, s57
        s_add_u32 s{S_XO}, s56, {WS_XN}
        s_lshl2_add_u32 s56, s{S_TB}, s{S_W}
        s_mul_i32 s56, s56, 14336
        s_add_u32 s{S_XB}, s56, {WS_XN}
        s_add_u32 s{S_XE}, s{S_XB}, 14336
        v_lshrrev_b32 v{T+6}, 4, v1
        v_and_b32 v{T+7}, 7, v1
        v_xor_b32 v{T+6}, v{T+6}, v{T+7}
        """)
        k(f"""
        s_mul_i32 s60, s{S_FB}, 224
        s_xor_b32 s61, s{S_FB}, 1
        s_mul_i32 s61, s61, 224
        s_add_u32 s61, s61, 1792
        s_and_b32 s62, s{S_W}, 1
        s_mul_i32 s62, s62, {32*3584}
        s_add_u32 s60, s60, s62
        s_add_u32 s61, s61, s62
        s_lshr_b32 s62, s{S_W}, 1
        s_add_u32 s62, s62, s{S_RHO}
        """)
        for c0, dsts in ((0, (0, 4)), (4, (1, 5)), (8, (2, 6)), (12, (3, 7))):
            k(f"""
            s_add_u32 s56, s62, {c0 >> 1}
            s_sub_u32 s57, s56, 7
            s_min_u32 s56, s56, s57
            s_mul_i32 s56, s56, {64*3584}
            """)
            if dsts[0] is not None: k(f"s_add_u32 s{S_CO+dsts[0]}, s56, s61")
            if dsts[1] is not None: k(f"s_add_u32 s{S_CO+dsts[1]}, s56, s60")
        WD = self.V_WD
        for n in range(7):
            k(f"""
            v_add_u32 v{T}, {64*n}, v1
            v_mul_u32_u24 v{T+1}, 4682, v{T}
            v_lshrrev_b32 v{T+1}, 16, v{T+1}
            v_mul_u32_u24 v{T+2}, 14, v{T+1}
            v_sub_u32 v{T+2}, v{T}, v{T+2}
            v_and_b32 v{T+3}, 0x13, v{T+1}
            v_and_b32 v{T+4}, 4, v{T+1}
            v_lshl_or_b32 v{T+3}, v{T+4}, 1, v{T+3}
            v_and_b32 v{T+4}, 8, v{T+1}
            v_lshrrev_b32 v{T+4}, 1, v{T+4}
            v_or_b32 v{T+3}, v{T+3}, v{T+4}
            v_mul_u32_u24 v{T+3}, 3584, v{T+3}
            v_lshl_add_u32 v{WD+n}, v{T+2}, 4, v{T+3}
            """)
            if n & 3: k(f"v_subrev_u32 v{WD+n}, {(n&3)*1024}, v{WD+n}")
        XR = self.V_XR; WR = self.V_WR; WV = self.V_WV
        k(f"""
        v_and_b32 v{T}, 15, v1
        v_lshrrev_b32 v{T+1}, 4, v1
        v_lshrrev_b32 v{T+2}, 1, v{T}
        v_xor_b32 v{T+2}, v{T+1}, v{T+2}
        v_lshlrev_b32 v{T+3}, 7, v{T}
        v_lshl_add_u32 v{T+2}, v{T+2}, 4, v{T+3}
        v_add_u32 v{XR}, s{S_XL}, v{T+2}
        v_xor_b32 v{XR+1}, 64, v{XR}
        s_and_b32 s56, s{S_W}, 1
        s_lshl_b32 s56, s56, 11
        s_xor_b32 s57, s56, 2048
        v_add_u32 v{WR}, s56, v{XR}
        v_add_u32 v{WR+1}, s56, v{XR+1}
        v_add_u32 v{WR+2}, s57, v{XR}
        v_add_u32 v{WR+3}, s57, v{XR+1}
        v_lshrrev_b32 v{T+3}, 3, v1
        v_lshlrev_b32 v{T+3}, 12, v{T+3}
        v_lshl_add_u32 v{WV}, v{T+6}, 4, v{T+3}
        v_xor_b32 v{WV+1}, 64, v{WV}
        v_add_u32 v{WV+1}, {8*4096 - 1024}, v{WV+1}
        v_add_u32 v{WV+2}, {16*4096 - 2048}, v{WV}
        v_add_u32 v{WV+3}, {16*4096 - 2048}, v{WV+1}
        s_lshl_b32 s{S_WB}, s{S_TB}, 18
        s_lshl_b32 s56, s{S_W}, 10
        s_add_u32 s{S_WB}, s{S_WB}, s56
        s_lshr_b32 s56, s{S_W}, 1
        s_lshl_b32 s56, s56, 17
        s_add_u32 s{S_WB}, s{S_WB}, s56
        v_lshlrev_b32 v{self.V_G}, {self.opt.get('wg_sh', 7)}, v1
        s_and_b32 s56, s{S_FB}, 3
        s_lshl2_add_u32 s56, s{S_TB}, s56
        s_lshl2_add_u32 s56, s56, s{S_W}
        s_lshl_b32 s{S_WO}, s56, 14
        v_lshrrev_b32 v{T+3}, 2, v1
        v_and_b32 v{T+4}, 7, v{T+3}
        v_and_b32 v{T+3}, 8, v{T+3}
        v_lshl_add_u32 v{T+3}, v{T+3}, 1, v{T+4}
        v_mul_u32_u24 v{T+3}, 224, v{T+3}
        v_and_b32 v{T+4}, 3, v1
        v_lshl_add_u32 v{T+3}, v{T+4}, 3, v{T+3}
        v_add_u32 v{self.V_TR}, {RA}, v{T+3}
        v_add_u32 v{self.V_TR+1}, {RA + 0x10000}, v{T+3}
        """)
        ID = self.V_ID
        k(f"""
        v_and_b32 v{T+3}, 1, v1
        v_lshlrev_b32 v{T+3}, 4, v{T+3}
        v_mov_b32 v{T+4}, 0x3f80
        v_lshlrev_b32 v{T+3}, v{T+3}, v{T+4}
        v_lshrrev_b32 v{T+4}, 3, v{T}
        v_sub_u32 v{T+4}, v{T+1}, v{T+4}
        v_bfe_u32 v{T+5}, v1, 1, 2
        v_lshl_or_b32 v{T+4}, v{T+4}, 2, v{T+5}
        """)
        for h in range(2):
            for r in range(4):
                k(f"v_cmp_eq_u32 vcc, {h*8+r}, v{T+4}")
                k(f"v_cndmask_b32 v{ID+h*4+r}, 0, v{T+3}, vcc")
        k.nobg -= 1
        self.w_g = 0; self.w_i = 0; self.w_r = 0; self.w_tag = {}; self.w_rtag = {}; self.w_time = {}
        self.stamp("setup done")

    def xn_pair(self, j):
        k = self.k
        X = self.V_X + 8 * j
        if j == 0:
            k(f"s_lshl_b32 s{S_XO}, s{S_RHO}, 11\ns_add_u32 s{S_XO}, s{S_XO}, s{S_XB}")
        k(f"buffer_load_dwordx4 v[{X}:{X+3}], v{self.V_L16}, s[{SRD_WS}:{SRD_WS+3}], s{S_XO} offen sc1")
        self.t_xn[j] = k(f"buffer_load_dwordx4 v[{X+4}:{X+7}], v{self.V_L16}, s[{SRD_WS}:{SRD_WS+3}], s{S_XO} offen offset:1024 sc1")
        if j < 6:
            k(f"""
            s_add_u32 s{S_XO}, s{S_XO}, 2048
            s_cmp_eq_u32 s{S_XO}, s{S_XE}
            s_cselect_b32 s{S_XO}, s{S_XB}, s{S_XO}
            """)
        return self.opt.get("xn_gap", 100)

    def queue_chunk(self, part, b, slot0, half=False):
        k = self.k
        so = S_CO + 4 * part + b
        def dma(n):
            if (n & 3) == 0: k(f"s_add_u32 m0, s{S_W7}, {slot0*7168 + n*1024}")
            return k(f"buffer_load_dwordx4 v{self.V_WD+n}, s[{SRD_WIN}:{SRD_WIN+3}], s{so} offen offset:{(n&3)*1024} lds")
        if half:
            def grp(ns):
                L = k.label("L_hc")
                k(f"s_cmp_ge_u32 s{S_W}, 2\ns_cbranch_scc1 {L}")
                with k.branch():
                    for n in ns: dma(n)
                k(f"{L}:")
                self.t_chunk[(part, b)] = None
                self.vm_at_half = k.vm
                return int(len(ns) * self.pace * 0.75)
            for ns in (range(4), range(4, 7)):
                f = lambda ns=ns: grp(ns)
                f.cb = (part, b); self.q.append(f)
        else:
            def pr(ns):
                k(f"s_add_u32 m0, s{S_W7}, {slot0*7168 + (ns[0] & 4)*1024}")
                for n in ns:
                    t = k(f"buffer_load_dwordx4 v{self.V_WD+n}, s[{SRD_WIN}:{SRD_WIN+3}], s{so} offen offset:{(n&3)*1024} lds")
                self.t_chunk[(part, b)] = t
                return int(len(ns) * self.pace * 1.5)
            for ns in ((0, 1), (2, 3), (4, 5), (6,)):
                f = lambda ns=ns: pr(ns)
                f.cb = (part, b); self.q.append(f)

    def w_step(self, force=False):
        k = self.k
        lat_cold = self.opt.get("w_lat_cold", 700); lat = self.opt.get("w_lat", 700)
        g = self.w_r
        if g < 16 and g < self.w_g and (force or k.est >= self.w_time[g] + (lat_cold if g < 4 else lat)):
            p = g >> 1; tp = g & 1
            k.wait_vm(self.w_tag[g])
            for t2 in range(2):
                for par in range(2):
                    slot = 2*p + par; tau = 2*tp + t2
                    ar = (slot * 4 + tau) * 4
                    t = k(f"ds_read_b128 a[{ar}:{ar+3}], v{self.V_WR+par+2*t2} offset:{RB + (g % 3) * 4096}")
            self.w_rtag[g] = t
            self.w_r += 1
            return 24
        g = self.w_g
        if g >= 16 or g - self.w_r >= 3: return 0
        i = self.w_i
        if i == 0:
            if g >= 3: k.wait_lg(self.w_rtag[g - 3])
            if (g & 1) == 0:
                k(f"""
                s_add_u32 s{S_WO}, s{S_RHO2}, {g}
                s_and_b32 s{S_WO}, s{S_WO}, 15
                s_lshl_b32 s{S_WO}, s{S_WO}, 6
                s_add_u32 s{S_WO}, s{S_WO}, s{S_WB}
                """)
            else:
                k(f"s_xor_b32 s{S_WO}, s{S_WO}, {32*4096}")
        k(f"s_add_u32 m0, s{S_XL}, {RB + (g % 3) * 4096}")
        for ii in (i, i + 1):
            t = k(f"buffer_load_dwordx4 v{self.V_WV+ii}, s[{SRD_WSP}:{SRD_WSP+3}], s{S_WO} offen offset:{ii*1024} lds")
        self.w_i += 2
        if self.w_i == 4:
            self.w_i = 0
            self.w_tag[g] = t; self.w_time[g] = k.est
            self.w_g += 1
        return 2 * self.pace
    def w_gather(self, g):
        k = self.k
        if g: k(f"s_add_u32 s{S_WO}, s{S_WO}, {64 << self.opt.get('wg_sh', 7)}")
        k(f"buffer_load_dword v{self.V_GD}, v{self.V_G}, s[{SRD_WSP}:{SRD_WSP+3}], s{S_WO} offen")
        return self.opt.get("wg_gap", 128)
    def wout_gather(self):
        k = self.k
        G = self.V_P
        k(f"""
        v_min_u32 v{G}, 55, v1
        v_mul_u32_u24 v{G}, 896, v{G}
        s_and_b32 s90, s{S_TB3}, 3
        s_lshl2_add_u32 s90, s{S_W}, s90
        s_mul_i32 s90, s90, {56*896}
        s_min_u32 s91, s{S_DB}, 6
        s_lshl_b32 s91, s91, 7
        s_add_u32 s90, s90, s91
        buffer_load_dword v{self.V_GD}, v{G}, s[{SRD_WOUT}:{SRD_WOUT+3}], s90 offen
        """)
    def win_gather(self):
        k = self.k
        G = self.V_P
        k(f"""
        v_lshrrev_b32 v{G}, 3, v1
        v_min_u32 v{G}, 6, v{G}
        v_mul_u32_u24 v{G}, 3584, v{G}
        v_and_b32 v{G+1}, 7, v1
        v_min_u32 v{G+1}, 6, v{G+1}
        v_lshl_add_u32 v{G}, v{G+1}, 7, v{G}
        s_lshr_b32 s90, s2, 3
        s_lshr_b32 s91, s{S_W}, 1
        s_lshl1_add_u32 s90, s90, s91
        s_mul_i32 s90, s90, {7*3584}
        s_and_b32 s91, s{S_W}, 1
        s_lshr_b32 s92, s{S_FB}, 2
        s_lshl1_add_u32 s91, s91, s92
        s_mul_i32 s91, s91, 896
        s_add_u32 s90, s90, s91
        buffer_load_dword v{self.V_GD}, v{G}, s[{SRD_WIN}:{SRD_WIN+3}], s90 offen
        """)
    def w_finish(self):
        self.k.in_bg += 1
        while self.w_r < 16:
            if not self.w_step(): self.w_step(force=True)
        self.k.in_bg -= 1
        self.w_on = False

    def cmul(self, d, a_, b):
        self.k(f"""
        v_pk_mul_f32 v[{d}:{d+1}], v[{a_}:{a_+1}], v[{b}:{b+1}] op_sel:[0,0] op_sel_hi:[0,1]
        v_pk_fma_f32 v[{d}:{d+1}], v[{a_}:{a_+1}], v[{b}:{b+1}], v[{d}:{d+1}] op_sel:[1,1,0] op_sel_hi:[1,0,1] neg_lo:[0,1,0]
        """)
    def cexp(self, d, al, be, p, t):
        k = self.k
        pf = f2u(float(p))
        k(f"""
        v_mul_f32 v{t}, {pf}, v{al}
        v_mul_f32 v{d+1}, {pf}, v{be}
        v_exp_f32 v{t}, v{t}
        v_fract_f32 v{d+1}, v{d+1}
        v_cos_f32 v{d}, v{d+1}
        v_sin_f32 v{d+1}, v{d+1}
        v_mul_f32 v{d}, v{t}, v{d}
        v_mul_f32 v{d+1}, v{t}, v{d+1}
        """)
    def wave_sum(self, r, tmp):
        k = self.k
        for sh in (8, 4, 2, 1):
            k(f"v_add_f32_dpp v{r}, v{r}, v{r} row_ror:{sh} row_mask:0xf bank_mask:0xf")
        self.xreduce_g(r, tmp)

    def kgen(self):
        k = self.k
        P = self.V_PAR
        R = 72
        AL = R; BE = R + 2; CR = R + 4
        T = R + 8
        WA = R + 16; RAD = R + 24
        Q = R + 28
        Z8 = R + 44; Z128 = R + 46
        PA = R + 48; PB = R + 50; TM = R + 52
        PK = R + 56
        FL = R + 72; FH = R + 88
        AC = self.V_Z1
        k.nobg += 1
        k(f"v_lshl_add_u32 v{WA}, v1, 2, s{S_XL}")
        for c in range(1, 8): k(f"v_xor_b32 v{WA+c}, {c*32}, v{WA}")
        k(f"""
        v_and_b32 v{T}, 15, v1
        v_and_b32 v{T+1}, 7, v1
        v_lshlrev_b32 v{T+1}, 5, v{T+1}
        v_and_b32 v{T+2}, 48, v1
        v_xor_b32 v{T+1}, v{T+1}, v{T+2}
        v_lshl_add_u32 v{T+1}, v{T}, 8, v{T+1}
        v_add_u32 v{RAD}, s{S_XL}, v{T+1}
        """)
        for kk in range(1, 4): k(f"v_xor_b32 v{RAD+kk}, {kk*64}, v{RAD}")
        k.nobg -= 1
        self.ln1()
        k.wait_vm(self.t_par)
        k(f"""
        v_lshlrev_b32 v{T}, 16, v{P+6}
        v_mul_f32 v{T}, {f2u(LOG2E)}, v{T}
        v_exp_f32 v{T}, v{T}
        v_lshlrev_b32 v{self.V_DS}, 16, v{P+7}
        """)
        self.rbf(T, T)
        for m in range(2):
            un = (lambda d, sr: f"v_lshlrev_b32 v{d}, 16, v{sr}") if m == 0 else (lambda d, sr: f"v_and_b32 v{d}, s{S_MASK}, v{sr}")
            k(un(AL + m, P)); k(un(BE + m, P + 1)); k(un(CR + 2*m, P + 2)); k(un(CR + 2*m + 1, P + 3))
            k(un(T + 2 + 2*m, P + 4)); k(un(T + 3 + 2*m, P + 5))
            k(f"v_mul_f32 v{AL+m}, {f2u(LOG2E)}, v{AL+m}")
            k(f"v_exp_f32 v{AL+m}, v{AL+m}")
        k(f"v_cvt_pk_bf16_f32 v{T+1}, v{AL}, v{AL+1}")
        k(f"v_lshlrev_b32 v{AL}, 16, v{T+1}\nv_and_b32 v{AL+1}, s{S_MASK}, v{T+1}")
        for m in range(2):
            k(f"v_mul_f32 v{AL+m}, v{AL+m}, v{T}")
            k(f"v_mul_f32 v{AL+m}, {f2u(-LOG2E)}, v{AL+m}")
            k(f"v_mul_f32 v{BE+m}, v{BE+m}, v{T}")
            k(f"v_mul_f32 v{BE+m}, {f2u(1.0/(2*math.pi))}, v{BE+m}")
        k(f"v_add_f32 v{T+1}, abs(v{CR}), abs(v{CR+1})")
        for r in (CR+2, CR+3, T+2, T+3, T+4, T+5):
            k(f"v_add_f32 v{T+1}, v{T+1}, abs(v{r})")
        self.wave_sum(T + 1, T + 2)
        k(f"""
        v_mul_f32 v{T+1}, v{T+1}, v{T}
        v_mul_f32 v{T+1}, {f2u(1.001)}, v{T+1}
        v_frexp_exp_i32_f32 v{T+1}, v{T+1}
        v_sub_u32 v{T+2}, 15, v{T+1}
        v_subrev_u32 v{T+3}, 14, v{T+1}
        v_ldexp_f32 v{self.V_YS}, 1.0, v{T+3}
        """)
        for r in range(4):
            k(f"v_mul_f32 v{CR+r}, v{CR+r}, v{T}")
            k(f"v_ldexp_f32 v{CR+r}, v{CR+r}, v{T+2}")
        HS = f2u(16384.0)
        SH = 64
        k(f"s_mov_b32 s{SH}, {HS}")
        def pack(dst, c, neg=False):
            k(f"v_cvt_pk_f16_f32 v{dst}, v{c}, {'-' if neg else ''}v{c+1}")
        def wr2(r0, p0, p1):
            k(f"ds_write2st64_b32 v{WA + r0}, v{p0}, v{p1} offset0:{r0} offset1:{r0+8}")
        def wr1(r0, p0):
            k(f"ds_write_b32 v{WA + (r0 & 7)}, v{p0} offset:{r0*256}")
        def rd(f):
            for kk in range(4): t = k(f"ds_read_b128 v[{f+4*kk}:{f+4*kk+3}], v{RAD+kk}")
            return t
        pend = []
        def mm():
            if not pend: return
            t, tag, first = pend.pop()
            k.wait_lg(tag)
            for kk in range(4):
                src = "0" if (first and kk == 0) else f"v[{AC+4*t}:{AC+4*t+3}]"
                k(f"v_mfma_f32_16x16x32_f16 v[{AC+4*t}:{AC+4*t+3}], v[{FH+4*kk}:{FH+4*kk+3}], v[{FL+4*kk}:{FL+4*kk+3}], {src}")
        for ps in range(2):
            al = AL + ps; be = BE + ps; C = CR + 2*ps
            self.cexp(Q + 2, al, be, 1, T)
            self.cexp(Z8, al, be, 8, T + 1)
            mm()
            self.cexp(Z128, al, be, 128, T + 2)
            self.cmul(Q + 4, Q + 2, Q + 2)
            self.cmul(Q + 6, Q + 4, Q + 2)
            self.cmul(Q + 8, Q + 4, Q + 4)
            self.cmul(Q + 10, Q + 8, Q + 2)
            self.cmul(Q + 12, Q + 8, Q + 4)
            self.cmul(Q + 14, Q + 8, Q + 6)
            cur = C
            for r in range(16):
                pack(PK + r, cur, neg=True)
                if r >= 8: wr2(r - 8, PK + r - 8, PK + r)
                if r < 15:
                    nx = PA if cur != PA else PB
                    self.cmul(nx, cur, Z8); cur = nx
            rd(FL)
            k(f"v_mul_f32 v{PA}, s{SH}, v{Z128}\nv_mul_f32 v{PA+1}, s{SH}, v{Z128+1}")
            k(f"v_mov_b32 v{PK}, 0x7400")
            pack(PK + 8, PA)
            wr2(0, PK, PK + 8)
            for j in range(1, 8):
                k(f"v_mul_f32 v{TM}, s{SH}, v{Q+2*j}\nv_mul_f32 v{TM+1}, s{SH}, v{Q+2*j+1}")
                pack(PK + j, TM)
                self.cmul(TM + 2, PA, Q + 2*j)
                pack(PK + 8 + j, TM + 2)
                wr2(j, PK + j, PK + 8 + j)
            pend.append((0, rd(FH), ps == 0))
            cur = PA
            def nextP():
                nonlocal cur
                nx = PA if cur != PA else PB
                self.cmul(nx, cur, Z128); cur = nx
            for i in (2, 3):
                nextP()
                for jj, j in enumerate((0, 2, 4, 6)):
                    idx = (i - 2) * 4 + jj
                    if j == 0: pack(PK + idx, cur)
                    else:
                        self.cmul(TM, cur, Q + 2*j); pack(PK + idx, TM)
            mm()
            for i in (4, 5, 6, 7):
                nextP()
                for jj, j in enumerate((0, 4)):
                    idx = (i - 4) * 2 + jj
                    if j == 0: pack(PK + 8 + idx, cur)
                    else:
                        self.cmul(TM, cur, Q + 2*j); pack(PK + 8 + idx, TM)
                    wr2(idx, PK + idx, PK + 8 + idx)
            pend.append((1, rd(FH), ps == 0))
            for i in range(8, 17):
                nextP()
                pack(PK + (i - 8), cur)
                wr1(i - 8, PK + (i - 8))
                if i == 13: mm()
            pend.append((2, rd(FH), ps == 0))
        A1 = T
        k(f"""
        s_or_b32 s56, s{S_W}, 1
        s_mul_i32 s57, s56, 14336
        s_add_u32 s57, s57, {RB + 4096}
        v_add_u32 v{A1}, s57, v{self.V_L16}
        """)
        mm()
        self.stamp("kgen mfma")
        k.nobg += 1
        k(f"s_bitcmp0_b32 s{S_W}, 0\ns_cbranch_scc1 L_kg_even")
        with k.branch():
            for t in range(3):
                k(f"ds_write_b128 v{A1}, v[{AC+4*t}:{AC+4*t+3}] offset:{t*1024}")
        k(f"""
        L_kg_even:
        s_waitcnt lgkmcnt(0)
        s_barrier
        s_bitcmp1_b32 s{S_W}, 0
        s_cbranch_scc1 L_kg_odd
        """)
        KP = self.V_KP
        with k.branch():
            for t in range(3):
                k(f"ds_read_b128 v[{FL+4*t}:{FL+4*t+3}], v{A1} offset:{t*1024}")
            k(f"v_mov_b32 v{T+2}, {f2u(2.0**-14)}\ns_waitcnt lgkmcnt(0)")
            for r in range(0, 12, 2):
                k(f"v_pk_add_f32 v[{AC+r}:{AC+r+1}], v[{AC+r}:{AC+r+1}], v[{FL+r}:{FL+r+1}]")
            for r in range(0, 12, 2):
                k(f"v_pk_mul_f32 v[{AC+r}:{AC+r+1}], v[{AC+r}:{AC+r+1}], v[{T+2}:{T+3}] op_sel_hi:[1,0]")
            k(f"""
            v_cvt_pk_f16_f32 v{KP}, v{AC+3}, v{AC+2}
            v_cvt_pk_f16_f32 v{KP+1}, v{AC+1}, v{AC}
            v_cvt_pk_f16_f32 v{KP+2}, v{AC+4}, v{AC+5}
            v_cvt_pk_f16_f32 v{KP+3}, v{AC+6}, v{AC+7}
            v_cvt_pk_f16_f32 v{KP+4}, v{AC+8}, v{AC+9}
            v_cvt_pk_f16_f32 v{KP+5}, v{AC+10}, v{AC+11}
            """)
        k("L_kg_odd:")
        k.nobg -= 1
        self.bg_flush()

    def k_write(self):
        k = self.k
        T = self.V_S; KP = self.V_KP
        k.nobg += 1
        k(f"""
        s_lshr_b32 s56, s{S_W}, 1
        s_mul_i32 s57, s56, {KXP}
        s_add_u32 s57, s57, {KX}
        s_bitcmp0_b32 s{S_W}, 0
        s_cbranch_scc1 L_kw_even
        """)
        with k.branch():
            k(f"""
            v_lshl_add_u32 v{T}, v1, 3, s57
            v_mov_b32 v{T+2}, 0
            v_mov_b32 v{T+3}, 0
            ds_write_b64 v{T}, v[{T+2}:{T+3}]
            s_branch L_kw_j
            """)
        k("L_kw_even:")
        with k.branch():
            k(f"""
            v_and_b32 v{T+2}, 15, v1
            v_lshrrev_b32 v{T+3}, 4, v1
            v_lshrrev_b32 v{T+4}, 5, v1
            v_lshlrev_b32 v{T+4}, 8, v{T+4}
            v_lshl_add_u32 v{T+4}, v{T+2}, 4, v{T+4}
            v_and_b32 v{T+5}, 1, v{T+3}
            v_xor_b32 v{T+5}, 1, v{T+5}
            v_lshl_add_u32 v{T+4}, v{T+5}, 3, v{T+4}
            v_add_u32 v{T+4}, s57, v{T+4}
            ds_write_b64 v{T+4}, v[{KP}:{KP+1}] offset:512
            s_lshl_b32 s57, s56, 10
            s_add_u32 s57, s57, {KC}
            v_cmp_gt_u32 vcc, 32, v1
            v_lshlrev_b32 v{T+5}, 2, v{T+2}
            v_lshlrev_b32 v{T+6}, 3, v{T+2}
            v_cndmask_b32 v{T+5}, v{T+5}, v{T+6}, vcc
            v_lshl_add_u32 v{T+5}, v{T+3}, 7, v{T+5}
            v_add_u32 v{T+5}, s57, v{T+5}
            v_mov_b32 v{T+6}, 64
            v_cndmask_b32 v{T+6}, v{T+6}, 4, vcc
            v_add_u32 v{T+6}, v{T+6}, v{T+5}
            ds_write_b32 v{T+5}, v{KP+2}
            ds_write_b32 v{T+6}, v{KP+3}
            v_lshlrev_b32 v{T+7}, 1, v{T+2}
            v_lshl_add_u32 v{T+7}, v{T+3}, 7, v{T+7}
            v_add_u32 v{T+7}, s57, v{T+7}
            ds_write_b16 v{T+7}, v{KP+4} offset:512
            ds_write_b16_d16_hi v{T+7}, v{KP+4} offset:544
            ds_write_b16 v{T+7}, v{KP+5} offset:576
            ds_write_b16_d16_hi v{T+7}, v{KP+5} offset:608
            """)
        k("L_kw_j:")
        k.nobg -= 1

    def k_expand(self):
        k = self.k
        T = 16; D = 24; O = D + 4
        k.nobg += 1
        k(f"""
        s_lshr_b32 s56, s{S_W}, 1
        s_and_b32 s58, s{S_W}, 1
        s_lshl_b32 s57, s56, 10
        s_add_u32 s57, s57, {KC}
        s_mul_i32 s59, s56, {KXP}
        s_add_u32 s59, s59, {KX + 512}
        v_and_b32 v{T}, 127, v0
        v_lshrrev_b32 v{T+1}, 1, v{T}
        v_lshl_add_u32 v{T+1}, v{T+1}, 2, s57
        """)
        t1 = k(f"ds_read2_b32 v[{D}:{D+1}], v{T+1} offset0:128 offset1:129")
        k(f"""
        v_lshl_add_u32 v{T+2}, v{T}, 4, s59
        v_and_b32 v{T+3}, 1, v1
        v_cmp_eq_u32 vcc, 1, v{T+3}
        s_cmp_eq_u32 s58, 0
        s_cselect_b32 s60, 63, 31
        s_cselect_b32 s61, 2, 3
        s_cselect_b32 s62, 256, 0
        s_movk_i32 s63, 1024
        s_cselect_b32 s63, s63, 512
        v_and_b32 v{T+4}, s60, v1
        v_lshlrev_b32 v{T+5}, s61, v{T+4}
        s_add_u32 s62, s62, s57
        v_add_u32 v{T+5}, s62, v{T+5}
        ds_read2_b32 v[{D+8}:{D+9}], v{T+5} offset0:0 offset1:1
        """)
        t2 = k(f"ds_read_b32 v{D+10}, v{T+5} offset:8")
        k(f"""
        s_add_u32 s63, s63, s59
        v_lshl_add_u32 v{T+6}, v{T+4}, 4, s63
        """)
        k.wait_lg(t1)
        k(f"""
        v_alignbit_b32 v{D+2}, v{D+1}, v{D}, 16
        v_cndmask_b32 v{D}, v{D}, v{D+2}, vcc
        s_mov_b32 s60, 0x01000100
        s_mov_b32 s61, 0x03020302
        s_mov_b32 s62, 0x01000302
        v_perm_b32 v{O+3}, v{D}, v{D}, s60
        v_perm_b32 v{O}, v{D}, v{D}, s61
        v_perm_b32 v{O+1}, v{D}, v{D}, s62
        v_mov_b32 v{O+2}, v{O+3}
        v_cndmask_b32 v{O+1}, v{O+1}, v{O}, vcc
        ds_write_b128 v{T+2}, v[{O}:{O+3}] offset:2048
        """)
        E = D + 8; O2 = D + 12
        k(f"""
        s_cmp_eq_u32 s58, 0
        s_cselect_b32 s63, s62, 0x03020504
        s_cselect_b32 s62, s61, 0x05040504
        s_cselect_b32 s61, s60, 0x03020504
        """)
        k.wait_lg(t2)
        k(f"""
        v_perm_b32 v{O2}, v{E+2}, v{E+1}, s61
        v_perm_b32 v{O2+1}, v{E+1}, v{E}, s62
        v_perm_b32 v{O2+2}, v{E+1}, v{E}, s63
        v_perm_b32 v{O2+3}, v{E}, v{E}, s60
        ds_write_b128 v{T+6}, v[{O2}:{O2+3}]
        """)
        k.nobg -= 1

    def leader_clear(self):
        k = self.k
        C = self.V_X + 40
        with k.atomic():
            k(f"""
            s_or_b32 s90, s{S_FB}, s{S_W}
            s_cmp_lg_u32 s90, 0
            s_cbranch_scc1 L_noclear
            """)
            with k.branch():
                k(f"""
                v_mov_b32 v{C+4}, 0
                v_mov_b32 v{C+5}, 0
                v_mov_b32 v{C+6}, 0
                v_mov_b32 v{C+7}, 0
                v_bfe_u32 v{C+9}, v1, 3, 2
                v_lshlrev_b32 v{C+9}, 15, v{C+9}
                v_and_b32 v{C+10}, 7, v1
                v_lshl_add_u32 v{C+9}, v{C+10}, 7, v{C+9}
                s_lshl_b32 s90, s{S_TB}, 10
                buffer_store_dwordx4 v[{C+4}:{C+7}], v{C+9}, s[{SRD_WS}:{SRD_WS+3}], s90 offen sc1
                v_mov_b32 v{C}, -1
                v_mov_b32 v{C+1}, -1
                v_mov_b32 v{C+2}, -1
                v_mov_b32 v{C+3}, -1
                s_lshl_b32 s90, s{S_TB}, 12
                s_add_u32 s90, s90, {WS_STAT}
                buffer_store_dwordx4 v[{C}:{C+3}], v{self.V_L16}, s[{SRD_WS}:{SRD_WS+3}], s90 offen sc1
                buffer_store_dwordx4 v[{C}:{C+3}], v{self.V_L16}, s[{SRD_WS}:{SRD_WS+3}], s90 offen offset:1024 sc1
                buffer_store_dwordx4 v[{C}:{C+3}], v{self.V_L16}, s[{SRD_WS}:{SRD_WS+3}], s90 offen offset:2048 sc1
                buffer_store_dwordx4 v[{C}:{C+3}], v{self.V_L16}, s[{SRD_WS}:{SRD_WS+3}], s90 offen offset:3072 sc1
                """)
            k("L_noclear:")
            self.vm_clear = k.vm
    def leader_go(self):
        k = self.k
        T = self.V_S
        with k.atomic():
            k(f"""
            s_or_b32 s90, s{S_FB}, s{S_W}
            s_cmp_lg_u32 s90, 0
            s_cbranch_scc1 L_nogo
            """)
            with k.branch():
                k(f"""
                s_waitcnt vmcnt({k.vm - self.vm_clear})
                v_mov_b32 v{T+7}, 1
                v_mov_b32 v{T+6}, 0
                s_lshl_b32 s90, s{S_TB}, 2
                s_mov_b64 exec, 1
                buffer_store_dword v{T+7}, v{T+6}, s[{SRD_DBG}:{SRD_DBG+3}], s90 offen sc1
                s_mov_b64 exec, -1
                """)
            k("L_nogo:")
    def bump_txt(self):
        T = self.V_S
        return f"""
        v_mov_b32 v{T+6}, {4*32768}
        v_mov_b32 v{T+7}, 1
        s_mov_b64 exec, 1
        buffer_atomic_add v{T+7}, v{T+6}, s[{SRD_WS}:{SRD_WS+3}], s{S_FL} offen sc1
        s_mov_b64 exec, -1
        """

    def half_sum(self, r, tmp):
        k = self.k
        for sh in (8, 4, 2, 1):
            k(f"v_add_f32_dpp v{r}, v{r}, v{r} row_ror:{sh} row_mask:0xf bank_mask:0xf")
        k(f"""
        v_mov_b32 v{tmp}, v{r}
        v_permlane16_swap_b32 v{r}, v{tmp}
        v_add_f32 v{r}, v{r}, v{tmp}
        """)
    def ln1(self):
        k = self.k
        X = self.V_X; T = X + 8
        S = T; M = T + 2; Q = T + 4; D = T + 8
        k.nobg += 1
        k(f"""
        s_mov_b32 s58, 0x0fffffff
        s_mov_b32 s59, 0x0fffffff
        v_mov_b32 v{S}, 0
        v_mov_b32 v{Q}, 0
        """)
        k.wait_vm(self.t_x)
        self.stamp("x landed")
        for j in range(8):
            src = "0" if j < 2 else f"v{D + (j&1)}"
            k(f"v_dot2_f32_bf16 v{D + (j&1)}, v{X+j}, s{S_ONES}, {src}")
        k(f"s_mov_b64 exec, s[58:59]\nv_add_f32 v{S}, v{D}, v{D+1}\ns_mov_b64 exec, -1")
        for p in range(8):
            d = D + 2 * p
            k(f"v_lshlrev_b32 v{d}, 16, v{X+p}\nv_and_b32 v{d+1}, s{S_MASK}, v{X+p}")
            if p < 4: k(f"v_add_f32_dpp v{S}, v{S}, v{S} row_ror:{8 >> p} row_mask:0xf bank_mask:0xf")
            if p == 4: k(f"v_mov_b32 v{S+1}, v{S}")
            if p == 5: k(f"v_permlane16_swap_b32 v{S}, v{S+1}")
        k(f"v_add_f32 v{S}, v{S}, v{S+1}")
        k(f"v_mul_f32 v{S}, {f2u(1.0/448)}, v{S}")
        self.rbf(M, S)
        k(f"v_sub_f32 v{S}, v{S}, v{M}")
        for p in range(8):
            d = D + 2 * p
            acc = f"v_pk_mul_f32 v[{Q+2}:{Q+3}], v[{d}:{d+1}], v[{d}:{d+1}]" if p == 0 else f"v_pk_fma_f32 v[{Q+2}:{Q+3}], v[{d}:{d+1}], v[{d}:{d+1}], v[{Q+2}:{Q+3}]"
            k(f"""
            v_pk_add_f32 v[{d}:{d+1}], v[{d}:{d+1}], v[{M}:{M+1}] op_sel_hi:[1,0] neg_lo:[0,1] neg_hi:[0,1]
            {acc}
            """)
        k(f"s_mov_b64 exec, s[58:59]\nv_add_f32 v{Q}, v{Q+2}, v{Q+3}\ns_mov_b64 exec, -1")
        for p in range(8):
            d = D + 2 * p
            k(f"""
            v_cvt_pk_bf16_f32 v{d+1}, v{d}, v{d+1}
            v_lshlrev_b32 v{d}, 16, v{d+1}
            v_and_b32 v{d+1}, s{S_MASK}, v{d+1}
            """)
            if p < 4: k(f"v_add_f32_dpp v{Q}, v{Q}, v{Q} row_ror:{8 >> p} row_mask:0xf bank_mask:0xf")
            if p == 4: k(f"v_mov_b32 v{Q+1}, v{Q}")
            if p == 5: k(f"v_permlane16_swap_b32 v{Q}, v{Q+1}")
        k(f"v_add_f32 v{Q}, v{Q}, v{Q+1}")
        k(f"v_mul_f32 v{Q}, {f2u(1.0/448)}, v{Q}")
        k(f"v_fma_f32 v{Q}, -v{S}, v{S}, v{Q}")
        k(f"v_max_f32 v{Q}, 0, v{Q}")
        self.rbf(Q, Q)
        k(f"v_add_f32 v{Q}, {f2u(1e-5)}, v{Q}")
        self.rbf(Q, Q)
        k(f"v_sqrt_f32 v{Q}, v{Q}")
        self.rbf(Q, Q)
        k(f"v_rcp_f32 v{M}, v{Q}")
        k(f"v_fma_f32 v{Q}, -v{Q}, v{M}, 1.0")
        k(f"v_fma_f32 v{M}, v{Q}, v{M}, v{M}")
        k("s_mov_b64 exec, s[58:59]")
        for p in range(8):
            d = D + 2 * p
            k(f"""
            v_pk_mul_f32 v[{d}:{d+1}], v[{d}:{d+1}], v[{M}:{M+1}] op_sel_hi:[1,0]
            v_cvt_pk_bf16_f32 v{X+p}, v{d}, v{d+1}
            """)
            if p & 3 == 3:
                self.t_xs = k(f"buffer_store_dwordx4 v[{X+p-3}:{X+p}], v{self.V_XD+1}, s[{SRD_WS}:{SRD_WS+3}], s{S_XO} offen offset:{256*(p>>2)} sc1")
        k("s_mov_b64 exec, -1")
        k.nobg -= 1
        self.stamp("xn stored")
        t0 = k.est; o = self.opt
        P = self.V_P
        self.t_xn = {}
        XS = self.V_XS
        def fl():
            self.stamp("pre fl")
            k.wait_vm(self.t_xs)
            self.stamp("xs drained")
            k(self.bump_txt())
            self.leader_clear()
        def pl():
            self.stamp("pre pl")
            self.h_xn = self.poll_issue(XS, XS + 2, soff=f"s{S_XF}")
        def ck():
            self.stamp("pre ck")
            k.wait_vm(self.h_xn[0])
            self.stamp("pl back")
            self.leader_go()
            self.poll_check(self.h_xn, sc=92, old=f"v{XS+1}")
            self.stamp("xn ready")
            return 0
        ev = [(o.get("t_fl", 800), fl), (o.get("t_pl", 2300), pl), (o.get("t_ck", 3000), ck)]
        ev += [(o.get("t_ck", 3000), (lambda j=j: self.xn_pair(j))) for j in range(7)]
        self.ev = [(t0 + t, f) for t, f in ev]
        for b in (0, 3, 1, 2): self.queue_chunk(0, b, 4 * b, half=(b == 3))
        self.q[0].nb = t0 + o.get("t_c0", 600)

    def ut_mfma(self):
        k = self.k
        X = self.V_X; ID = self.V_ID; A = self.V_ACC
        for i in range(2):
            for h in range(2):
                k(f"v_mfma_f32_16x16x32_bf16 v[{A+(2*i+h)*4}:{A+(2*i+h)*4+3}], v[{X+4*i}:{X+4*i+3}], v[{ID+4*h}:{ID+4*h+3}], 0")
    def ut_store(self):
        k = self.k
        A = self.V_ACC; T = self.V_Z
        k(f"""
        v_lshrrev_b32 v{T+8}, 5, v1
        v_mul_u32_u24 v{T+8}, 7168, v{T+8}
        v_and_b32 v{T+9}, 31, v1
        v_lshl_add_u32 v{T+8}, v{T+9}, 4, v{T+8}
        s_lshl2_add_u32 s56, s{S_TB}, s{S_W}
        s_mul_i32 s56, s56, {2*7168}
        s_add_u32 s56, s56, {WS_UT}
        s_lshl_b32 s57, s{S_RHO}, 10
        s_add_u32 s57, s57, s56
        """)
        for i in range(2):
            U = T + 4 * i
            for h in range(2):
                b = A + (2*i+h)*4
                k(f"v_cvt_pk_f16_f32 v{U+2*h}, v{b}, v{b+1}")
                k(f"v_cvt_pk_f16_f32 v{U+2*h+1}, v{b+2}, v{b+3}")
        for i in range(2):
            U = T + 4 * i
            k(f"v_permlane16_swap_b32 v{U}, v{U+2}")
            k(f"v_permlane16_swap_b32 v{U+1}, v{U+3}")
        for i in range(2):
            U = T + 4 * i
            self.t_ut = k(f"buffer_store_dwordx4 v[{U}:{U+3}], v{T+8}, s[{SRD_WS}:{SRD_WS+3}], s57 offen offset:{512*i} sc1")

    def tr_addr(self, off):
        return f"v{self.V_TR + (off >> 16)} offset:{off & 0xffff}"

    def gemm1(self, part, mid=None):
        k = self.k
        X = self.V_X; B = self.V_B; A = self.V_ACC
        def reads(c, j):
            b = B + (c & 1) * 28 + 4 * j
            base = c * 7168 + 32 * j
            return (f"ds_read_b64_tr_b16 v[{b}:{b+1}], {self.tr_addr(base)}\n"
                    f"ds_read_b64_tr_b16 v[{b+2}:{b+3}], {self.tr_addr(base + 1792)}\n")
        tags = {}
        def arrive(b):
            while (part, b) not in self.t_chunk or self.t_chunk[(part, b)] is None or any(getattr(f, "cb", None) == (part, b) for f in self.q):
                if not self.q:
                    self.t_chunk[(part, b)] = k.vm if k.vm > self.vm_at_half else None
                    assert self.t_chunk[(part, b)] is not None
                    self.t_chunk[(part, b)] = self.vm_at_half + 1
                    break
                k.in_bg += 1; self.q.pop(0)(); k.in_bg -= 1
            with k.atomic():
                k.wait_vm(self.t_chunk[(part, b)])
                k("s_barrier")
        arrive(2 if part == 0 else 0)
        if part == 0:
            self.h_go = self.poll_issue(self.V_P, self.V_P + 1, srd=SRD_DBG)
            if self.opt.get("wg", 1): self.w_gather(0)
            else: self.w_on = True
        self.stamp(f"g1.{part} start")
        for j in range(7): tags[(0, j)] = k(reads(0, j))
        for c in range(14):
            nxt = c + 1 if c < 13 else None
            if part == 1 and nxt in (4, 8, 12): arrive(nxt // 4)
            if mid and c in mid: mid[c]()
            if part == 0: k.wait_vm(self.t_xn[c >> 1])
            for j in range(7):
                if j == 0: k.wait_lg(tags[(c, 3)])
                if j == 4: k.wait_lg(tags[(c, 6)])
                b = B + (c & 1) * 28 + 4 * j
                src = "0" if c == 0 else f"v[{A+4*j}:{A+4*j+3}]"
                if part == 0:
                    mf = f"v_mfma_f32_16x16x32_bf16 v[{A+4*j}:{A+4*j+3}], v[{X+4*c}:{X+4*c+3}], v[{b}:{b+3}], {src}\n"
                else:
                    mf = f"v_mfma_f32_16x16x32_bf16 v[{A+4*j}:{A+4*j+3}], v[{b}:{b+3}], v[{X+4*c}:{X+4*c+3}], {src}\n"
                if nxt is not None:
                    tags[(nxt, j)] = k(mf + reads(nxt, j))
                    k.est += 3
                else: k(mf)

    def gelu_consts(self, C):
        c1 = -2.0 * 0.7978845608028654 * LOG2E
        c3 = c1 * 0.044715
        self.k(f"v_mov_b32 v{C}, {f2u(c1)}\nv_mov_b32 v{C+2}, {f2u(c3)}")

    def gelu2(self):
        k = self.k
        A = self.V_ACC; T = self.V_TMP
        C1 = T + 32; C3 = T + 34
        self.gelu_consts(C1)
        SUM = T + 24
        for p in range(0, 14, 2):
            ts = [T + 0, T + 4]
            pk = [T + 8, T + 9]
            for q in range(2):
                a0 = A + 2*(p+q); t = ts[q]
                k(f"""
                v_cvt_pk_bf16_f32 v{t+2}, v{a0}, v{a0+1}
                v_lshlrev_b32 v{t}, 16, v{t+2}
                v_and_b32 v{t+1}, s{S_MASK}, v{t+2}
                v_pk_mul_f32 v[{t+2}:{t+3}], v[{t}:{t+1}], v[{t}:{t+1}]
                v_pk_fma_f32 v[{t+2}:{t+3}], v[{t+2}:{t+3}], v[{C3}:{C3+1}], v[{C1}:{C1+1}] op_sel_hi:[1,0,0]
                v_pk_mul_f32 v[{t+2}:{t+3}], v[{t+2}:{t+3}], v[{t}:{t+1}]
                v_exp_f32 v{t+2}, v{t+2}
                v_exp_f32 v{t+3}, v{t+3}
                """)
            for q in range(2):
                t = ts[q]
                k(f"""
                v_pk_add_f32 v[{t+2}:{t+3}], v[{t+2}:{t+3}], 1.0 op_sel_hi:[1,0]
                v_rcp_f32 v{t+2}, v{t+2}
                v_rcp_f32 v{t+3}, v{t+3}
                """)
            for q in range(2):
                t = ts[q]
                k(f"""
                v_pk_mul_f32 v[{t}:{t+1}], v[{t}:{t+1}], v[{t+2}:{t+3}]
                v_cvt_pk_bf16_f32 v{pk[q]}, v{t}, v{t+1}
                """)
            for q in range(2):
                z = self.V_Z + 2*(p+q)
                k(f"v_lshlrev_b32 v{z}, 16, v{pk[q]}\nv_and_b32 v{z+1}, s{S_MASK}, v{pk[q]}")
                sm = SUM + 2*q; sq = SUM + 4 + 2*q
                if p == 0:
                    k(f"v_pk_mul_f32 v[{sq}:{sq+1}], v[{z}:{z+1}], v[{z}:{z+1}]")
                elif p == 2:
                    k(f"v_pk_fma_f32 v[{sq}:{sq+1}], v[{z}:{z+1}], v[{z}:{z+1}], v[{sq}:{sq+1}]")
                    k(f"v_pk_add_f32 v[{sm}:{sm+1}], v[{z-4}:{z-3}], v[{z}:{z+1}]")
                else:
                    k(f"v_pk_fma_f32 v[{sq}:{sq+1}], v[{z}:{z+1}], v[{z}:{z+1}], v[{sq}:{sq+1}]")
                    k(f"v_pk_add_f32 v[{sm}:{sm+1}], v[{sm}:{sm+1}], v[{z}:{z+1}]")
        self.V_SUM = SUM

    S_ST = 64; S_STP = 65
    def stats_addr(self):
        k = self.k
        P = self.V_P
        k(f"""
        v_lshlrev_b32 v{P+2}, 1, v1
        s_lshl2_add_u32 s56, s{S_TB}, s{S_W}
        s_lshl_b32 s56, s56, 10
        s_add_u32 s{self.S_ST}, s56, {WS_STAT}
        s_lshl_b32 s57, s{S_FB}, 7
        s_add_u32 s{self.S_STP}, s{self.S_ST}, s57
        v_bfe_u32 v{P+3}, v1, 1, 3
        v_lshlrev_b32 v{P+3}, 7, v{P+3}
        v_lshrrev_b32 v{P+4}, 4, v1
        v_lshl_add_u32 v{P+3}, v{P+4}, 5, v{P+3}
        v_and_b32 v{P+4}, 1, v1
        v_lshl_add_u32 v{P+3}, v{P+4}, 4, v{P+3}
        """)
    def stats_publish(self):
        k = self.k
        S = self.V_SUM; Q = S + 4; P = self.V_P
        O = self.V_TMP + 10
        with k.atomic():
            for r in (S, S+1, Q, Q+1):
                k(f"v_add_f32_dpp v{r}, v{r}, v{r} row_ror:8 row_mask:0xf bank_mask:0x3")
            for r in (S, S+1, Q, Q+1):
                k(f"v_add_f32_dpp v{r}, v{r+2}, v{r+2} row_ror:8 row_mask:0xf bank_mask:0xc")
            k(f"""
            v_add_f32_dpp v{O}, v{S}, v{S} row_shl:4 row_mask:0xf bank_mask:0x5
            v_add_f32_dpp v{O+1}, v{Q}, v{Q} row_shl:4 row_mask:0xf bank_mask:0x5
            v_add_f32_dpp v{O}, v{S+1}, v{S+1} row_shr:4 row_mask:0xf bank_mask:0xa
            v_add_f32_dpp v{O+1}, v{Q+1}, v{Q+1} row_shr:4 row_mask:0xf bank_mask:0xa
            s_mov_b32 s58, 0x11111111
            s_mov_b32 s59, 0x11111111
            v_add_f32_dpp v{O}, v{O}, v{O} quad_perm:[1,0,3,2] row_mask:0xf bank_mask:0xf
            v_add_f32_dpp v{O+1}, v{O+1}, v{O+1} quad_perm:[1,0,3,2] row_mask:0xf bank_mask:0xf
            v_add_f32_dpp v{O}, v{O}, v{O} quad_perm:[2,3,0,1] row_mask:0xf bank_mask:0xf
            v_add_f32_dpp v{O+1}, v{O+1}, v{O+1} quad_perm:[2,3,0,1] row_mask:0xf bank_mask:0xf
            s_mov_b64 exec, s[58:59]
            buffer_store_dwordx2 v[{O}:{O+1}], v{P+2}, s[{SRD_WS}:{SRD_WS+3}], s{self.S_STP} offen sc1
            s_mov_b64 exec, -1
            """)

    V_ST = 184
    def stats_issue(self):
        T = self.V_ST
        self.t_st = self.k(f"buffer_load_dwordx4 v[{T}:{T+3}], v{self.V_P+3}, s[{SRD_WS}:{SRD_WS+3}], s{self.S_ST} offen sc1")
    def z_addr(self):
        k = self.k
        T = self.V_P
        k(f"""
        v_bfe_u32 v{T}, v1, 4, 1
        v_lshlrev_b32 v{T}, 10, v{T}
        v_lshrrev_b32 v{T+1}, 5, v1
        v_lshlrev_b32 v{T+1}, 8, v{T+1}
        v_and_b32 v{T+2}, 15, v1
        v_lshl_add_u32 v{T+1}, v{T+2}, 4, v{T+1}
        v_add_u32 v{T}, v{T}, v{T+1}
        s_xor_b32 s56, s{S_FB}, 1
        s_lshl_b32 s56, s56, 6
        s_lshl1_add_u32 s56, s{S_TB}, s56
        s_lshr_b32 s57, s{S_W}, 1
        s_add_u32 s56, s56, s57
        s_mul_i32 s56, s56, 7168
        s_and_b32 s57, s{S_W}, 1
        s_lshl_b32 s57, s57, 9
        s_add_u32 s56, s56, s57
        s_add_u32 s66, s56, {WS_Z}
        s_add_u32 s67, s66, 4096
        """)
    def stats_collect_normalize(self):
        k = self.k
        T = self.V_ST; Z = self.V_Z
        L = k.label("L_st")
        k.nobg += 1
        k.wait_vm(self.t_st)
        chk = f"""
        v_max3_u32 v{T+4}, v{T}, v{T+1}, v{T+2}
        v_max_u32 v{T+4}, v{T+4}, v{T+3}
        v_cmp_eq_u32 vcc, -1, v{T+4}
        s_cbranch_vccz {L}_ok
        """
        k(chk)
        with k.branch():
            k(f"""
            s_mov_b32 s56, 0
            {L}:
            buffer_load_dwordx4 v[{T}:{T+3}], v{self.V_P+3}, s[{SRD_WS}:{SRD_WS+3}], s{self.S_ST} offen sc1
            s_add_u32 s56, s56, 1
            s_waitcnt vmcnt(0)
            """ + chk + f"""
            s_and_b32 s57, s56, 15
            s_cbranch_scc1 {L}
            {self.bump_txt()}
            s_cmp_lt_u32 s56, 100000
            s_cbranch_scc1 {L}
            """)
        k(f"{L}_ok:")
        self.stamp("stats in")
        for sh in (8, 4, 2):
            for r in range(4):
                k(f"v_add_f32_dpp v{T+r}, v{T+r}, v{T+r} row_ror:{sh} row_mask:0xf bank_mask:0xf")
        inv = f2u(1.0 / 896)
        U = self.V_TMP
        for (sm, sq) in ((T, T+1), (T+2, T+3)):
            k(f"v_mul_f32 v{sm}, {inv}, v{sm}")
            k(f"v_mul_f32 v{sq}, {inv}, v{sq}")
            k(f"v_fma_f32 v{sq}, -v{sm}, v{sm}, v{sq}")
            k(f"v_max_f32 v{sq}, 0, v{sq}")
        k(f"v_cvt_pk_bf16_f32 v{T+4}, v{T}, v{T+2}")
        k(f"v_cvt_pk_bf16_f32 v{T+5}, v{T+1}, v{T+3}")
        k(f"v_lshlrev_b32 v{T}, 16, v{T+5}\nv_and_b32 v{T+1}, s{S_MASK}, v{T+5}")
        k(f"v_add_f32 v{T}, {f2u(1e-5)}, v{T}\nv_add_f32 v{T+1}, {f2u(1e-5)}, v{T+1}")
        k(f"v_cvt_pk_bf16_f32 v{T+5}, v{T}, v{T+1}")
        k(f"v_lshlrev_b32 v{T}, 16, v{T+5}\nv_and_b32 v{T+1}, s{S_MASK}, v{T+5}")
        k(f"v_sqrt_f32 v{T}, v{T}\nv_sqrt_f32 v{T+1}, v{T+1}")
        k(f"v_mov_b32_dpp v{U+6}, v{T+4} quad_perm:[0,0,2,2] row_mask:0xf bank_mask:0xf")
        k(f"v_mov_b32_dpp v{U+7}, v{T+4} quad_perm:[1,1,3,3] row_mask:0xf bank_mask:0xf")
        k(f"v_cvt_pk_bf16_f32 v{T+5}, v{T}, v{T+1}")
        M = U + 12; R = U + 16
        k(f"v_lshlrev_b32 v{T}, 16, v{T+5}\nv_and_b32 v{T+1}, s{S_MASK}, v{T+5}")
        k(f"v_rcp_f32 v{T+2}, v{T}\nv_rcp_f32 v{T+3}, v{T+1}")
        for h in range(2):
            k(f"v_lshlrev_b32 v{M+2*h}, 16, v{U+6+h}\nv_and_b32 v{M+2*h+1}, s{S_MASK}, v{U+6+h}")
        for r in range(2): k(f"v_fma_f32 v{T+r}, -v{T+r}, v{T+2+r}, 1.0")
        for r in range(2): k(f"v_fma_f32 v{T+2+r}, v{T+r}, v{T+2+r}, v{T+2+r}")
        for p in range(2):
            z = Z + 2*p; h = p & 1
            k(f"v_pk_add_f32 v[{z}:{z+1}], v[{z}:{z+1}], v[{M+2*h}:{M+2*h+1}] neg_lo:[0,1] neg_hi:[0,1]")
        for h in range(2):
            for r in range(2):
                k(f"v_mov_b32_dpp v{R+2*h+r}, v{T+2+r} quad_perm:[{h},{h},{2+h},{2+h}] row_mask:0xf bank_mask:0xf")
        P = self.V_B
        A = self.V_P
        def store(pr):
            u = P + 4*pr
            k(f"v_permlane16_swap_b32 v{u}, v{u+2}")
            k(f"v_permlane16_swap_b32 v{u+1}, v{u+3}")
            va = A if pr < 3 else A + 1
            so = 66 if pr < 2 else 67
            self.t_z = k(f"buffer_store_dwordx4 v[{u}:{u+3}], v{va}, s[{SRD_WS}:{SRD_WS+3}], s{so} offen offset:{(pr&1)*2048} sc1")
        for p in range(14):
            z = Z + 2*p; h = p & 1
            if p >= 2: k(f"v_pk_add_f32 v[{z}:{z+1}], v[{z}:{z+1}], v[{M+2*h}:{M+2*h+1}] neg_lo:[0,1] neg_hi:[0,1]")
            k(f"""
            v_cvt_pk_bf16_f32 v{z+1}, v{z}, v{z+1}
            v_lshlrev_b32 v{z}, 16, v{z+1}
            v_and_b32 v{z+1}, s{S_MASK}, v{z+1}
            v_pk_mul_f32 v[{z}:{z+1}], v[{z}:{z+1}], v[{R+2*h}:{R+2*h+1}]
            v_cvt_pk_bf16_f32 v{P+p}, v{z}, v{z+1}
            """)
            if p >= 12: k(f"v_cvt_pk_bf16_f32 v{P+p+2}, v{z}, v{z+1}")
            if p in (4, 8, 12): store(p // 4 - 1)
        store(3)
        k.nobg -= 1

    def u_poll_issue(self):
        k = self.k
        T = self.V_S
        k(f"""
        v_bfe_u32 v{T}, v1, 2, 2
        s_lshl_b32 s57, s{S_W}, 2
        v_add_u32 v{T}, s57, v{T}
        v_and_b32 v{T+1}, 16, v1
        v_add_u32 v{T}, v{T}, v{T+1}
        v_and_b32 v{T+1}, 7, v{T}
        s_lshr_b32 s57, s{S_CP}, 5
        s_add_u32 s57, s57, 7
        v_sub_u32 v{T+1}, s57, v{T+1}
        v_subrev_u32 v{T+2}, 7, v{T+1}
        v_min_u32 v{T+1}, v{T+1}, v{T+2}
        v_lshrrev_b32 v{T+2}, 1, v{T+1}
        v_and_b32 v{T+1}, 1, v{T+1}
        v_lshl_add_u32 v{T+1}, v{T+1}, 2, v{T+2}
        v_lshl_add_u32 v{T}, v{T}, 3, v{T+1}
        v_lshlrev_b32 v{T}, 7, v{T}
        v_and_b32 v{T+1}, 3, v1
        v_lshl_add_u32 v{T}, v{T+1}, 2, v{T}
        v_lshrrev_b32 v{T+2}, 1, v0
        v_mul_u32_u24 v{T+2}, 7168, v{T+2}
        v_and_b32 v{T+3}, 1, v0
        v_lshl_add_u32 v{T+2}, v{T+3}, 4, v{T+2}
        """)
        self.h_u = self.poll_issue(T, T + 1)
        self.t_after_half = self.h_u[0]
    def u_load(self):
        k = self.k
        T = self.V_S; U = self.V_U
        self.poll_check(self.h_u, bump=True)
        k(f"""
        s_lshl_b32 s57, s{S_CP}, 5
        s_add_u32 s57, s57, {WS_UT}
        s_add_u32 s58, s57, {128*7168}
        buffer_load_dwordx4 v[{U}:{U+3}], v{T+2}, s[{SRD_WS}:{SRD_WS+3}], s57 offen sc1
        buffer_load_dwordx4 v[{U+4}:{U+7}], v{T+2}, s[{SRD_WS}:{SRD_WS+3}], s58 offen sc1
        """)
        self.t_u = k.vm
    def u_write_copy8(self):
        k = self.k
        T = self.V_S; U = self.V_U
        k(f"""
        v_and_b32 v{T}, 1, v0
        v_mul_u32_u24 v{T}, {UCH}, v{T}
        v_lshrrev_b32 v{T+1}, 1, v0
        v_lshl_add_u32 v{T}, v{T+1}, 4, v{T}
        v_add_u32 v{T}, {UC + 7*UCP + 16}, v{T}
        v_and_b32 v{T+1}, 15, v1
        v_mul_u32_u24 v{T+1}, {UCP}, v{T+1}
        v_mov_b32 v{T+4}, 0
        v_mov_b32 v{T+5}, 0
        v_mov_b32 v{T+6}, 0
        v_mov_b32 v{T+7}, 0
        ds_write_b128 v{T+1}, v[{T+4}:{T+7}] offset:{UC}
        """)
        k.wait_vm(self.t_u)
        k(f"ds_write_b128 v{T}, v[{U}:{U+3}]")
        k(f"ds_write_b128 v{T}, v[{U+4}:{U+7}] offset:2048")

    def u_copies(self, mid=None):
        k = self.k
        R = 48
        T = R; W0 = R + 4
        k(f"""
        s_lshr_b32 s56, s{S_W}, 1
        s_mul_i32 s56, s56, {UCH}
        s_add_u32 s56, s56, {UC}
        v_and_b32 v{T}, 127, v0
        v_lshl_add_u32 v{T}, v{T}, 4, s56
        """)
        tg = []
        for r in range(2):
            w = W0 + 32 * r
            k(f"ds_read_b128 v[{w}:{w+3}], v{T} offset:{7*UCP + 2048*r}")
            tg.append(k(f"ds_read_b128 v[{w+4}:{w+7}], v{T} offset:{7*UCP + 2048*r + 16}"))
        if mid: mid()
        for r in range(2):
            w = W0 + 32 * r
            base = 2048 * r + 16
            k.wait_lg(tg[r])
            def wr(s_, reg): k(f"ds_write_b128 v{T}, v[{reg}:{reg+3}] offset:{base + (s_-1)*UCP}")
            wr(4, w + 2)
            for i in range(7): k(f"v_alignbit_b32 v{w+16+i}, v{w+i+1}, v{w+i}, 16")
            wr(1, w + 16); wr(5, w + 18)
            for i in range(6): k(f"v_mov_b32 v{w+8+i}, v{w+1+i}")
            wr(2, w + 8); wr(6, w + 10)
            for i in range(6): k(f"v_mov_b32 v{w+24+i}, v{w+17+i}")
            wr(3, w + 24); wr(7, w + 26)

    def conv(self):
        k = self.k
        R = 16
        AA = R; BA = R + 1; T = R + 2
        AC = R + 8
        F1 = 64; F0 = 128
        k(f"""
        s_lshr_b32 s56, s{S_W}, 1
        s_and_b32 s58, s{S_W}, 1
        s_mul_i32 s57, s56, {UCH}
        s_lshl_b32 s59, s58, 8
        s_add_u32 s57, s57, s59
        s_add_u32 s57, s57, {UC + 48}
        v_and_b32 v{T}, 7, v1
        v_mul_u32_u24 v{T}, {UCP}, v{T}
        v_bfe_u32 v{T+1}, v1, 3, 1
        v_lshrrev_b32 v{T+2}, 4, v1
        v_sub_u32 v{T+1}, v{T+1}, v{T+2}
        v_lshl_add_u32 v{T}, v{T+1}, 4, v{T}
        v_add_u32 v{AA}, s57, v{T}
        s_mul_i32 s57, s56, {KXP}
        s_sub_u32 s57, s57, s59
        s_add_u32 s57, s57, {KX + 512 - 32 - 192}
        v_and_b32 v{T}, 15, v1
        v_lshlrev_b32 v{T}, 5, v{T}
        v_lshl_add_u32 v{T}, v{T+2}, 4, v{T}
        v_add_u32 v{BA}, s57, v{T}
        """)
        self.z_poll_addr()
        with k.atomic():
            k("s_waitcnt lgkmcnt(0)\ns_barrier")
        self.stamp("copies")
        def rd(rp, i):
            f = F1 if rp & 1 else F0
            j = i >> 1
            if i & 1: return k(f"ds_read_b128 v[{f+32+4*j}:{f+32+4*j+3}], v{BA} offset:{512*j + 64*(3-rp)}")
            return k(f"ds_read_b128 v[{f+4*j}:{f+4*j+3}], v{AA} offset:{512*j + 64*rp}")
        tg = {}
        with k.atomic():
            for i in range(16): tg[(0, i)] = rd(0, i)
        first = set()
        zl = 0
        for rp in range(4):
            f = F1 if rp & 1 else F0
            cnt = 0; ri = 0
            order = [(n, a_) for n in range(8) for a_ in range(n + 1)] if rp == 0 else [(n, a_) for n in range(7, -1, -1) for a_ in range(n + 1)]
            if rp == 3:
                self.poll_check(self.h_z)
                self.stamp("z ready")
            for n, a_ in order:
                b = n - a_
                k.wait_lg(tg[(rp, 2 * max(a_, b) + 1)] if rp == 0 else tg[(rp, 15)])
                src = f"v[{AC+4*n}:{AC+4*n+3}]" if n in first else "0"
                first.add(n)
                k(f"v_mfma_f32_16x16x32_f16 v[{AC+4*n}:{AC+4*n+3}], v[{f+4*a_}:{f+4*a_+3}], v[{f+32+4*b}:{f+32+4*b+3}], {src}")
                cnt += 1
                if rp < 3 and cnt % 2 == 0 and ri < 16:
                    tg[(rp + 1, ri)] = rd(rp + 1, ri); ri += 1
                if rp == self.opt.get("zpoll_rp", 2) and cnt == self.opt.get("zpoll_cnt", 6):
                    self.w_finish()
                    self.h_z = self.poll_issue(self.V_P, self.V_P + 1, soff=f"s{self.S_ZF}")
                if rp == 3 and cnt % 2 == 1 and zl < 14:
                    self.zload(zl // 7, zl % 7); zl += 1
        self.stamp("conv mfma")
        X = T
        F = F1
        KEEP = F; RX = F + 16
        k.nobg += 1
        k(f"""
        s_lshl_b32 s57, s{S_W}, 12
        s_add_u32 s57, s57, {CRED}
        v_add_u32 v{X}, s57, v{self.V_L16}
        s_bitcmp0_b32 s{S_W}, 0
        s_cbranch_scc1 L_cv_h0
        """)
        with k.branch():
            for n in range(4): k(f"ds_write_b128 v{X}, v[{AC+4*n}:{AC+4*n+3}] offset:{n*1024}")
            for r in range(0, 16, 2): k(f"v_pk_mov_b32 v[{AC+r}:{AC+r+1}], v[{AC+16+r}:{AC+17+r}], v[{AC+16+r}:{AC+17+r}] op_sel:[0,1]")
            k("s_branch L_cv_j")
        k("L_cv_h0:")
        with k.branch():
            for n in range(4): k(f"ds_write_b128 v{X}, v[{AC+16+4*n}:{AC+16+4*n+3}] offset:{n*1024}")
        k("L_cv_j:")
        KEEP = AC
        k(f"""
        v_xor_b32 v{X+1}, 4096, v{X}
        s_lshr_b32 s56, s{S_W}, 1
        s_and_b32 s58, s{S_W}, 1
        s_mul_i32 s57, s56, {UCH}
        s_lshl_b32 s59, s58, 11
        s_add_u32 s57, s57, s59
        s_add_u32 s57, s57, {UC + 7*UCP + 16}
        v_and_b32 v{X+2}, 15, v1
        v_lshlrev_b32 v{X+2}, 5, v{X+2}
        v_lshrrev_b32 v{X+3}, 4, v1
        v_lshl_add_u32 v{X+3}, v{X+3}, 3, v{X+2}
        v_add_u32 v{X+3}, s57, v{X+3}
        """)
        assert CRED % 8192 == 0
        UU = F + 32
        for n in range(4): k(f"ds_read_b64 v[{UU+2*n}:{UU+2*n+1}], v{X+3} offset:{n*512}")
        k("s_waitcnt lgkmcnt(0)\ns_barrier")
        for n in range(4): k(f"ds_read_b128 v[{RX+4*n}:{RX+4*n+3}], v{X+1} offset:{n*1024}")
        UD = F + 40
        for p in range(8):
            d = UD + 2*p
            k(f"v_fma_mix_f32 v{d}, v{UU+p}, v{self.V_DS}, 0 op_sel_hi:[1,0,0]")
            k(f"v_fma_mix_f32 v{d+1}, v{UU+p}, v{self.V_DS}, 0 op_sel:[1,0,0] op_sel_hi:[1,0,0]")
        for p in range(8):
            d = UD + 2*p
            k(f"v_cvt_pk_bf16_f32 v{d+1}, v{d}, v{d+1}")
            k(f"v_lshlrev_b32 v{d}, 16, v{d+1}\nv_and_b32 v{d+1}, s{S_MASK}, v{d+1}")
        k(f"""
        v_bfe_u32 v{X}, v1, 4, 1
        v_lshl_add_u32 v{X+2}, v{X}, 9, v{X+2}
        v_lshrrev_b32 v{X}, 5, v1
        v_lshl_add_u32 v{X+2}, v{X}, 4, v{X+2}
        s_lshl_b32 s57, s{S_CP}, 13
        s_lshl_b32 s59, s{S_W}, 11
        s_add_u32 s57, s57, s59
        s_add_u32 s57, s57, {WS_ST}
        s_waitcnt lgkmcnt(0)
        """)
        O = F + 56
        YS = self.V_YS
        for p in range(8):
            y = KEEP + 2*p; d = UD + 2*p
            k(f"""
            v_pk_add_f32 v[{y}:{y+1}], v[{y}:{y+1}], v[{RX+2*p}:{RX+2*p+1}]
            v_pk_mul_f32 v[{y}:{y+1}], v[{y}:{y+1}], v[{YS}:{YS+1}] op_sel_hi:[1,0]
            v_cvt_pk_bf16_f32 v{y+1}, v{y}, v{y+1}
            v_lshlrev_b32 v{y}, 16, v{y+1}
            v_and_b32 v{y+1}, s{S_MASK}, v{y+1}
            v_pk_add_f32 v[{y}:{y+1}], v[{y}:{y+1}], v[{d}:{d+1}]
            v_cvt_pk_bf16_f32 v{O+p}, v{y}, v{y+1}
            """)
        for pr in range(2):
            u = O + 4*pr
            k(f"v_permlane16_swap_b32 v{u}, v{u+2}")
            k(f"v_permlane16_swap_b32 v{u+1}, v{u+3}")
            self.t_s = k(f"buffer_store_dwordx4 v[{u}:{u+3}], v{X+2}, s[{SRD_WS}:{SRD_WS+3}], s57 offen offset:{pr*1024} sc1")
        k.nobg -= 1

    S_ZF = 68; S_ZB = 69; S_Z = 70; S_Z2 = 71
    ZR = 128; AC2 = 16
    def z_poll_addr(self):
        k = self.k
        T = self.V_P
        k(f"""
        v_bfe_u32 v{T}, v1, 2, 3
        s_lshl_b32 s57, s{S_W}, 3
        v_add_u32 v{T}, s57, v{T}
        s_xor_b32 s57, s{S_FB}, 1
        v_lshl_add_u32 v{T}, v{T}, 3, s57
        v_lshlrev_b32 v{T}, 7, v{T}
        v_and_b32 v{T+1}, 3, v1
        v_lshl_add_u32 v{T}, v{T+1}, 2, v{T}
        s_mov_b32 s{self.S_ZF}, {WS_FLAG + 32768}
        s_lshl2_add_u32 s57, s{S_FB}, s{S_W}
        s_mul_i32 s{self.S_ZB}, s57, {16*7168}
        s_add_u32 s{self.S_ZB}, s{self.S_ZB}, {WS_Z}
        """)
        self.ztag = {}
    def zload(self, sg, j):
        k = self.k
        SZ = self.S_Z; SZ2 = self.S_Z2
        if j == 0:
            k(f"""
            s_add_u32 s{SZ}, s{S_RHO2}, {sg}
            s_and_b32 s{SZ}, s{SZ}, 15
            s_mul_i32 s{SZ}, s{SZ}, 7168
            s_add_u32 s{SZ}, s{SZ}, s{self.S_ZB}
            """)
        if j == 4: k(f"s_add_u32 s{SZ2}, s{SZ}, 4096")
        r = self.ZR + (sg % 3) * 28 + 4 * j
        so = SZ if j < 4 else SZ2
        self.ztag[(sg, j)] = k(f"buffer_load_dwordx4 v[{r}:{r+3}], v{self.V_L16}, s[{SRD_WS}:{SRD_WS+3}], s{so} offen offset:{(j & 3) * 1024} sc1")

    def gelu1_fillers(self):
        T = self.V_S; C1 = 228; C3 = 229
        c1 = -2.0 * 0.7978845608028654 * LOG2E
        c3 = c1 * 0.044715
        out = [f"v_mov_b32 v{C1}, {f2u(c1)}", f"v_mov_b32 v{C3}, {f2u(c3)}"]
        for p in range(14):
            z = self.V_Z1 + p
            a = T; b = T + 1; t = T + 2; u = T + 3
            out += [f"v_lshlrev_b32 v{a}, 16, v{z}", f"v_and_b32 v{b}, s{S_MASK}, v{z}",
                    f"v_mul_f32 v{t}, v{a}, v{a}", f"v_mul_f32 v{u}, v{b}, v{b}",
                    f"v_fma_f32 v{t}, v{t}, v{C3}, v{C1}", f"v_fma_f32 v{u}, v{u}, v{C3}, v{C1}",
                    f"v_mul_f32 v{t}, v{t}, v{a}", f"v_mul_f32 v{u}, v{u}, v{b}",
                    f"v_exp_f32 v{t}, v{t}", f"v_exp_f32 v{u}, v{u}",
                    f"v_add_f32 v{t}, 1.0, v{t}", f"v_add_f32 v{u}, 1.0, v{u}",
                    f"v_rcp_f32 v{t}, v{t}", f"v_rcp_f32 v{u}, v{u}",
                    f"v_mul_f32 v{a}, v{a}, v{t}", f"v_mul_f32 v{b}, v{b}, v{u}",
                    f"v_cvt_pk_bf16_f32 v{z}, v{a}, v{b}"]
        return out

    def phase2(self):
        k = self.k
        T = self.V_S
        AC = self.AC2; ZR = self.ZR
        tag = self.ztag
        fill = self.gelu1_fillers()
        XA = 234
        for tp in range(1, 4):
            fill += [f"s_xor_b32 s56, s{S_W}, {tp}", f"s_mul_i32 s56, s56, 21504", f"s_add_u32 s56, s56, {X2 + (tp-1)*7168}",
                     f"v_add_u32 v{XA+tp-1}, s56, v{self.V_L16}"]
        fill += [f"s_mul_i32 s56, s{S_W}, 21504", f"s_add_u32 s56, s56, {X2}", f"v_add_u32 v{XA+3}, s56, v{self.V_L16}",
                 f"v_lshlrev_b32 v{self.V_BSP}, 16, v{self.V_BSP}"]
        fill += f"""
        s_lshl2_add_u32 s56, s{S_TB}, s{S_W}
        s_mul_i32 s56, s56, 28
        s_lshr_b32 s57, s{S_FB}, 1
        s_mul_i32 s57, s57, 7
        s_add_u32 s56, s56, s57
        s_lshl_b32 s56, s56, 10
        s_add_u32 s56, s56, {WS_H}
        s_and_b32 s58, s{S_FB}, 1
        s_lshl_b32 s72, s58, 12
        s_add_u32 s72, s72, s56
        s_lshl_b32 s73, s58, 9
        s_add_u32 s73, s73, s56
        v_lshrrev_b32 v{T+4}, 5, v1
        v_lshlrev_b32 v{T+4}, 8, v{T+4}
        v_and_b32 v{T+5}, 15, v1
        v_lshl_add_u32 v{T+4}, v{T+5}, 4, v{T+4}
        """.strip().split("\n")
        fill += self.p3_setup_fillers()
        def mf(sg, tau, j):
            r = ZR + (sg % 3) * 28 + 4 * j
            ac = AC + (tau * 7 + j) * 4
            wr = (sg * 4 + tau) * 4
            src = "0" if sg == 0 else f"v[{ac}:{ac+3}]"
            k(f"v_mfma_f32_16x16x32_bf16 v[{ac}:{ac+3}], v[{r}:{r+3}], a[{wr}:{wr+3}], {src}")
        fill = [f.strip() for f in fill]
        def filler():
            c = 0
            while fill and c + icost(fill[0]) <= 8:
                c += icost(fill[0]); k(fill.pop(0))
        k("s_waitcnt lgkmcnt(0)")
        for sg in range(13):
            for j in range(7):
                if j in (0, 4): k.wait_vm(tag[(sg, 3 if j == 0 else 6)])
                if sg == 2 and j == 0:
                    assert k.vm_done >= self.t_s
                    self.set_flag(f"s_lshl_b32 s56, s{S_F4}, 7\ns_lshl2_add_u32 s56, s{S_W}, s56\ns_add_u32 s56, s56, {WS_FLAG + 3*32768}\n", 56)
                for tau in range(4):
                    mf(sg, tau, j)
                    if tau < 3: filler()
                self.zload(sg + 2, j)
            if sg == 6: k("s_barrier")
            if sg % 2 == 1 and self.opt.get("fine"): self.stamp(f"g2 sg{sg}")
        assert not fill, len(fill)
        for j in range(7): fill.append(lambda j=j: self.zload(15, j))
        fill2 = self.wout_dma_items()
        wr = {}
        cnt = [0]
        def blk(sg, tau):
            for j in range(7):
                if j in (0, 4): k.wait_vm(tag[(sg, 3 if j == 0 else 6)])
                mf(sg, tau, j)
                if fill: fill.pop(0)()
                elif cnt[0] in wr: wr[cnt[0]]()
                elif fill2 and cnt[0] % 3 == 1: fill2.pop(0)()
                cnt[0] += 1
        for i in range(21):
            tp = 1 + i // 7; j = i % 7
            ac = AC + (tp * 7 + j) * 4
            wr[49 + i * 35 // 21] = lambda ac=ac, j=j, tp=tp: k(f"ds_write_b128 v{XA+tp-1}, v[{ac}:{ac+3}] offset:{j*1024}")
        for sg, tau in ((13,1),(14,1),(13,2),(14,2),(13,3),(14,3),(15,1),(15,2),(15,3),(13,0),(14,0),(15,0)): blk(sg, tau)
        self.stamp("gemm2")
        k("s_waitcnt lgkmcnt(0)\ns_barrier")
        RX = ZR
        tg = {}
        for j in range(7):
            for sidx in range(3):
                r = RX + (j * 3 + sidx) * 4
                tg[j] = k(f"ds_read_b128 v[{r}:{r+3}], v{XA+3} offset:{sidx*7168 + j*1024}")
        while fill2: fill2.pop(0)()
        P = 48; Z = 64
        B = self.V_BSP
        for j in range(7):
            k.wait_lg(tg[j])
            for hh in range(2):
                g = AC + j * 4 + 2 * hh
                p = 2 * j + hh
                z = Z + 2 * (p & 1)
                r = RX + j * 12 + 2 * hh
                k(f"""
                v_pk_add_f32 v[{g}:{g+1}], v[{g}:{g+1}], v[{r}:{r+1}]
                v_pk_add_f32 v[{r+4}:{r+5}], v[{r+4}:{r+5}], v[{r+8}:{r+9}]
                v_lshlrev_b32 v{z}, 16, v{self.V_Z1+p}
                v_pk_add_f32 v[{g}:{g+1}], v[{g}:{g+1}], v[{r+4}:{r+5}]
                v_and_b32 v{z+1}, s{S_MASK}, v{self.V_Z1+p}
                v_cvt_pk_bf16_f32 v{g+1}, v{g}, v{g+1}
                v_lshlrev_b32 v{g}, 16, v{g+1}
                v_and_b32 v{g+1}, s{S_MASK}, v{g+1}
                v_pk_add_f32 v[{g}:{g+1}], v[{g}:{g+1}], v[{B}:{B+1}] op_sel_hi:[1,0]
                v_cvt_pk_bf16_f32 v{g+1}, v{g}, v{g+1}
                v_lshlrev_b32 v{g}, 16, v{g+1}
                v_and_b32 v{g+1}, s{S_MASK}, v{g+1}
                v_pk_mul_f32 v[{g}:{g+1}], v[{g}:{g+1}], v[{z}:{z+1}]
                v_cvt_pk_bf16_f32 v{P+p}, v{g}, v{g+1}
                """)
                if p >= 12: k(f"v_cvt_pk_bf16_f32 v{P+p+2}, v{g}, v{g+1}")
            if j in (1, 3, 5):
                i = j // 2
                k(f"buffer_store_dwordx4 v[{P+4*i}:{P+4*i+3}], v{self.V_L16}, s[{SRD_WS}:{SRD_WS+3}], s72 offen offset:{i*1024} sc1")
        k(f"""
        v_permlane16_swap_b32 v{P+12}, v{P+14}
        v_permlane16_swap_b32 v{P+13}, v{P+15}
        """)
        self.t_h = k(f"buffer_store_dwordx4 v[{P+12}:{P+15}], v{T+4}, s[{SRD_WS}:{SRD_WS+3}], s73 offen offset:3072 sc1")
        self.stamp("h stored")

    VN = 2; VS = 3; RA3 = 4; OA = 6; V_SP = 7; V_SA = 8; V_HP = 9; V_PL = 10
    S_WOB = 74; S_WOL = 75; S_OUT = 76; S_SF = 77; S_SB = 78; S_HF = 79; S_HB = 80
    def p3_setup_fillers(self):
        T = 11
        VN = self.VN; VS = self.VS; RA3 = self.RA3; OA = self.OA
        s = f"""
        v_lshrrev_b32 v{T}, 3, v1
        v_and_b32 v{T+1}, 7, v1
        v_bfe_u32 v{T+2}, v1, 4, 1
        v_xor_b32 v{T+1}, v{T+1}, v{T+2}
        v_mul_u32_u24 v{VN}, 896, v{T}
        v_lshl_add_u32 v{VN}, v{T+1}, 4, v{VN}
        v_and_b32 v{T+2}, 3, v{T}
        v_and_b32 v{T}, 4, v{T}
        v_lshl_add_u32 v{T}, v{T}, 1, v{T+2}
        v_mul_u32_u24 v{VS}, 896, v{T}
        v_lshl_add_u32 v{VS}, v{T+1}, 4, v{VS}
        s_min_u32 s56, s{S_DB}, 6
        s_mul_i32 s{self.S_WOB}, s{S_W}, {224*896}
        s_lshl_b32 s57, s56, 7
        s_add_u32 s{self.S_WOB}, s{self.S_WOB}, s57
        v_and_b32 v{T}, 15, v1
        v_mul_u32_u24 v{OA}, 896, v{T}
        v_lshrrev_b32 v{T+1}, 4, v1
        v_lshl_add_u32 v{OA}, v{T+1}, 5, v{OA}
        s_and_b32 s58, s{S_W}, 1
        s_lshr_b32 s59, s{S_W}, 1
        s_lshl1_add_u32 s60, s58, s59
        s_lshl2_add_u32 s61, s{S_TB3}, s60
        s_mul_i32 s{self.S_OUT}, s61, {16*896}
        s_add_u32 s{self.S_OUT}, s{self.S_OUT}, s57
        v_lshrrev_b32 v{T}, 2, v1
        v_lshlrev_b32 v{T}, 7, v{T}
        v_and_b32 v{T+1}, 3, v1
        v_lshl_add_u32 v{T}, v{T+1}, 5, v{T}
        v_bfe_u32 v{T+1}, v1, 3, 1
        v_lshl_add_u32 v{T}, v{T+1}, 4, v{T}
        s_mul_i32 s62, s59, {2*14336}
        v_add_u32 v{RA3}, s62, v{T}
        v_xor_b32 v{RA3+1}, 16, v{RA3}
        v_lshrrev_b32 v{T}, 1, v1
        v_and_b32 v{T+1}, 1, v1
        v_lshlrev_b32 v{self.V_SP}, 7, v{T}
        v_lshl_add_u32 v{self.V_SP}, v{T+1}, 3, v{self.V_SP}
        s_lshl_b32 s{self.S_SF}, s56, 12
        s_lshr_b32 s62, s{S_TB3}, 4
        s_lshl2_add_u32 s{self.S_SF}, s62, s{self.S_SF}
        s_add_u32 s{self.S_SF}, s{self.S_SF}, {WS_FLAG + 3*32768}
        v_lshlrev_b32 v{self.V_SA}, 12, v{T}
        v_lshl_add_u32 v{self.V_SA}, v{T+1}, 4, v{self.V_SA}
        s_lshl_b32 s{self.S_SB}, s56, 18
        s_lshl_b32 s62, s61, 5
        s_add_u32 s{self.S_SB}, s{self.S_SB}, s62
        s_add_u32 s{self.S_SB}, s{self.S_SB}, {WS_ST}
        v_bfe_u32 v{T}, v1, 1, 2
        v_lshlrev_b32 v{T}, 7, v{T}
        v_lshl_add_u32 v{self.V_HP}, v{T+1}, 2, v{T}
        s_lshl1_add_u32 s62, s{S_TB3}, s59
        s_lshl_b32 s62, s62, 9
        s_lshl3_add_u32 s62, s58, s62
        s_add_u32 s{self.S_HF}, s62, {WS_FLAG + 2*32768}
        """
        for tl in range(2):
            s += f"""
            s_xor_b32 s62, s61, {tl}
            s_mul_i32 s62, s62, 28
            s_mul_i32 s63, s59, 14
            s_add_u32 s62, s62, s63
            s_lshl_b32 s62, s62, 10
            s_add_u32 s{self.S_HB+4*tl}, s62, {WS_H}
            s_add_u32 s{self.S_HB+4*tl+1}, s{self.S_HB+4*tl}, 4096
            s_add_u32 s{self.S_HB+4*tl+2}, s{self.S_HB+4*tl}, 8192
            s_add_u32 s{self.S_HB+4*tl+3}, s{self.S_HB+4*tl}, 12288
            """
        return [l.strip() for l in s.strip().split("\n") if l.strip()]

    def wout_piece(self, i, n, lds):
        k = self.k
        if i == 3:
            row = (208 if n & 1 else 96) + 4 * (n >> 1); vo = self.VS
        else:
            row = (32 * i if i < 3 else 112 + 32 * (i - 4)) + 8 * n; vo = self.VN
        k(f"s_add_u32 s{self.S_WOL}, s{self.S_WOB}, {row*896}")
        k(f"s_add_u32 m0, s{S_XL}, {lds}")
        self.t_wo = k(f"buffer_load_dwordx4 v{vo}, s[{SRD_WOUT}:{SRD_WOUT+3}], s{self.S_WOL} offen lds")
    def wout_dma_items(self):
        return [lambda pc=pc: self.wout_piece(pc >> 2, pc & 3, RB + pc * 1024) for pc in range(14)]
    def wout_reads(self, half):
        k = self.k
        for cl in range(2):
            for hb in range(7):
                hh = 7 * half + hb
                for tau in range(4):
                    ar = ((cl * 7 + (hh >> 1)) * 4 + tau) * 4 + 2 * (hh & 1)
                    k(f"ds_read_b64_tr_b16 a[{ar}:{ar+1}], v{self.RA3 + (tau >> 1)} offset:{RB + cl*14336 + hb*2048 + (tau & 1)*8}")

    def phase3(self):
        k = self.k
        T = self.V_S
        HB = 16; AC = 128; XV = 192; SV = 200
        OA = self.OA
        h_s = self.poll_issue(self.V_SP, self.V_PL, soff=f"s{self.S_SF}")
        k(f"""
        buffer_load_dwordx4 v[{XV}:{XV+3}], v{OA}, s[{SRD_X}:{SRD_X+3}], s{self.S_OUT} offen
        buffer_load_dwordx4 v[{XV+4}:{XV+7}], v{OA}, s[{SRD_X}:{SRD_X+3}], s{self.S_OUT} offen offset:16
        """)
        k.wait_vm(self.t_wo)
        self.stamp("p3 wo1")
        k("s_barrier")
        self.wout_reads(0)
        k.wait_vm(self.t_h)
        self.flag(2)
        self.stamp("h out")
        k(f"s_cmp_eq_u32 s{S_DB}, 7\ns_cbranch_scc1 L_done")
        k("s_waitcnt lgkmcnt(0)\ns_barrier")
        self.stamp("p3 bar2")
        for pc in range(14, 28): self.wout_piece(pc >> 2, pc & 3, RB + (pc - 14) * 1024)
        self.stamp("p3 dma2")
        self.poll_check(h_s)
        self.stamp("p3 spoll")
        k(f"""
        s_add_u32 s59, s{self.S_SB}, {32*4096}
        buffer_load_dwordx4 v[{SV}:{SV+3}], v{self.V_SA}, s[{SRD_WS}:{SRD_WS+3}], s{self.S_SB} offen sc1
        """)
        t_sv = k(f"buffer_load_dwordx4 v[{SV+4}:{SV+7}], v{self.V_SA}, s[{SRD_WS}:{SRD_WS+3}], s59 offen sc1")
        h_h = self.poll_issue(self.V_HP, self.V_PL, soff=f"s{self.S_HF}")
        k.wait_vm(self.t_wo)
        self.stamp("p3 wo landed")
        k("s_barrier")
        self.wout_reads(1)
        self.stamp("wout ready")
        k(f"""
        s_lshl_b32 s61, s{S_W}, 11
        s_add_u32 s61, s61, {SX}
        v_add_u32 v{T}, s61, v{self.V_L16}
        v_lshrrev_b32 v{T+1}, 4, v1
        v_lshlrev_b32 v{T+1}, 9, v{T+1}
        v_and_b32 v{T+2}, 15, v1
        v_lshl_add_u32 v{T+1}, v{T+2}, 3, v{T+1}
        v_add_u32 v{T+1}, s61, v{T+1}
        s_lshl_b32 s56, s{S_W}, 12
        s_add_u32 s56, s56, {X3}
        v_add_u32 v{T+3}, s56, v{self.V_L16}
        s_xor_b32 s56, s{S_W}, 2
        s_lshl_b32 s56, s56, 12
        s_add_u32 s56, s56, {X3}
        v_add_u32 v{T+2}, s56, v{self.V_L16}
        """)
        k(f"""
        v_lshrrev_b32 v{T+4}, 5, v1
        v_mul_u32_u24 v{T+4}, 28672, v{T+4}
        v_and_b32 v{T+5}, 31, v1
        v_lshl_add_u32 v{T+4}, v{T+5}, 6, v{T+4}
        s_min_u32 s56, s{self.S_HB}, s{self.S_HB+4}
        s_lshl_b32 s57, s{S_DB}, 11
        s_add_u32 s{self.S_HB+8}, s56, s57
        """)
        k.wait_vm(t_sv)
        k(f"""
        ds_write_b128 v{T}, v[{SV}:{SV+3}]
        ds_write_b128 v{T}, v[{SV+4}:{SV+7}] offset:1024
        """)
        for tau in range(4):
            k(f"ds_read_b64_tr_b16 v[{SV+2*tau}:{SV+2*tau+1}], v{T+1} offset:{tau*128}")
        self.poll_check(h_h)
        self.stamp("h ready")
        if self.opt.get("hg", 1):
            k(f"buffer_load_dword v{self.V_PL}, v{T+4}, s[{SRD_WS}:{SRD_WS+3}], s{self.S_HB+8} offen sc1")
        th = {}
        for tl in (1, 0):
            for i in range(14):
                r = HB + (tl * 14 + i) * 4
                th[(tl, i)] = k(f"buffer_load_dwordx4 v[{r}:{r+3}], v{self.V_L16}, s[{SRD_WS}:{SRD_WS+3}], s{self.S_HB+4*tl+(i>>2)} offen offset:{(i&3)*1024} sc1")
        k("s_waitcnt lgkmcnt(0)")
        self.stamp("h issued")
        for tl in (1, 0):
            for i in range(14):
                if i % 2 == 0: k.wait_vm(th[(tl, i + 1)])
                if i in (0, 6): self.stamp(f"g3 {tl} {i}")
                r = HB + (tl * 14 + i) * 4
                for tau in range(4):
                    ac = AC + (tl * 4 + tau) * 4
                    ar = (i * 4 + tau) * 4
                    src = "0" if i == 0 else f"v[{ac}:{ac+3}]"
                    k(f"v_mfma_f32_16x16x32_bf16 v[{ac}:{ac+3}], a[{ar}:{ar+3}], v[{r}:{r+3}], {src}")
                    if tl == 0 and i == 1:
                        ac = AC + (4 + tau) * 4
                        k(f"ds_write_b128 v{T+2}, v[{ac}:{ac+3}] offset:{tau*1024}")
                if tl == 0 and i == 8: k("s_waitcnt lgkmcnt(0)\ns_barrier")
                if tl == 0 and i == 9:
                    for tau in range(4):
                        ac = AC + (4 + tau) * 4
                        k(f"ds_read_b128 v[{ac}:{ac+3}], v{T+3} offset:{tau*1024}")
        self.stamp("gemm3")
        E = 80; O = 96; C = 104
        k(f"v_mov_b32 v{C}, {f2u(-LOG2E)}\ns_waitcnt lgkmcnt(0)")
        for tau in range(4):
            for hh in range(2):
                g = AC + tau * 4 + 2 * hh
                e = E + 4 * hh
                r = g + 16
                k(f"""
                v_pk_add_f32 v[{g}:{g+1}], v[{g}:{g+1}], v[{r}:{r+1}]
                v_cvt_pk_bf16_f32 v{g+1}, v{g}, v{g+1}
                v_lshlrev_b32 v{g}, 16, v{g+1}
                v_and_b32 v{g+1}, s{S_MASK}, v{g+1}
                v_pk_mul_f32 v[{e}:{e+1}], v[{g}:{g+1}], v[{C}:{C+1}] op_sel_hi:[1,0]
                v_exp_f32 v{e}, v{e}
                v_exp_f32 v{e+1}, v{e+1}
                """)
            for hh in range(2):
                e = E + 4 * hh
                k(f"""
                v_pk_add_f32 v[{e}:{e+1}], v[{e}:{e+1}], 1.0 op_sel_hi:[1,0]
                v_rcp_f32 v{e}, v{e}
                v_rcp_f32 v{e+1}, v{e+1}
                """)
            for hh in range(2):
                g = AC + tau * 4 + 2 * hh
                e = E + 4 * hh
                p = 2 * tau + hh
                k(f"""
                v_pk_mul_f32 v[{g}:{g+1}], v[{g}:{g+1}], v[{e}:{e+1}]
                v_cvt_pk_bf16_f32 v{g+1}, v{g}, v{g+1}
                v_lshlrev_b32 v{g}, 16, v{g+1}
                v_and_b32 v{g+1}, s{S_MASK}, v{g+1}
                v_lshlrev_b32 v{e}, 16, v{SV+p}
                v_and_b32 v{e+1}, s{S_MASK}, v{SV+p}
                v_pk_mul_f32 v[{g}:{g+1}], v[{g}:{g+1}], v[{e}:{e+1}]
                v_cvt_pk_bf16_f32 v{g+1}, v{g}, v{g+1}
                v_lshlrev_b32 v{g}, 16, v{g+1}
                v_and_b32 v{g+1}, s{S_MASK}, v{g+1}
                v_lshlrev_b32 v{e}, 16, v{XV+p}
                v_and_b32 v{e+1}, s{S_MASK}, v{XV+p}
                v_pk_add_f32 v[{g}:{g+1}], v[{g}:{g+1}], v[{e}:{e+1}]
                v_cvt_pk_bf16_f32 v{O+p}, v{g}, v{g+1}
                """)
            if tau & 1:
                o = O + 4 * (tau >> 1)
                k(f"buffer_store_dwordx4 v[{o}:{o+3}], v{OA}, s[{SRD_OUT}:{SRD_OUT+3}], s{self.S_OUT} offen offset:{16*(tau>>1)}")
        self.stamp("out stored")
        k("L_done:")

    def build(self):
        k = self.k
        o = self.opt
        self.prologue()
        self.pace = o.get("pace_k", 64)
        self.kgen()
        self.stamp("kgen done")
        k(f"v_and_b32 v{self.V_P}, 31, v1\nv_lshlrev_b32 v{self.V_P}, 2, v{self.V_P}")
        k.wait_vm(self.t_xn[0])
        self.ut_mfma()
        self.ut_store()
        self.pace = o.get("pace_g1", 64)
        self.gemm1(0, mid={2: self.stats_addr, o.get('wg1_c', 10): (lambda: self.w_gather(1) if o.get('wg', 1) else None)})
        self.stamp("gemm z2")
        k("s_barrier")
        for b in range(4): self.queue_chunk(1, b, 4 * b, half=(b == 3))
        self.next_bg = k.est + o.get("t_z1", 0)
        self.poll_check(self.h_go, sleep=8, bump=True)
        k.wait_vm(self.t_ut)
        self.flag(0)
        self.gelu2()
        self.stats_publish()
        self.stamp("stats out")
        self.w_on = True
        self.gemm1(1, mid={1: self.u_poll_issue, 8: self.u_load, 9: self.z_addr, o.get("st_c", 12): self.stats_issue})
        for p in range(14):
            a = self.V_ACC + 2 * p
            k(f"v_cvt_pk_bf16_f32 v{self.V_Z1+p}, v{a}, v{a+1}")
        self.stamp("gemm z1")
        self.stats_collect_normalize()
        self.stamp("z2 stored")
        k("s_barrier")
        self.k_write()
        self.u_write_copy8()
        with k.atomic():
            k("s_waitcnt lgkmcnt(0)\ns_barrier")
        self.stamp("copy8")
        self.u_copies(mid=self.k_expand)
        k.wait_vm(self.t_z)
        self.flag(1)
        self.stamp("z2 out")
        self.conv()
        self.stamp("conv done")
        self.phase2()
        self.phase3()
        self.finish()

HEADER_IN = open("recurrent_scan__ssm_conv_s4d__mixer_gmlp__prompt.s.ref").read().split("; Override")[0]

def generate(stop=None, stamps=False, name=NAME, opt=None):
    g = Gen(stop, stamps, opt)
    g.build()
    body = g.k.finalize()
    txt = HEADER_IN
    txt += f"; @launch grid=(256,1,1) block=(256,1,1) lds=163840\n"
    txt += '.amdgcn_target "amdgcn-amd-amdhsa--gfx950"\n.text\n'
    txt += f".globl {name}\n.p2align 8\n.type {name},@function\n{name}:\n"
    txt += body
    txt += "L_exit:\n    s_endpgm\nL_code_end:\n"
    txt += f".set CODE_BYTES, L_code_end - {name}\n"
    txt += f""".section .rodata,"a"
.p2align 6
.amdhsa_kernel {name}
  .amdhsa_next_free_vgpr 512
  .amdhsa_next_free_sgpr 102
  .amdhsa_accum_offset 256
  .amdhsa_group_segment_fixed_size 0
  .amdhsa_kernarg_size 120
  .amdhsa_user_sgpr_count 2
  .amdhsa_user_sgpr_kernarg_segment_ptr 1
  .amdhsa_system_sgpr_workgroup_id_x 1
  .amdhsa_float_denorm_mode_32 3
.end_amdhsa_kernel
"""
    return txt, g

if __name__ == "__main__":
    out = sys.argv[1] if len(sys.argv) > 1 else "k.s"
    txt, g = generate(None, stamps=len(sys.argv) > 2)
    open(out, "w").write(txt)
    print("nops inserted", g.k.n_nops, "instr", sum(1 for i in g.k.ins if i.kind != "meta"), "est", g.k.est)
```

```python
import re

TRANS = ("v_exp_f32", "v_log_f32", "v_rcp_f32", "v_rsq_f32", "v_sqrt_f32", "v_sin_f32", "v_cos_f32",
         "v_rcp_iflag_f32", "v_exp_f16", "v_log_f16", "v_rcp_f16", "v_rsq_f16", "v_sqrt_f16", "v_sin_f16", "v_cos_f16")

_reg_re = re.compile(r"^(-|\|)?(abs\()?([vas])(\d+|\[(\d+):(\d+)\])")

def parse_regs(tok):
    t = tok.strip()
    t = t.lstrip("-")
    if t.startswith("abs("): t = t[4:]
    t = t.lstrip("|")
    if t.startswith("vcc"): return [("s", 106), ("s", 107)]
    if t.startswith("exec"): return [("s", 126), ("s", 127)]
    if t == "m0": return [("s", 124)]
    m = re.match(r"^([vas])(\d+)\b", t)
    if m: return [(m.group(1), int(m.group(2)))]
    m = re.match(r"^([vas])\[(\d+):(\d+)\]", t)
    if m: return [(m.group(1), i) for i in range(int(m.group(2)), int(m.group(3)) + 1)]
    return []

class Ins:
    __slots__ = ("text", "op", "ops", "mods", "kind", "wr", "rd", "srcc", "is_label", "dpp", "ws")
    def __init__(self, text):
        self.text = text
        self.is_label = text.endswith(":")
        self.op = ""; self.ops = []; self.mods = ""; self.kind = ""; self.wr = []; self.rd = []; self.srcc = []
        self.dpp = False; self.ws = 1
        if self.is_label or text.startswith(";") or text.startswith("."):
            self.kind = "meta"; self.ws = 0
            return
        body = text.split(";")[0].strip()
        sp = body.split(None, 1)
        self.op = sp[0]
        rest = sp[1] if len(sp) > 1 else ""
        ops = []; cur = ""; depth = 0
        for ch in rest:
            if ch == "[": depth += 1
            if ch == "]": depth -= 1
            if ch == "," and depth == 0:
                ops.append(cur.strip()); cur = ""
            else: cur += ch
        if cur.strip(): ops.append(cur.strip())
        if ops:
            last = ops[-1].split(None, 1)
            ops[-1] = last[0]
            self.mods = last[1] if len(last) > 1 else ""
        self.ops = ops
        op = self.op
        R = [parse_regs(o) for o in ops]
        flat = lambda xs: [r for x in xs for r in x]
        if op.startswith("v_mfma"):
            self.kind = "mfma"; self.wr = R[0]; self.rd = flat(R[1:3]); self.srcc = R[3] if len(R) > 3 else []
        elif op.startswith("v_"):
            self.kind = "trans" if op.replace("_e32", "").replace("_e64", "") in TRANS else "valu"
            self.dpp = "_dpp" in op or "row_" in self.mods or "quad_perm" in self.mods or "wave_" in self.mods
            if op.startswith("v_permlane") and "swap" in op:
                self.wr = flat(R[:2]); self.rd = flat(R[:2])
            elif op.startswith("v_cmp"):
                self.wr = R[0]; self.rd = flat(R[1:])
            elif "_co_" in op:
                self.wr = flat(R[:2]); self.rd = flat(R[2:])
            elif op.startswith("v_nop"):
                pass
            else:
                self.wr = R[0]; self.rd = flat(R[1:])
                if op.startswith(("v_fmac", "v_dot2c", "v_pk_fmac", "v_writelane")) or self.dpp or "sdwa" in op:
                    self.rd = self.rd + R[0]
                if op.startswith("v_cndmask") and len(ops) == 3:
                    self.rd = self.rd + [("s", 106), ("s", 107)]
        elif op.startswith("ds_"):
            self.kind = "ds"
            if op.startswith(("ds_read", "ds_bpermute", "ds_permute", "ds_swizzle")):
                self.wr = R[0]; self.rd = flat(R[1:])
            else:
                self.rd = flat(R)
        elif op.startswith(("buffer_", "global_", "flat_")):
            self.kind = "vmem"
            lds = " lds" in (" " + self.mods) or "_lds_" in op
            if "load" in op and not lds:
                self.wr = R[0]; self.rd = flat(R[1:])
            else:
                self.rd = flat(R)
            if lds: self.rd = self.rd + [("s", 124)]
        elif op.startswith("s_"):
            self.kind = "salu"
            if op == "s_nop":
                self.ws = int(ops[0], 0) + 1
            elif op.startswith(("s_cmp", "s_cbranch", "s_branch", "s_waitcnt", "s_barrier", "s_endpgm", "s_sleep", "s_setprio")):
                self.rd = flat(R)
            elif op.startswith(("s_load", "s_memtime", "s_memrealtime", "s_buffer_load")):
                self.kind = "smem"; self.wr = R[0]; self.rd = flat(R[1:])
            else:
                self.wr = R[0]; self.rd = flat(R[1:])
                if "saveexec" in op: self.wr = self.wr + [("s", 126), ("s", 127)]
        else:
            raise ValueError("unknown instr: " + text)

def mfma_passes(op):
    if "32x32x16" in op or "32x32x8" in op: return 8
    if "16x16x32" in op or "16x16x16" in op: return 4
    raise ValueError(op)

def required_gap(p, c):
    need = 0
    pw = set(p.wr); cr = set(c.rd); cw = set(c.wr); cc = set(c.srcc)
    vec = lambda s: {r for r in s if r[0] in "va"}
    sca = lambda s: {r for r in s if r[0] == "s"}
    if p.kind in ("valu", "trans"):
        if c.kind == "mfma" and vec(pw) & (cr | cc): need = max(need, 2)
        if c.kind in ("valu", "trans"):
            if c.dpp and vec(pw) & cr: need = max(need, 2)
            if c.op.startswith("v_permlane") and vec(pw) & cr: need = max(need, 2)
            if c.op.startswith(("v_readlane", "v_readfirstlane")) and vec(pw) & cr: need = max(need, 1)
            if sca(pw) & cr:
                need = max(need, 4 if c.op.startswith(("v_readlane", "v_writelane")) else 2)
            if p.kind == "trans" and vec(pw) & (cr | cw): need = max(need, 1)
            if ("sdwa" in p.op or "op_sel" in p.mods) and not p.op.startswith("v_pk") and vec(pw) & (cr | cw): need = max(need, 1)
            if p.op.startswith("v_dot") and vec(pw) & (cr | cw):
                if not (c.op == p.op and len(c.ops) == 4 and set(parse_regs(c.ops[3])) == vec(pw) and not (vec(pw) & set(parse_regs(c.ops[1]) + parse_regs(c.ops[2])))):
                    need = max(need, 3)
        if p.kind == "trans" and c.kind in ("vmem", "ds") and vec(pw) & cr: need = max(need, 1)
        if p.op.startswith("v_dot") and c.kind in ("vmem", "ds", "mfma") and vec(pw) & (cr | cc | cw): need = max(need, 3)
        if c.kind == "vmem" and sca(pw) & cr: need = max(need, 5)
        if c.kind in ("salu", "smem") and sca(pw) & cr: need = max(need, 1)
    if p.kind == "mfma":
        n = mfma_passes(p.op)
        t_ov = {4: 6, 8: 10}[n]; t_rd = {4: 8, 8: 12}[n]; t_war = {4: 3, 8: 7}[n]
        if c.kind == "mfma":
            if pw & cr: need = max(need, t_rd)
            if pw & cc:
                if not (p.wr == c.srcc and mfma_passes(c.op) == n): need = max(need, t_ov)
            elif pw & cw: need = max(need, t_ov)
        else:
            if pw & (cr | cw): need = max(need, t_rd)
            if c.kind in ("valu", "trans") and set(p.srcc) & cw: need = max(need, t_war)
    if p.kind == "salu":
        if ("s", 124) in pw and c.kind == "vmem" and ("s", 124) in cr: need = max(need, 1)
        if ("s", 124) in pw and c.op.startswith(("v_writelane", "v_readlane")) and ("s", 124) in cr: need = max(need, 1)
    if p.kind == "vmem" and ("store" in p.op) and ("x4" in p.op or "x3" in p.op):
        if vec(set(p.rd)) & cw: need = max(need, 2)
    return need

VOP3_ONLY = ("v_pk_", "v_fma", "v_lshl_add", "v_lshl_or", "v_cvt_pk", "v_bfe", "v_perm_", "v_alignbit", "v_max3", "v_mul_lo", "v_dot2_", "v_ldexp", "v_mfma", "ds_", "buffer_", "global_", "v_add3", "s_load", "v_writelane")
def icost(t):
    t = t.split(";")[0].strip()
    op = t.split()[0]
    if op in TRANS: return 8
    if op.startswith(VOP3_ONLY) or "dpp" in op or "abs(" in t: return 5
    if op.startswith(("s_waitcnt", "s_cbranch", "s_branch", "s_movk", "s_nop", "s_sleep")): return 4
    for tok in re.findall(r"[ ,](0x[0-9a-f]+|\d+)(?=,|$| )", t):
        if int(tok, 0) > 64: return 5
    return 4

class K:
    def __init__(self):
        self.ins = []
        self.vm = 0
        self.lg = 0
        self.vm_done = 0; self.lg_done = 0
        self.uid = 0
        self.optional = 0
        self.est = 0.0; self.last_mfma = -100.0
        self.bg_hook = None; self.in_bg = 0; self.nobg = 0
    def cost(self, i):
        if i.kind == "meta": return 0
        c = icost(i.text)
        if c == 8: return 8.3
        c += 0.35
        if i.op.startswith("ds_write"):
            c += 4 * len(i.rd)
        return c
    def __call__(self, s):
        if self.bg_hook is not None and not self.in_bg and not self.nobg and not self.optional:
            self.in_bg += 1
            self.bg_hook()
            self.in_bg -= 1
        last = None
        for l in s.split("\n"):
            l = l.strip()
            if not l: continue
            i = Ins(l)
            self.ins.append(i)
            if i.kind == "mfma":
                self.est = max(self.est, self.last_mfma + 16); self.last_mfma = self.est; self.est += 8
            else:
                self.est += self.cost(i)
            if i.kind == "vmem" and self.optional != 1:
                self.vm += 1; last = self.vm
            if i.kind == "ds":
                self.lg += 1; last = self.lg
            if i.op == "s_waitcnt" and self.optional != 1:
                m = re.search(r"vmcnt\((\d+)\)", l)
                if m: self.vm_done = max(self.vm_done, self.vm - int(m.group(1)))
                m = re.search(r"lgkmcnt\((\d+)\)", l)
                if m: self.lg_done = max(self.lg_done, self.lg - int(m.group(1)))
        return last
    def c(self, s): self.ins.append(Ins("; " + s))
    def label(self, base="L"):
        self.uid += 1
        return f"{base}_{self.uid}"
    def branch(self):
        k = self
        class Ctx:
            def __enter__(c):
                c.sv = (k.vm, k.lg, k.vm_done, k.lg_done, k.optional); k.optional = 2
            def __exit__(c, *a):
                k.vm, k.lg, k.vm_done, k.lg_done, k.optional = c.sv
        return Ctx()
    def atomic(self):
        k = self
        class Ctx:
            def __enter__(c): k.nobg += 1
            def __exit__(c, *a): k.nobg -= 1
        return Ctx()
    def wait_vm(self, tag):
        with self.atomic():
            if tag <= self.vm_done: return
            n = self.vm - tag
            assert n >= 0
            self(f"s_waitcnt vmcnt({min(n, 63)})")
    def wait_lg(self, tag):
        with self.atomic():
            if tag <= self.lg_done: return
            n = self.lg - tag
            assert n >= 0
            self(f"s_waitcnt lgkmcnt({min(n, 15)})")
    def wait_both(self, vtag, ltag):
        with self.atomic():
            self(f"s_waitcnt vmcnt({min(self.vm - vtag, 63)}) lgkmcnt({min(self.lg - ltag, 15)})")
    def finalize(self):
        out = []
        W = 24
        nn = 0
        brpos = {}
        def scan(pos, dist, c, depth=0):
            need = 0
            i = pos
            while i >= 0 and dist < W:
                p = out[i]
                if p.is_label:
                    for bp in brpos.get(p.text[:-1], []):
                        if depth < 4: need = max(need, scan(bp, dist, c, depth + 1))
                    j = i - 1
                    while j >= 0 and out[j].kind == "meta" and not out[j].is_label: j -= 1
                    if j >= 0 and out[j].op in ("s_branch", "s_endpgm"): break
                elif p.kind != "meta":
                    g = required_gap(p, c)
                    if g > dist: need = max(need, g - dist)
                    dist += p.ws
                i -= 1
            return need
        for c in self.ins:
            if c.kind != "meta":
                need = scan(len(out) - 1, 0, c)
                while need > 0:
                    k = min(need, 16)
                    out.append(Ins(f"s_nop {k-1}")); need -= k; nn += 1
            out.append(c)
            if c.op.startswith(("s_cbranch", "s_branch")):
                brpos.setdefault(c.ops[0], []).append(len(out) - 1)
        self.n_nops = nn
        self.out = out
        return "\n".join((i.text if i.is_label else "    " + i.text) for i in out) + "\n"

def v(b, n=1): return f"v{b}" if n == 1 else f"v[{b}:{b+n-1}]"
def s(b, n=1): return f"s{b}" if n == 1 else f"s[{b}:{b+n-1}]"
def a(b, n=1): return f"a{b}" if n == 1 else f"a[{b}:{b+n-1}]"
```

```python
import g6 as g4, sys, json
class G(g4.Gen):
    def stamp(self,name):
        n=sum(1 for i in self.k.ins if i.kind!='meta')
        print(f"{name:14s} est {self.k.est:8.0f} ninstr {n} q {len(self.q)} wg {getattr(self,'w_g',0)}")
g=G(None,False,json.loads(sys.argv[1]) if len(sys.argv)>1 else {})
g.build()
```

```python
import sys, math, struct
sys.path.insert(0, "work")
from kg import *

NAME = "recurrent_scan__ssm_conv_s4d__mixer_gmlp__prompt_kernel"
def f2u(x): return struct.unpack("<I", struct.pack("<f", x))[0]
LOG2E = math.log2(math.e)

WS_FLAG = 0x0
WS_STAT = 0x40000
WS_UT   = 0x100000
WS_Z    = 0x400000
WS_ST   = 0x800000
WS_H    = 0xC00000
WS_XN   = 0x1000000
WS_DBG  = 0x2000000
WS_SIZE = 0x10000000

S_WG = 2; S_W = 3; S_TB = 4; S_FB = 5; S_RHO = 6; S_RHO2 = 7
SRD_X = 8; SRD_WIN = 12; SRD_WSP = 16; SRD_WOUT = 20; SRD_WS = 24; SRD_OUT = 28; SRD_DBG = 32
S_CO = 36
S_XL = 44
S_W7 = 45
S_CP = 46; S_F4 = 47
S_TB3 = 48; S_DB = 49
S_T0 = 50
S_XO = 52; S_XB = 53
S_MASK = 54
S_ONES = 55
S_XF = 100; S_WG1 = 101
S_WB = 94; S_WO = 95; S_XE = 96; S_FL = 97

RB = 0
RA = 57344
SP = RA + 14 * 7168
UC = RA
UCP = 4160
UCH = 8 * UCP
KX = UC + 2 * UCH
KXP = 4608
KC = KX + 2 * KXP
CRED = 139264
assert CRED >= KC + 2048
X2 = RA
X3 = RB
SX = RB + 16384
assert CRED + 16384 <= SP

class Gen:
    V_XD = 2; V_XR = 4; V_WD = 6; V_TR = 13; V_T = 15
    V_X = 16; V_B = 72; V_TMP = 88; V_ACC = 128; V_Z = 156; V_ID = 184
    V_PAR = 192; V_U = 192; V_KP = 200; V_P = 206
    V_S = 212; V_WR = 220; V_WV = 224
    V_G = 228; V_GD = 229; V_XS = 234
    V_YS = 230; V_DS = 231; V_BSP = 232; V_L16 = 233
    V_DT = 238; V_STAMP = 239; V_Z1 = 240

    def __init__(self, stop=None, stamps=False, opt=None):
        self.k = K()
        self.stop = stop
        self.stamps = stamps
        self.opt = opt or {}
        self.typ = self.opt.get("typ", 0)
        self.nstamp = 0
        self.stamp_names = []
        self.q = []
        self.ev = []
        self.ev2 = []
        self.pace = 64
        self.next_bg = 0; self.next_ev = 0
        self.w_on = False
        self.k.bg_hook = self.bg_hook
        self.t_chunk = {}; self.vm_at_half = {}

    def bg_hook(self):
        k = self.k
        if self.ev2 and k.est >= self.ev2[0][0]: self.ev2.pop(0)[1]()
        if self.ev and k.est >= max(self.ev[0][0], self.next_ev):
            g = self.ev.pop(0)[1]()
            self.next_ev = k.est + (g if g is not None else 32)
            self.next_bg = max(self.next_bg, self.next_ev)
            return
        if k.est < self.next_bg: return
        if self.q:
            if k.est < getattr(self.q[0], "nb", 0): return
            f = self.q.pop(0)
            g = f()
            self.next_bg = k.est + (g if g is not None else self.pace)
        elif self.w_on:
            g = self.w_step()
            if g: self.next_bg = k.est + g
    def at(self, f, nb):
        f.nb = nb
        self.q.append(f)
    def bg_flush(self):
        self.k.in_bg += 1
        while self.ev: self.ev.pop(0)[1]()
        while self.q: self.q.pop(0)()
        self.k.in_bg -= 1
    def stamp(self, name):
        if not self.stamps: return
        k = self.k
        with k.atomic():
            k(f"""
            s_memtime s[98:99]
            s_waitcnt lgkmcnt(0)
            s_sub_u32 s98, s98, s{S_T0}
            v_writelane_b32 v{self.V_STAMP}, s98, {self.nstamp}
            """)
        self.stamp_names.append(name)
        self.nstamp += 1
    def srd(self, dst, src, nbytes):
        self.k(f"""
        s_mov_b64 s[{dst}:{dst+1}], s[{src}:{src+1}]
        s_mov_b32 s{dst+2}, {nbytes}
        s_mov_b32 s{dst+3}, 0x20000
        """)
    def dump(self, regs, slot, file="v"):
        k = self.k
        n = len(regs)
        k.nobg += 1
        k(f"""
        s_lshl_b32 s98, s{S_WG}, 2
        s_add_u32 s98, s98, s{S_W}
        s_mul_i32 s98, s98, {n*256}
        s_add_u32 s98, s98, {WS_DBG + slot * 0x1000000}
        v_lshlrev_b32 v{self.V_DT}, 2, v1
        """)
        for i, r in enumerate(regs):
            k(f"buffer_store_dword {file}{r}, v{self.V_DT}, s[{SRD_WS}:{SRD_WS+3}], s98 offen")
            k("s_add_u32 s98, s98, 256")
        k.nobg -= 1
    def finish(self):
        k = self.k
        self.w_on = False; self.q = []
        if self.stamps:
            self.dump([self.V_STAMP], 7)
        k("s_endpgm")
    def xreduce_g(self, r, tmp):
        self.k(f"""
        v_mov_b32 v{tmp}, v{r}
        v_permlane16_swap_b32 v{r}, v{tmp}
        v_add_f32 v{r}, v{r}, v{tmp}
        v_mov_b32 v{tmp}, v{r}
        v_permlane32_swap_b32 v{r}, v{tmp}
        v_add_f32 v{r}, v{r}, v{tmp}
        """)
    def rbf(self, dst, src):
        self.k(f"v_cvt_pk_bf16_f32 v{dst}, v{src}, v{src}\nv_and_b32 v{dst}, s{S_MASK}, v{dst}")

    def poll_issue(self, addr_v, dst_v, srd=SRD_WS, soff="0"):
        t = self.k(f"buffer_load_dword v{dst_v}, v{addr_v}, s[{srd}:{srd+3}], {soff} offen sc1")
        return (t, addr_v, dst_v, srd, soff)
    def poll_check(self, h, sleep=1, sc=56, old='0', bump=False):
        k = self.k
        t, addr_v, dst_v, srd, soff = h
        L = k.label("L_poll")
        with k.atomic():
            k.wait_vm(t)
            k(f"""
            v_cmp_eq_u32 vcc, {old}, v{dst_v}
            s_cbranch_vccz {L}_ok
            """)
            with k.branch():
                k(f"""
                s_mov_b32 s{sc}, 0
                {L}:
                buffer_load_dword v{dst_v}, v{addr_v}, s[{srd}:{srd+3}], {soff} offen sc1
                s_add_u32 s{sc}, s{sc}, 1
                s_waitcnt vmcnt(0)
                v_cmp_eq_u32 vcc, {old}, v{dst_v}
                s_cbranch_vccz {L}_ok
                {self.bump_txt() if bump else ''}
                s_sleep {sleep}
                s_cmp_lt_u32 s{sc}, 100000
                s_cbranch_scc1 {L}
                """)
            k(f"{L}_ok:")
    def set_flag(self, soff_expr_setup, sreg):
        k = self.k
        T = self.V_S
        k(soff_expr_setup + f"""
        v_mov_b32 v{T+6}, 0
        v_mov_b32 v{T+7}, 1
        s_mov_b64 exec, 1
        buffer_store_dword v{T+7}, v{T+6}, s[{SRD_WS}:{SRD_WS+3}], s{sreg} offen sc1
        s_mov_b64 exec, -1
        """)
    def flag(self, stage):
        if stage == 0: self.set_flag("", S_FL)
        else: self.set_flag(f"s_add_u32 s56, s{S_FL}, {stage*32768}\n", 56)

    def prologue(self):
        k = self.k
        T = self.V_TMP; P = self.V_PAR; XD = self.V_XD; X = self.V_X; XS = self.V_XS
        NT = 'nt' if self.opt.get('nt', 1) else ''
        k.nobg += 1
        k(f"""
        s_cmp_ge_u32 s2, 256
        s_cbranch_scc1 L_exit
        s_load_dwordx16 s[64:79], s[0:1], 0
        s_load_dwordx8 s[80:87], s[0:1], 64
        s_load_dwordx4 s[88:91], s[0:1], 96
        s_load_dwordx2 s[92:93], s[0:1], 112
        """)
        if self.stamps:
            k(f"s_memtime s[{S_T0}:{S_T0+1}]")
            k(f"v_mov_b32 v{self.V_STAMP}, 0")
        k(f"""
        s_getpc_b64 s[56:57]
        s_and_b32 s56, s56, 0xffffff00
        s_mov_b32 s58, CODE_BYTES
        s_mov_b32 s59, 0x20000
        s_lshr_b32 s61, s2, 3
        s_lshl_b32 s60, s61, 12
        v_lshl_add_u32 v{T}, v0, 4, s60
        buffer_load_dwordx4 v[{self.V_S}:{self.V_S+3}], v{T}, s[56:59], 0 offen
        v_lshrrev_b32 v{T+1}, 6, v0
        v_and_b32 v1, 63, v0
        v_readfirstlane_b32 s{S_W}, v{T+1}
        s_and_b32 s60, s2, 7
        s_sub_u32 s62, s61, 4
        s_cmp_ge_u32 s61, 28
        s_cselect_b32 s62, s62, s61
        s_mul_i32 s63, s60, 28
        s_add_u32 s{S_CP}, s63, s62
        s_lshl_b32 s62, s{S_CP}, 10
        v_lshl_add_u32 v{T+2}, v0, 2, s62
        v_xor_b32 v{T+3}, 256, v{T+2}
        v_lshrrev_b32 v{T+4}, 7, v0
        s_lshl_b32 s62, s{S_CP}, 2
        v_lshl_add_u32 v{T+4}, v{T+4}, 1, s62
        s_lshr_b32 s62, s60, 1
        s_lshl_b32 s62, s62, 3
        s_and_b32 s63, s61, 7
        s_add_u32 s{S_TB}, s62, s63
        s_and_b32 s62, s60, 1
        s_lshr_b32 s{S_RHO2}, s61, 3
        s_lshl2_add_u32 s{S_FB}, s62, s{S_RHO2}
        s_lshl1_add_u32 s{S_RHO2}, s{S_RHO2}, s63
        s_add_u32 s{S_RHO}, s{S_RHO2}, s62
        s_mov_b32 s{S_RHO2}, s{S_RHO}
        s_sub_u32 s62, s{S_RHO}, 7
        s_min_u32 s{S_RHO}, s{S_RHO}, s62
        s_sub_u32 s62, s{S_RHO}, 7
        s_min_u32 s{S_RHO}, s{S_RHO}, s62
        s_and_b32 s{S_RHO2}, s{S_RHO2}, 7
        s_lshl_b32 s{S_RHO2}, s{S_RHO2}, 1
        v_lshrrev_b32 v{T+5}, 3, v1
        v_lshrrev_b32 v{T+6}, 4, v1
        v_and_b32 v{T+7}, 7, v1
        v_xor_b32 v{T+6}, v{T+6}, v{T+7}
        v_lshl_add_u32 v{T+5}, v{T+1}, 4, v{T+5}
        v_mul_u32_u24 v{XD}, 896, v{T+5}
        v_lshl_add_u32 v{XD}, v{T+6}, 4, v{XD}
        v_xor_b32 v{XD+1}, 64, v{XD}
        v_add_u32 v{XD+1}, {8*896 - 1024}, v{XD+1}
        s_mul_i32 s{S_XB}, s{S_TB}, {64*896}
        s_add_u32 s{S_XE}, s{S_XB}, 896
        s_lshl_b32 s62, s{S_RHO}, 7
        s_add_u32 s{S_XO}, s{S_XB}, s62
        s_mul_i32 s{S_XL}, s{S_W}, 14336
        s_lshl3_add_u32 s{S_FL}, s{S_TB}, s{S_FB}
        s_mov_b32 s{SRD_X+2}, {2048*448*2}
        s_mov_b32 s{SRD_X+3}, 0x20000
        s_waitcnt lgkmcnt(0)
        s_mov_b64 s[{SRD_X}:{SRD_X+1}], s[64:65]
        global_load_dword v{P}, v{T+2}, s[66:67] {NT}
        global_load_dword v{P+1}, v{T+2}, s[68:69] {NT}
        global_load_dword v{P+2}, v{T+2}, s[70:71] {NT}
        global_load_dword v{P+3}, v{T+2}, s[72:73] {NT}
        global_load_dword v{P+4}, v{T+3}, s[70:71] {NT}
        global_load_dword v{P+5}, v{T+3}, s[72:73] {NT}
        global_load_ushort v{P+6}, v{T+4}, s[74:75]
        """)
        self.t_par = k(f"global_load_ushort v{P+7}, v{T+4}, s[76:77]")
        NX0 = self.opt.get("nx0", 1)
        for j in range(NX0): self.x_pair(j)
        self.stamp("x issued")
        self.srd(SRD_WS, 92, WS_SIZE)
        k(f"v_lshlrev_b32 v{self.V_L16}, 4, v1")
        self.srd(SRD_WIN, 80, 448 * 1792 * 2)
        self.srd(SRD_DBG, 90, 256)
        self.win_gather()
        self.srd(SRD_WSP, 82, 2048 * 2048 * 2)
        self.w_burst(0)
        self.srd(SRD_WOUT, 86, 896 * 448 * 2)
        self.srd(SRD_OUT, 88, 2048 * 448 * 2)
        k(f"""
        s_mov_b32 s{S_MASK}, 0xffff0000
        s_mov_b32 s{S_ONES}, 0x3f803f80
        s_cmp_ge_u32 s2, 224
        s_cselect_b32 s{S_F4}, s2, s{S_CP}
        s_lshl_b32 s{S_FL}, s{S_FL}, 7
        s_lshl2_add_u32 s{S_FL}, s{S_W}, s{S_FL}
        s_and_b32 s56, s61, 3
        s_lshl2_add_u32 s{S_TB3}, s60, s56
        s_lshr_b32 s{S_DB}, s61, 2
        s_mul_i32 s{S_W7}, s{S_W}, 7168
        s_add_u32 s{S_W7}, s{S_W7}, {RA}
        s_lshl_b32 s56, s{S_TB}, 7
        s_lshl_b32 s57, s{S_W}, 5
        s_add_u32 s56, s56, s57
        v_and_b32 v{T}, 15, v1
        v_lshl_add_u32 v{T+2}, v{T}, 1, s56
        v_mov_b32 v{self.V_BSP}, v{T+2}
        """)
        k(f"""
        s_mul_i32 s60, s{S_FB}, 224
        s_xor_b32 s61, s{S_FB}, 1
        s_mul_i32 s61, s61, 224
        s_add_u32 s61, s61, 1792
        s_and_b32 s62, s{S_W}, 1
        s_mul_i32 s62, s62, {32*3584}
        s_add_u32 s60, s60, s62
        s_add_u32 s61, s61, s62
        s_lshr_b32 s62, s{S_W}, 1
        s_add_u32 s62, s62, s{S_RHO}
        """)
        for c0, dsts in ((0, (0, 4)), (4, (1, 5)), (8, (2, 6)), (10, (3, None)), (12, (None, 7))):
            k(f"""
            s_add_u32 s56, s62, {c0 >> 1}
            s_sub_u32 s57, s56, 7
            s_min_u32 s56, s56, s57
            s_mul_i32 s56, s56, {64*3584}
            """)
            if dsts[0] is not None: k(f"s_add_u32 s{S_CO+dsts[0]}, s56, s61")
            if dsts[1] is not None: k(f"s_add_u32 s{S_CO+dsts[1]}, s56, s60")
        WD = self.V_WD
        for n in range(7):
            k(f"""
            v_add_u32 v{T}, {64*n}, v1
            v_mul_u32_u24 v{T+1}, 4682, v{T}
            v_lshrrev_b32 v{T+1}, 16, v{T+1}
            v_mul_u32_u24 v{T+2}, 14, v{T+1}
            v_sub_u32 v{T+2}, v{T}, v{T+2}
            v_and_b32 v{T+3}, 0x13, v{T+1}
            v_and_b32 v{T+4}, 4, v{T+1}
            v_lshl_or_b32 v{T+3}, v{T+4}, 1, v{T+3}
            v_and_b32 v{T+4}, 8, v{T+1}
            v_lshrrev_b32 v{T+4}, 1, v{T+4}
            v_or_b32 v{T+3}, v{T+3}, v{T+4}
            v_mul_u32_u24 v{T+3}, 3584, v{T+3}
            v_lshl_add_u32 v{WD+n}, v{T+2}, 4, v{T+3}
            """)
            if n & 3: k(f"v_subrev_u32 v{WD+n}, {(n&3)*1024}, v{WD+n}")
        XR = self.V_XR; WR = self.V_WR; WV = self.V_WV
        k(f"""
        v_and_b32 v{T}, 15, v1
        v_lshrrev_b32 v{T+1}, 4, v1
        v_lshrrev_b32 v{T+2}, 1, v{T}
        v_xor_b32 v{T+2}, v{T+1}, v{T+2}
        v_lshlrev_b32 v{T+3}, 7, v{T}
        v_lshl_add_u32 v{T+2}, v{T+2}, 4, v{T+3}
        v_add_u32 v{XR}, s{S_XL}, v{T+2}
        v_xor_b32 v{XR+1}, 64, v{XR}
        v_lshrrev_b32 v{T+3}, 3, v1
        v_lshlrev_b32 v{T+3}, 12, v{T+3}
        v_lshl_add_u32 v{WV}, v{T+6}, 4, v{T+3}
        v_xor_b32 v{WV+1}, 64, v{WV}
        v_add_u32 v{WV+1}, {8*4096 - 1024}, v{WV+1}
        s_lshl_b32 s{S_WB}, s{S_TB}, 18
        s_mul_i32 s56, s{S_W}, {1024 + 65536}
        s_add_u32 s{S_WB}, s{S_WB}, s56
        v_lshrrev_b32 v{T+3}, 2, v1
        v_and_b32 v{T+4}, 7, v{T+3}
        v_and_b32 v{T+3}, 8, v{T+3}
        v_lshl_add_u32 v{T+3}, v{T+3}, 1, v{T+4}
        v_mul_u32_u24 v{T+3}, 224, v{T+3}
        v_and_b32 v{T+4}, 3, v1
        v_lshl_add_u32 v{T+3}, v{T+4}, 3, v{T+3}
        v_add_u32 v{self.V_TR}, {RA}, v{T+3}
        v_add_u32 v{self.V_TR+1}, {RA + 0x10000}, v{T+3}
        """)
        ID = self.V_ID
        k(f"""
        v_and_b32 v{T+3}, 1, v1
        v_lshlrev_b32 v{T+3}, 4, v{T+3}
        v_mov_b32 v{T+4}, 0x3f80
        v_lshlrev_b32 v{T+3}, v{T+3}, v{T+4}
        v_lshrrev_b32 v{T+4}, 3, v{T}
        v_sub_u32 v{T+4}, v{T+1}, v{T+4}
        v_bfe_u32 v{T+5}, v1, 1, 2
        v_lshl_or_b32 v{T+4}, v{T+4}, 2, v{T+5}
        """)
        for h in range(2):
            for r in range(4):
                k(f"v_cmp_eq_u32 vcc, {h*8+r}, v{T+4}")
                k(f"v_cndmask_b32 v{ID+h*4+r}, 0, v{T+3}, vcc")
        k.nobg -= 1
        self.w_g = 0; self.w_i = 0; self.w_r = 0; self.w_tag = {}; self.w_rtag = {}; self.w_time = {}; self.w_rtime = {}
        def misc():
            self.leader_clear()
            k(f"global_load_ushort v{self.V_BSP}, v{self.V_BSP}, s[84:85]")
            return 10
        self.q.append(misc)
        for j in range(NX0, 7): self.q.append(lambda j=j: self.x_pair(j))
        self.stamp("setup done")

    def x_pair(self, j):
        k = self.k
        XD = self.V_XD
        k(f"s_add_u32 m0, s{S_XL}, {RB + j*2048}")
        k(f"buffer_load_dwordx4 v{XD}, s[{SRD_X}:{SRD_X+3}], s{S_XO} offen lds")
        self.t_x = k(f"buffer_load_dwordx4 v{XD+1}, s[{SRD_X}:{SRD_X+3}], s{S_XO} offen offset:1024 lds")
        if j < 6:
            k(f"""
            s_add_u32 s{S_XO}, s{S_XO}, 128
            s_cmp_eq_u32 s{S_XO}, s{S_XE}
            s_cselect_b32 s{S_XO}, s{S_XB}, s{S_XO}
            """)
        return self.opt.get('x_gap', 100)

    def queue_chunk(self, part, b, slot0, half=False):
        k = self.k
        so = S_CO + 4 * part + b
        def dma(n):
            if (n & 3) == 0: k(f"s_add_u32 m0, s{S_W7}, {slot0*7168 + n*1024}")
            return k(f"buffer_load_dwordx4 v{self.V_WD+n}, s[{SRD_WIN}:{SRD_WIN+3}], s{so} offen offset:{(n&3)*1024} lds")
        if half:
            def grp(ns):
                L = k.label("L_hc")
                k(f"s_cmp_ge_u32 s{S_W}, 2\ns_cbranch_scc1 {L}")
                with k.branch():
                    for n in ns: dma(n)
                k(f"{L}:")
                self.t_chunk[(part, b)] = None
                self.vm_at_half[part] = k.vm
                return int(len(ns) * self.pace * 0.75)
            for ns in (range(4), range(4, 7)):
                f = lambda ns=ns: grp(ns)
                f.cb = (part, b); self.q.append(f)
        else:
            def pr(ns):
                k(f"s_add_u32 m0, s{S_W7}, {slot0*7168 + (ns[0] & 4)*1024}")
                for n in ns:
                    t = k(f"buffer_load_dwordx4 v{self.V_WD+n}, s[{SRD_WIN}:{SRD_WIN+3}], s{so} offen offset:{(n&3)*1024} lds")
                self.t_chunk[(part, b)] = t
                return int(len(ns) * self.pace * 1.5)
            for ns in ((0, 1), (2, 3), (4, 5), (6,)):
                f = lambda ns=ns: pr(ns)
                f.cb = (part, b); self.q.append(f)

    NWB = 7
    def w_issue_txt(self, u, half=None):
        p = u >> 2; tau = u & 3
        t = ""
        if half != 1:
            if tau == 0:
                t += f"""
                s_add_u32 s{S_WO}, s{S_RHO2}, {2*p}
                s_and_b32 s{S_WO}, s{S_WO}, 15
                s_lshl_b32 s{S_WO}, s{S_WO}, 6
                s_add_u32 s{S_WO}, s{S_WO}, s{S_WB}
                """
            else:
                t += f"s_xor_b32 s{S_WO}, s{S_WO}, {(tau ^ (tau - 1)) << 16}\n"
        t += f"s_add_u32 m0, s{S_XL}, {RB + ((u + 3) % self.NWB) * 2048}\n"
        for i in ((0, 1) if half is None else (half,)):
            t += f"buffer_load_dwordx4 v{self.V_WV+i}, s[{SRD_WSP}:{SRD_WSP+3}], s{S_WO} offen offset:{i*1024} lds\n"
        return t
    def wout_first_txt(self):
        return f"""
        s_lshl2_add_u32 s90, s2, s{S_W}
        s_mul_i32 s90, s90, 896
        v_min_u32 v{self.V_G}, 6, v1
        v_lshlrev_b32 v{self.V_G}, 7, v{self.V_G}
        buffer_load_dword v{self.V_GD}, v{self.V_G}, s[{SRD_WOUT}:{SRD_WOUT+3}], s90 offen
        """
    def w_burst(self, h):
        k = self.k
        n1 = self.opt.get("wb1", 24)
        ld = f"buffer_load_dword v{self.V_GD}, v{self.V_G}, s[{SRD_WSP}:{SRD_WSP+3}], s93 offen"
        if h == 0:
            k(f"""
            v_min_u32 v{self.V_G}, {n1 - 1}, v1
            v_lshlrev_b32 v{self.V_G}, 12, v{self.V_G}
            s_lshl_b32 s93, s{S_TB}, 12
            s_lshl4_add_u32 s93, s{S_W}, s93
            s_add_u32 s93, s93, s{S_RHO2}
            s_lshl_b32 s93, s93, 6
            s_bitcmp1_b32 s2, 3
            s_cbranch_scc1 L_nb0
            """)
            with k.branch(): k(ld)
            k("L_nb0:")
        elif h == 1:
            k(f"v_max_u32 v{self.V_G}, {n1}, v1\nv_lshlrev_b32 v{self.V_G}, 12, v{self.V_G}\n" + ld)
            k(self.wout_first_txt())
            self.stamp(f"w burst")
        else:
            while self.q: self.q.pop(0)()
            k(self.wout_first_txt())
            k(f"v_lshlrev_b32 v{self.V_G}, 12, v1\ns_barrier\n" + ld)
            self.stamp(f"w burst")
    def w_step(self, force=False):
        k = self.k
        lat = self.opt.get("w_lat", 700)
        u = self.w_r
        if u < 32 and u < self.w_g and (force or k.est >= self.w_time[u] + lat):
            p = u >> 2; tau = u & 3
            t = self.w_tag[u]
            if isinstance(t, tuple):
                if k.vm_done <= t[1]: k(f"s_waitcnt vmcnt({min(k.vm - t[1], 63)})")
            else: k.wait_vm(t)
            for par in range(2):
                ar = ((2*p + par) * 4 + tau) * 4
                t = k(f"ds_read_b128 a[{ar}:{ar+3}], v{self.V_XR+par} offset:{RB + ((u + 3) % self.NWB) * 2048}")
            self.w_rtag[u] = t; self.w_rtime[u] = k.est
            self.w_r += 1
            return 1
        u = self.w_g
        if u >= 32 or u - self.w_r >= self.NWB: return 0
        if u >= self.NWB:
            if not force and k.est < self.w_rtime[u - self.NWB] + self.opt.get('w_rl', 100): return 0
            k.wait_lg(self.w_rtag[u - self.NWB])
        t = k(self.w_issue_txt(u))
        self.w_tag[u] = t; self.w_time[u] = k.est + (self.opt.get("w_mall", 500) if 4 <= u < 8 else 0)
        self.w_g += 1
        return 2 * self.pace
    def wout_gather(self):
        k = self.k
        G = self.V_G
        k(f"""
        v_mul_u32_u24 v{G}, 896, v{G}
        s_and_b32 s90, s{S_TB3}, 3
        s_lshl2_add_u32 s90, s{S_W}, s90
        s_mul_i32 s90, s90, {56*896}
        s_min_u32 s91, s{S_DB}, 6
        s_lshl_b32 s91, s91, 7
        s_add_u32 s90, s90, s91
        buffer_load_dword v{self.V_GD}, v{G}, s[{SRD_WOUT}:{SRD_WOUT+3}], s90 offen
        """)
    def win_gather(self):
        k = self.k
        G = self.V_P
        k(f"""
        v_min_u32 v{G}, 12, v1
        v_lshlrev_b32 v{G}, 7, v{G}
        s_lshr_b32 s90, s2, 1
        s_mul_i32 s90, s90, {7*1792}
        s_and_b32 s91, s2, 1
        s_mul_i32 s91, s91, 896
        s_add_u32 s90, s90, s91
        v_lshrrev_b32 v{G}, 2, v0
        v_lshrrev_b32 v{G+1}, 3, v{G}
        v_min_u32 v{G+1}, 6, v{G+1}
        v_mul_u32_u24 v{G+1}, 1792, v{G+1}
        v_and_b32 v{G}, 7, v{G}
        v_min_u32 v{G}, 6, v{G}
        v_lshl_add_u32 v{G}, v{G}, 7, v{G+1}
        buffer_load_dword v{self.V_GD}, v{G}, s[{SRD_WIN}:{SRD_WIN+3}], s90 offen
        """)
    def w_finish(self):
        self.k.in_bg += 1
        while self.ev2: self.ev2.pop(0)[1]()
        while self.w_r < 32:
            if not self.w_step(): self.w_step(force=True)
        self.k.in_bg -= 1
        self.w_on = False

    def cmul(self, d, a_, b):
        self.k(f"""
        v_pk_mul_f32 v[{d}:{d+1}], v[{a_}:{a_+1}], v[{b}:{b+1}] op_sel:[0,0] op_sel_hi:[0,1]
        v_pk_fma_f32 v[{d}:{d+1}], v[{a_}:{a_+1}], v[{b}:{b+1}], v[{d}:{d+1}] op_sel:[1,1,0] op_sel_hi:[1,0,1] neg_lo:[0,1,0]
        """)
    def cexp(self, d, al, be, p, t):
        k = self.k
        pf = f2u(float(p))
        k(f"""
        v_mul_f32 v{t}, {pf}, v{al}
        v_mul_f32 v{d+1}, {pf}, v{be}
        v_exp_f32 v{t}, v{t}
        v_fract_f32 v{d+1}, v{d+1}
        v_cos_f32 v{d}, v{d+1}
        v_sin_f32 v{d+1}, v{d+1}
        v_mul_f32 v{d}, v{t}, v{d}
        v_mul_f32 v{d+1}, v{t}, v{d+1}
        """)
    def wave_sum(self, r, tmp):
        k = self.k
        for sh in (8, 4, 2, 1):
            k(f"v_add_f32_dpp v{r}, v{r}, v{r} row_ror:{sh} row_mask:0xf bank_mask:0xf")
        self.xreduce_g(r, tmp)

    def kgen(self):
        k = self.k
        P = self.V_PAR
        R = 72
        AL = R; BE = R + 2; CR = R + 4
        T = R + 8
        WA = R + 16; RAD = R + 24
        Q = R + 28
        Z8 = R + 44; Z128 = R + 46
        PA = R + 48; PB = R + 50; TM = R + 52
        PK = R + 56
        FL = R + 72; FH = R + 88
        AC = self.V_Z1
        k.nobg += 1
        k(f"s_add_u32 s56, s{S_W7}, {10*7168}\nv_lshl_add_u32 v{WA}, v1, 2, s56")
        for c in range(1, 8): k(f"v_xor_b32 v{WA+c}, {c*32}, v{WA}")
        k(f"""
        v_and_b32 v{T}, 15, v1
        v_and_b32 v{T+1}, 7, v1
        v_lshlrev_b32 v{T+1}, 5, v{T+1}
        v_and_b32 v{T+2}, 48, v1
        v_xor_b32 v{T+1}, v{T+1}, v{T+2}
        v_lshl_add_u32 v{T+1}, v{T}, 8, v{T+1}
        v_add_u32 v{RAD}, s56, v{T+1}
        """)
        for kk in range(1, 4): k(f"v_xor_b32 v{RAD+kk}, {kk*64}, v{RAD}")
        k.wait_vm(self.t_par)
        self.stamp("params in")
        k.nobg -= 1
        self.t0 = k.est
        o = self.opt
        self.queue_chunk(0, 0, 0); self.queue_chunk(0, 1, 4); self.queue_chunk(0, 2, 8, half=True)
        if self.typ == 0:
            self.q[0].nb = self.t0 + o.get("a_x", 3500)
            self.ev = [(self.t0 + o.get("a_b", 900), lambda: self.w_burst(1))]
        else:
            self.q[0].nb = self.t0 + o.get("b_x", 1000)
            self.ev = [(self.t0 + o.get("b_b", 3600), lambda: self.w_burst(2))]
        k(f"""
        v_lshlrev_b32 v{T}, 16, v{P+6}
        v_mul_f32 v{T}, {f2u(LOG2E)}, v{T}
        v_exp_f32 v{T}, v{T}
        v_lshlrev_b32 v{self.V_DS}, 16, v{P+7}
        """)
        self.rbf(T, T)
        for m in range(2):
            un = (lambda d, sr: f"v_lshlrev_b32 v{d}, 16, v{sr}") if m == 0 else (lambda d, sr: f"v_and_b32 v{d}, s{S_MASK}, v{sr}")
            k(un(AL + m, P)); k(un(BE + m, P + 1)); k(un(CR + 2*m, P + 2)); k(un(CR + 2*m + 1, P + 3))
            k(un(T + 2 + 2*m, P + 4)); k(un(T + 3 + 2*m, P + 5))
            k(f"v_mul_f32 v{AL+m}, {f2u(LOG2E)}, v{AL+m}")
            k(f"v_exp_f32 v{AL+m}, v{AL+m}")
        k(f"v_cvt_pk_bf16_f32 v{T+1}, v{AL}, v{AL+1}")
        k(f"v_lshlrev_b32 v{AL}, 16, v{T+1}\nv_and_b32 v{AL+1}, s{S_MASK}, v{T+1}")
        for m in range(2):
            k(f"v_mul_f32 v{AL+m}, v{AL+m}, v{T}")
            k(f"v_mul_f32 v{AL+m}, {f2u(-LOG2E)}, v{AL+m}")
            k(f"v_mul_f32 v{BE+m}, v{BE+m}, v{T}")
            k(f"v_mul_f32 v{BE+m}, {f2u(1.0/(2*math.pi))}, v{BE+m}")
        k(f"v_add_f32 v{T+1}, abs(v{CR}), abs(v{CR+1})")
        for r in (CR+2, CR+3, T+2, T+3, T+4, T+5):
            k(f"v_add_f32 v{T+1}, v{T+1}, abs(v{r})")
        self.wave_sum(T + 1, T + 2)
        k(f"""
        v_mul_f32 v{T+1}, v{T+1}, v{T}
        v_mul_f32 v{T+1}, {f2u(1.001)}, v{T+1}
        v_frexp_exp_i32_f32 v{T+1}, v{T+1}
        v_sub_u32 v{T+2}, 15, v{T+1}
        v_subrev_u32 v{T+3}, 14, v{T+1}
        v_ldexp_f32 v{self.V_YS}, 1.0, v{T+3}
        """)
        for r in range(4):
            k(f"v_mul_f32 v{CR+r}, v{CR+r}, v{T}")
            k(f"v_ldexp_f32 v{CR+r}, v{CR+r}, v{T+2}")
        HS = f2u(16384.0)
        SH = 64
        k(f"s_mov_b32 s{SH}, {HS}")
        def pack(dst, c, neg=False):
            k(f"v_cvt_pk_f16_f32 v{dst}, v{c}, {'-' if neg else ''}v{c+1}")
        def wr2(r0, p0, p1):
            k(f"ds_write2st64_b32 v{WA + r0}, v{p0}, v{p1} offset0:{r0} offset1:{r0+8}")
        def wr1(r0, p0):
            k(f"ds_write_b32 v{WA + (r0 & 7)}, v{p0} offset:{r0*256}")
        def rd(f):
            for kk in range(4): t = k(f"ds_read_b128 v[{f+4*kk}:{f+4*kk+3}], v{RAD+kk}")
            return t
        pend = []
        def mm():
            if not pend: return
            t, tag, first = pend.pop()
            k.wait_lg(tag)
            for kk in range(4):
                src = "0" if (first and kk == 0) else f"v[{AC+4*t}:{AC+4*t+3}]"
                k(f"v_mfma_f32_16x16x32_f16 v[{AC+4*t}:{AC+4*t+3}], v[{FH+4*kk}:{FH+4*kk+3}], v[{FL+4*kk}:{FL+4*kk+3}], {src}")
        for ps in range(2):
            al = AL + ps; be = BE + ps; C = CR + 2*ps
            self.cexp(Q + 2, al, be, 1, T)
            self.cexp(Z8, al, be, 8, T + 1)
            mm()
            self.cexp(Z128, al, be, 128, T + 2)
            self.cmul(Q + 4, Q + 2, Q + 2)
            self.cmul(Q + 6, Q + 4, Q + 2)
            self.cmul(Q + 8, Q + 4, Q + 4)
            self.cmul(Q + 10, Q + 8, Q + 2)
            self.cmul(Q + 12, Q + 8, Q + 4)
            self.cmul(Q + 14, Q + 8, Q + 6)
            cur = C
            for r in range(16):
                pack(PK + r, cur, neg=True)
                if r >= 8: wr2(r - 8, PK + r - 8, PK + r)
                if r < 15:
                    nx = PA if cur != PA else PB
                    self.cmul(nx, cur, Z8); cur = nx
            rd(FL)
            k(f"v_mul_f32 v{PA}, s{SH}, v{Z128}\nv_mul_f32 v{PA+1}, s{SH}, v{Z128+1}")
            k(f"v_mov_b32 v{PK}, 0x7400")
            pack(PK + 8, PA)
            wr2(0, PK, PK + 8)
            for j in range(1, 8):
                k(f"v_mul_f32 v{TM}, s{SH}, v{Q+2*j}\nv_mul_f32 v{TM+1}, s{SH}, v{Q+2*j+1}")
                pack(PK + j, TM)
                self.cmul(TM + 2, PA, Q + 2*j)
                pack(PK + 8 + j, TM + 2)
                wr2(j, PK + j, PK + 8 + j)
            pend.append((0, rd(FH), ps == 0))
            cur = PA
            def nextP():
                nonlocal cur
                nx = PA if cur != PA else PB
                self.cmul(nx, cur, Z128); cur = nx
            for i in (2, 3):
                nextP()
                for jj, j in enumerate((0, 2, 4, 6)):
                    idx = (i - 2) * 4 + jj
                    if j == 0: pack(PK + idx, cur)
                    else:
                        self.cmul(TM, cur, Q + 2*j); pack(PK + idx, TM)
            mm()
            for i in (4, 5, 6, 7):
                nextP()
                for jj, j in enumerate((0, 4)):
                    idx = (i - 4) * 2 + jj
                    if j == 0: pack(PK + 8 + idx, cur)
                    else:
                        self.cmul(TM, cur, Q + 2*j); pack(PK + 8 + idx, TM)
                    wr2(idx, PK + idx, PK + 8 + idx)
            pend.append((1, rd(FH), ps == 0))
            for i in range(8, 17):
                nextP()
                pack(PK + (i - 8), cur)
                wr1(i - 8, PK + (i - 8))
                if i == 13: mm()
            pend.append((2, rd(FH), ps == 0))
        A1 = T
        k(f"""
        s_or_b32 s56, s{S_W}, 1
        s_lshr_b32 s56, s56, 1
        s_mul_i32 s57, s56, 3072
        s_add_u32 s57, s57, {SP}
        v_add_u32 v{A1}, s57, v{self.V_L16}
        """)
        mm()
        self.stamp("kgen mfma")
        k.nobg += 1
        k(f"s_bitcmp0_b32 s{S_W}, 0\ns_cbranch_scc1 L_kg_even")
        with k.branch():
            for t in range(3):
                k(f"ds_write_b128 v{A1}, v[{AC+4*t}:{AC+4*t+3}] offset:{t*1024}")
        k(f"""
        L_kg_even:
        s_waitcnt lgkmcnt(0)
        s_barrier
        s_bitcmp1_b32 s{S_W}, 0
        s_cbranch_scc1 L_kg_odd
        """)
        KP = self.V_KP
        with k.branch():
            for t in range(3):
                k(f"ds_read_b128 v[{FL+4*t}:{FL+4*t+3}], v{A1} offset:{t*1024}")
            k(f"v_mov_b32 v{T+2}, {f2u(2.0**-14)}\ns_waitcnt lgkmcnt(0)")
            for r in range(0, 12, 2):
                k(f"v_pk_add_f32 v[{AC+r}:{AC+r+1}], v[{AC+r}:{AC+r+1}], v[{FL+r}:{FL+r+1}]")
            for r in range(0, 12, 2):
                k(f"v_pk_mul_f32 v[{AC+r}:{AC+r+1}], v[{AC+r}:{AC+r+1}], v[{T+2}:{T+3}] op_sel_hi:[1,0]")
            k(f"""
            v_cvt_pk_f16_f32 v{KP}, v{AC+3}, v{AC+2}
            v_cvt_pk_f16_f32 v{KP+1}, v{AC+1}, v{AC}
            v_cvt_pk_f16_f32 v{KP+2}, v{AC+4}, v{AC+5}
            v_cvt_pk_f16_f32 v{KP+3}, v{AC+6}, v{AC+7}
            v_cvt_pk_f16_f32 v{KP+4}, v{AC+8}, v{AC+9}
            v_cvt_pk_f16_f32 v{KP+5}, v{AC+10}, v{AC+11}
            """)
        k("L_kg_odd:")
        k.nobg -= 1
        self.queue_chunk(0, 3, 10)
        if self.typ == 1: self.q[0].nb = k.est + self.opt.get("b_d", 2300)

    def k_write(self):
        k = self.k
        T = self.V_S; KP = self.V_KP
        k.nobg += 1
        k(f"""
        s_lshr_b32 s56, s{S_W}, 1
        s_mul_i32 s57, s56, {KXP}
        s_add_u32 s57, s57, {KX}
        s_bitcmp0_b32 s{S_W}, 0
        s_cbranch_scc1 L_kw_even
        """)
        with k.branch():
            k(f"""
            v_lshl_add_u32 v{T}, v1, 3, s57
            v_mov_b32 v{T+2}, 0
            v_mov_b32 v{T+3}, 0
            ds_write_b64 v{T}, v[{T+2}:{T+3}]
            s_branch L_kw_j
            """)
        k("L_kw_even:")
        with k.branch():
            k(f"""
            v_and_b32 v{T+2}, 15, v1
            v_lshrrev_b32 v{T+3}, 4, v1
            v_lshrrev_b32 v{T+4}, 5, v1
            v_lshlrev_b32 v{T+4}, 8, v{T+4}
            v_lshl_add_u32 v{T+4}, v{T+2}, 4, v{T+4}
            v_and_b32 v{T+5}, 1, v{T+3}
            v_xor_b32 v{T+5}, 1, v{T+5}
            v_lshl_add_u32 v{T+4}, v{T+5}, 3, v{T+4}
            v_add_u32 v{T+4}, s57, v{T+4}
            ds_write_b64 v{T+4}, v[{KP}:{KP+1}] offset:512
            s_lshl_b32 s57, s56, 10
            s_add_u32 s57, s57, {KC}
            v_cmp_gt_u32 vcc, 32, v1
            v_lshlrev_b32 v{T+5}, 2, v{T+2}
            v_lshlrev_b32 v{T+6}, 3, v{T+2}
            v_cndmask_b32 v{T+5}, v{T+5}, v{T+6}, vcc
            v_lshl_add_u32 v{T+5}, v{T+3}, 7, v{T+5}
            v_add_u32 v{T+5}, s57, v{T+5}
            v_mov_b32 v{T+6}, 64
            v_cndmask_b32 v{T+6}, v{T+6}, 4, vcc
            v_add_u32 v{T+6}, v{T+6}, v{T+5}
            ds_write_b32 v{T+5}, v{KP+2}
            ds_write_b32 v{T+6}, v{KP+3}
            v_lshlrev_b32 v{T+7}, 1, v{T+2}
            v_lshl_add_u32 v{T+7}, v{T+3}, 7, v{T+7}
            v_add_u32 v{T+7}, s57, v{T+7}
            ds_write_b16 v{T+7}, v{KP+4} offset:512
            ds_write_b16_d16_hi v{T+7}, v{KP+4} offset:544
            ds_write_b16 v{T+7}, v{KP+5} offset:576
            ds_write_b16_d16_hi v{T+7}, v{KP+5} offset:608
            """)
        k("L_kw_j:")
        k.nobg -= 1

    def k_expand(self):
        k = self.k
        T = 16; D = 24; O = D + 4
        k.nobg += 1
        k(f"""
        s_lshr_b32 s56, s{S_W}, 1
        s_and_b32 s58, s{S_W}, 1
        s_lshl_b32 s57, s56, 10
        s_add_u32 s57, s57, {KC}
        s_mul_i32 s59, s56, {KXP}
        s_add_u32 s59, s59, {KX + 512}
        v_and_b32 v{T}, 127, v0
        v_lshrrev_b32 v{T+1}, 1, v{T}
        v_lshl_add_u32 v{T+1}, v{T+1}, 2, s57
        """)
        t1 = k(f"ds_read2_b32 v[{D}:{D+1}], v{T+1} offset0:128 offset1:129")
        k(f"""
        v_lshl_add_u32 v{T+2}, v{T}, 4, s59
        v_and_b32 v{T+3}, 1, v1
        v_cmp_eq_u32 vcc, 1, v{T+3}
        s_cmp_eq_u32 s58, 0
        s_cselect_b32 s60, 63, 31
        s_cselect_b32 s61, 2, 3
        s_cselect_b32 s62, 256, 0
        s_movk_i32 s63, 1024
        s_cselect_b32 s63, s63, 512
        v_and_b32 v{T+4}, s60, v1
        v_lshlrev_b32 v{T+5}, s61, v{T+4}
        s_add_u32 s62, s62, s57
        v_add_u32 v{T+5}, s62, v{T+5}
        ds_read2_b32 v[{D+8}:{D+9}], v{T+5} offset0:0 offset1:1
        """)
        t2 = k(f"ds_read_b32 v{D+10}, v{T+5} offset:8")
        k(f"""
        s_add_u32 s63, s63, s59
        v_lshl_add_u32 v{T+6}, v{T+4}, 4, s63
        """)
        k.wait_lg(t1)
        k(f"""
        v_alignbit_b32 v{D+2}, v{D+1}, v{D}, 16
        v_cndmask_b32 v{D}, v{D}, v{D+2}, vcc
        s_mov_b32 s60, 0x01000100
        s_mov_b32 s61, 0x03020302
        s_mov_b32 s62, 0x01000302
        v_perm_b32 v{O+3}, v{D}, v{D}, s60
        v_perm_b32 v{O}, v{D}, v{D}, s61
        v_perm_b32 v{O+1}, v{D}, v{D}, s62
        v_mov_b32 v{O+2}, v{O+3}
        v_cndmask_b32 v{O+1}, v{O+1}, v{O}, vcc
        ds_write_b128 v{T+2}, v[{O}:{O+3}] offset:2048
        """)
        E = D + 8; O2 = D + 12
        k(f"""
        s_cmp_eq_u32 s58, 0
        s_cselect_b32 s63, s62, 0x03020504
        s_cselect_b32 s62, s61, 0x05040504
        s_cselect_b32 s61, s60, 0x03020504
        """)
        k.wait_lg(t2)
        k(f"""
        v_perm_b32 v{O2}, v{E+2}, v{E+1}, s61
        v_perm_b32 v{O2+1}, v{E+1}, v{E}, s62
        v_perm_b32 v{O2+2}, v{E+1}, v{E}, s63
        v_perm_b32 v{O2+3}, v{E}, v{E}, s60
        ds_write_b128 v{T+6}, v[{O2}:{O2+3}]
        """)
        k.nobg -= 1

    def leader_clear(self):
        k = self.k
        C = self.V_X + 40
        with k.atomic():
            k(f"""
            s_or_b32 s90, s{S_FB}, s{S_W}
            s_cmp_lg_u32 s90, 0
            s_cbranch_scc1 L_noclear
            """)
            with k.branch():
                k(f"""
                v_mov_b32 v{C+4}, 0
                v_mov_b32 v{C+5}, 0
                v_mov_b32 v{C+6}, 0
                v_mov_b32 v{C+7}, 0
                s_lshl_b32 s90, s{S_TB}, 10
                buffer_store_dwordx4 v[{C+4}:{C+7}], v{self.V_L16}, s[{SRD_WS}:{SRD_WS+3}], s90 offen sc1
                s_add_u32 s90, s90, 32768
                buffer_store_dwordx4 v[{C+4}:{C+7}], v{self.V_L16}, s[{SRD_WS}:{SRD_WS+3}], s90 offen sc1
                s_add_u32 s90, s90, 32768
                buffer_store_dwordx4 v[{C+4}:{C+7}], v{self.V_L16}, s[{SRD_WS}:{SRD_WS+3}], s90 offen sc1
                s_add_u32 s90, s90, 32768
                buffer_store_dwordx4 v[{C+4}:{C+7}], v{self.V_L16}, s[{SRD_WS}:{SRD_WS+3}], s90 offen sc1
                v_mov_b32 v{C}, -1
                v_mov_b32 v{C+1}, -1
                v_mov_b32 v{C+2}, -1
                v_mov_b32 v{C+3}, -1
                s_lshl_b32 s90, s{S_TB}, 12
                s_add_u32 s90, s90, {WS_STAT}
                buffer_store_dwordx4 v[{C}:{C+3}], v{self.V_L16}, s[{SRD_WS}:{SRD_WS+3}], s90 offen sc1
                buffer_store_dwordx4 v[{C}:{C+3}], v{self.V_L16}, s[{SRD_WS}:{SRD_WS+3}], s90 offen offset:1024 sc1
                buffer_store_dwordx4 v[{C}:{C+3}], v{self.V_L16}, s[{SRD_WS}:{SRD_WS+3}], s90 offen offset:2048 sc1
                buffer_store_dwordx4 v[{C}:{C+3}], v{self.V_L16}, s[{SRD_WS}:{SRD_WS+3}], s90 offen offset:3072 sc1
                """)
            k("L_noclear:")
            self.vm_clear = k.vm
    def leader_go(self):
        k = self.k
        T = self.V_S
        with k.atomic():
            k(f"""
            s_or_b32 s90, s{S_FB}, s{S_W}
            s_cmp_lg_u32 s90, 0
            s_cbranch_scc1 L_nogo
            """)
            with k.branch():
                k(f"""
                s_waitcnt vmcnt({k.vm - self.vm_clear})
                v_mov_b32 v{T+7}, 1
                v_mov_b32 v{T+6}, 0
                s_lshl_b32 s90, s{S_TB}, 2
                s_mov_b64 exec, 1
                buffer_store_dword v{T+7}, v{T+6}, s[{SRD_DBG}:{SRD_DBG+3}], s90 offen sc1
                s_mov_b64 exec, -1
                """)
            k("L_nogo:")
    def bump_txt(self):
        T = self.V_S
        return f"""
        v_mov_b32 v{T+6}, {4*32768}
        v_mov_b32 v{T+7}, 1
        s_mov_b64 exec, 1
        buffer_atomic_add v{T+7}, v{T+6}, s[{SRD_WS}:{SRD_WS+3}], s{S_FL} offen sc1
        s_mov_b64 exec, -1
        """

    def ln1(self):
        k = self.k
        X = self.V_X; T = self.V_TMP
        k.wait_vm(self.t_x)
        self.stamp("x landed")
        self.leader_go()
        tg = []
        with k.atomic():
            for i in range(14):
                tg.append(k(f"ds_read_b128 v[{X+4*i}:{X+4*i+3}], v{self.V_XR + (i&1)} offset:{RB + (i>>1)*2048}"))
        S = T; M = T + 2; D = T + 4; Q = T + 12
        for i in range(14):
            if i % 2 == 0: k.wait_lg(tg[i + 1])
            for j in range(4):
                src = "0" if (i == 0 and j < 2) else f"v{S + (j&1)}"
                k(f"v_dot2_f32_bf16 v{S + (j&1)}, v{X+4*i+j}, s{S_ONES}, {src}")
        k(f"v_add_f32 v{S}, v{S}, v{S+1}")
        self.xreduce_g(S, S + 1)
        k(f"v_mul_f32 v{S}, {f2u(1.0/448)}, v{S}")
        self.rbf(M, S)
        k(f"v_sub_f32 v{S}, v{S}, v{M}")
        for p in range(56):
            d = D + (p & 3) * 2
            acc = f"v_pk_mul_f32 v[{Q}:{Q+1}], v[{d}:{d+1}], v[{d}:{d+1}]" if p == 0 else f"v_pk_fma_f32 v[{Q}:{Q+1}], v[{d}:{d+1}], v[{d}:{d+1}], v[{Q}:{Q+1}]"
            k(f"""
            v_lshlrev_b32 v{d}, 16, v{X+p}
            v_and_b32 v{d+1}, s{S_MASK}, v{X+p}
            v_pk_add_f32 v[{d}:{d+1}], v[{d}:{d+1}], v[{M}:{M+1}] op_sel_hi:[1,0] neg_lo:[0,1] neg_hi:[0,1]
            {acc}
            v_cvt_pk_bf16_f32 v{X+p}, v{d}, v{d+1}
            """)
        k(f"v_add_f32 v{Q}, v{Q}, v{Q+1}")
        self.xreduce_g(Q, Q + 1)
        k(f"v_mul_f32 v{Q}, {f2u(1.0/448)}, v{Q}")
        k(f"v_fma_f32 v{Q}, -v{S}, v{S}, v{Q}")
        k(f"v_max_f32 v{Q}, 0, v{Q}")
        self.rbf(Q, Q)
        k(f"v_add_f32 v{Q}, {f2u(1e-5)}, v{Q}")
        self.rbf(Q, Q)
        k(f"v_sqrt_f32 v{Q}, v{Q}")
        self.rbf(Q, Q)
        k(f"v_rcp_f32 v{M}, v{Q}")
        k(f"v_fma_f32 v{Q}, -v{Q}, v{M}, 1.0")
        k(f"v_fma_f32 v{M}, v{Q}, v{M}, v{M}")
        for p in range(56):
            d = D + (p & 3) * 2
            k(f"""
            v_lshlrev_b32 v{d}, 16, v{X+p}
            v_and_b32 v{d+1}, s{S_MASK}, v{X+p}
            v_pk_mul_f32 v[{d}:{d+1}], v[{d}:{d+1}], v[{M}:{M+1}] op_sel_hi:[1,0]
            v_cvt_pk_bf16_f32 v{X+p}, v{d}, v{d+1}
            """)
            if p == 40: self.ut_mfma()
            if p == 48: self.ut_store()
        self.stamp("ln1 done")

    def ut_mfma(self):
        k = self.k
        X = self.V_X; ID = self.V_ID; A = self.V_ACC
        for i in range(2):
            for h in range(2):
                k(f"v_mfma_f32_16x16x32_bf16 v[{A+(2*i+h)*4}:{A+(2*i+h)*4+3}], v[{X+4*i}:{X+4*i+3}], v[{ID+4*h}:{ID+4*h+3}], 0")
    def ut_store(self, T=None):
        k = self.k
        A = self.V_ACC; T = T or self.V_Z
        k(f"""
        v_lshrrev_b32 v{T+8}, 5, v1
        v_mul_u32_u24 v{T+8}, 7168, v{T+8}
        v_and_b32 v{T+9}, 31, v1
        v_lshl_add_u32 v{T+8}, v{T+9}, 4, v{T+8}
        s_lshl2_add_u32 s56, s{S_TB}, s{S_W}
        s_mul_i32 s56, s56, {2*7168}
        s_add_u32 s56, s56, {WS_UT}
        s_lshl_b32 s57, s{S_RHO}, 10
        s_add_u32 s57, s57, s56
        """)
        for i in range(2):
            U = T + 4 * i
            for h in range(2):
                b = A + (2*i+h)*4
                k(f"v_cvt_pk_f16_f32 v{U+2*h}, v{b}, v{b+1}")
                k(f"v_cvt_pk_f16_f32 v{U+2*h+1}, v{b+2}, v{b+3}")
        for i in range(2):
            U = T + 4 * i
            k(f"v_permlane16_swap_b32 v{U}, v{U+2}")
            k(f"v_permlane16_swap_b32 v{U+1}, v{U+3}")
        for i in range(2):
            U = T + 4 * i
            self.t_ut = k(f"buffer_store_dwordx4 v[{U}:{U+3}], v{T+8}, s[{SRD_WS}:{SRD_WS+3}], s57 offen offset:{512*i} sc1")

    def tr_addr(self, off):
        return f"v{self.V_TR + (off >> 16)} offset:{off & 0xffff}"

    def gemm1(self, part, mid=None, w_c=None):
        k = self.k
        X = self.V_X; B = self.V_B; A = self.V_ACC
        def reads(c, j):
            b = B + (c & 1) * 28 + 4 * j
            base = c * 7168 + 32 * j
            return (f"ds_read_b64_tr_b16 v[{b}:{b+1}], {self.tr_addr(base)}\n"
                    f"ds_read_b64_tr_b16 v[{b+2}:{b+3}], {self.tr_addr(base + 1792)}\n")
        tags = {}
        def arrive(b):
            while any(getattr(f, "cb", None) == (part, b) for f in self.q):
                k.in_bg += 1; self.q.pop(0)(); k.in_bg -= 1
            with k.atomic():
                t = self.t_chunk[(part, b)]
                if t is None:
                    t = self.vm_at_half[part]
                    if k.vm_done <= t: k(f"s_waitcnt vmcnt({min(k.vm - t, 63)})")
                else: k.wait_vm(t)
                k("s_barrier")
        arrive(1 if part == 0 else 0)
        if part == 1: self.queue_chunk(1, 3, 12, half=True)
        if part == 0:
            k(f"v_and_b32 v{self.V_P}, 31, v1\nv_lshlrev_b32 v{self.V_P}, 2, v{self.V_P}")
            self.h_go = self.poll_issue(self.V_P, self.V_P + 1, srd=SRD_DBG)
        self.stamp(f"g1.{part} start")
        for j in range(7): tags[(0, j)] = k(reads(0, j))
        for c in range(14):
            nxt = c + 1 if c < 13 else None
            if part == 1 and nxt in (4, 8, 12): arrive(nxt // 4)
            if part == 0 and nxt in (5, 9, 13):
                if nxt < 13: arrive(2 + (nxt - 5) // 4)
                else: k("s_barrier")
                self.queue_chunk(1, (nxt - 5) // 4, nxt - 5)
            if mid and c in mid: mid[c]()
            if c == w_c: self.w_on = True
            for j in range(7):
                if j == 0: k.wait_lg(tags[(c, 3)])
                if j == 4: k.wait_lg(tags[(c, 6)])
                b = B + (c & 1) * 28 + 4 * j
                src = "0" if c == 0 else f"v[{A+4*j}:{A+4*j+3}]"
                if part == 0:
                    mf = f"v_mfma_f32_16x16x32_bf16 v[{A+4*j}:{A+4*j+3}], v[{X+4*c}:{X+4*c+3}], v[{b}:{b+3}], {src}\n"
                else:
                    mf = f"v_mfma_f32_16x16x32_bf16 v[{A+4*j}:{A+4*j+3}], v[{b}:{b+3}], v[{X+4*c}:{X+4*c+3}], {src}\n"
                if nxt is not None:
                    tags[(nxt, j)] = k(mf + reads(nxt, j))
                    k.est += 3
                else: k(mf)

    def gelu_consts(self, C):
        c1 = -2.0 * 0.7978845608028654 * LOG2E
        c3 = c1 * 0.044715
        self.k(f"v_mov_b32 v{C}, {f2u(c1)}\nv_mov_b32 v{C+2}, {f2u(c3)}")

    def gelu2(self):
        k = self.k
        A = self.V_ACC; T = self.V_TMP
        C1 = T + 32; C3 = T + 34
        self.gelu_consts(C1)
        SUM = T + 24
        for p in range(0, 14, 2):
            ts = [T + 0, T + 4]
            pk = [T + 8, T + 9]
            for q in range(2):
                a0 = A + 2*(p+q); t = ts[q]
                k(f"""
                v_cvt_pk_bf16_f32 v{t+2}, v{a0}, v{a0+1}
                v_lshlrev_b32 v{t}, 16, v{t+2}
                v_and_b32 v{t+1}, s{S_MASK}, v{t+2}
                v_pk_mul_f32 v[{t+2}:{t+3}], v[{t}:{t+1}], v[{t}:{t+1}]
                v_pk_fma_f32 v[{t+2}:{t+3}], v[{t+2}:{t+3}], v[{C3}:{C3+1}], v[{C1}:{C1+1}] op_sel_hi:[1,0,0]
                v_pk_mul_f32 v[{t+2}:{t+3}], v[{t+2}:{t+3}], v[{t}:{t+1}]
                v_exp_f32 v{t+2}, v{t+2}
                v_exp_f32 v{t+3}, v{t+3}
                """)
            for q in range(2):
                t = ts[q]
                k(f"""
                v_pk_add_f32 v[{t+2}:{t+3}], v[{t+2}:{t+3}], 1.0 op_sel_hi:[1,0]
                v_rcp_f32 v{t+2}, v{t+2}
                v_rcp_f32 v{t+3}, v{t+3}
                """)
            for q in range(2):
                t = ts[q]
                k(f"""
                v_pk_mul_f32 v[{t}:{t+1}], v[{t}:{t+1}], v[{t+2}:{t+3}]
                v_cvt_pk_bf16_f32 v{pk[q]}, v{t}, v{t+1}
                """)
            for q in range(2):
                z = self.V_Z + 2*(p+q)
                k(f"v_lshlrev_b32 v{z}, 16, v{pk[q]}\nv_and_b32 v{z+1}, s{S_MASK}, v{pk[q]}")
                sm = SUM + 2*q; sq = SUM + 4 + 2*q
                if p == 0:
                    k(f"v_pk_mul_f32 v[{sq}:{sq+1}], v[{z}:{z+1}], v[{z}:{z+1}]")
                elif p == 2:
                    k(f"v_pk_fma_f32 v[{sq}:{sq+1}], v[{z}:{z+1}], v[{z}:{z+1}], v[{sq}:{sq+1}]")
                    k(f"v_pk_add_f32 v[{sm}:{sm+1}], v[{z-4}:{z-3}], v[{z}:{z+1}]")
                else:
                    k(f"v_pk_fma_f32 v[{sq}:{sq+1}], v[{z}:{z+1}], v[{z}:{z+1}], v[{sq}:{sq+1}]")
                    k(f"v_pk_add_f32 v[{sm}:{sm+1}], v[{sm}:{sm+1}], v[{z}:{z+1}]")
        self.V_SUM = SUM

    S_ST = 64; S_STP = 65
    def stats_addr(self):
        k = self.k
        P = self.V_P
        k(f"""
        v_lshlrev_b32 v{P+2}, 1, v1
        s_lshl2_add_u32 s56, s{S_TB}, s{S_W}
        s_lshl_b32 s56, s56, 10
        s_add_u32 s{self.S_ST}, s56, {WS_STAT}
        s_lshl_b32 s57, s{S_FB}, 7
        s_add_u32 s{self.S_STP}, s{self.S_ST}, s57
        v_bfe_u32 v{P+3}, v1, 1, 3
        v_lshlrev_b32 v{P+3}, 7, v{P+3}
        v_lshrrev_b32 v{P+4}, 4, v1
        v_lshl_add_u32 v{P+3}, v{P+4}, 5, v{P+3}
        v_and_b32 v{P+4}, 1, v1
        v_lshl_add_u32 v{P+3}, v{P+4}, 4, v{P+3}
        """)
    def stats_publish(self):
        k = self.k
        S = self.V_SUM; Q = S + 4; P = self.V_P
        O = self.V_TMP + 10
        with k.atomic():
            for r in (S, S+1, Q, Q+1):
                k(f"v_add_f32_dpp v{r}, v{r}, v{r} row_ror:8 row_mask:0xf bank_mask:0x3")
            for r in (S, S+1, Q, Q+1):
                k(f"v_add_f32_dpp v{r}, v{r+2}, v{r+2} row_ror:8 row_mask:0xf bank_mask:0xc")
            k(f"""
            v_add_f32_dpp v{O}, v{S}, v{S} row_shl:4 row_mask:0xf bank_mask:0x5
            v_add_f32_dpp v{O+1}, v{Q}, v{Q} row_shl:4 row_mask:0xf bank_mask:0x5
            v_add_f32_dpp v{O}, v{S+1}, v{S+1} row_shr:4 row_mask:0xf bank_mask:0xa
            v_add_f32_dpp v{O+1}, v{Q+1}, v{Q+1} row_shr:4 row_mask:0xf bank_mask:0xa
            s_mov_b32 s58, 0x11111111
            s_mov_b32 s59, 0x11111111
            v_add_f32_dpp v{O}, v{O}, v{O} quad_perm:[1,0,3,2] row_mask:0xf bank_mask:0xf
            v_add_f32_dpp v{O+1}, v{O+1}, v{O+1} quad_perm:[1,0,3,2] row_mask:0xf bank_mask:0xf
            v_add_f32_dpp v{O}, v{O}, v{O} quad_perm:[2,3,0,1] row_mask:0xf bank_mask:0xf
            v_add_f32_dpp v{O+1}, v{O+1}, v{O+1} quad_perm:[2,3,0,1] row_mask:0xf bank_mask:0xf
            s_mov_b64 exec, s[58:59]
            buffer_store_dwordx2 v[{O}:{O+1}], v{P+2}, s[{SRD_WS}:{SRD_WS+3}], s{self.S_STP} offen sc1
            s_mov_b64 exec, -1
            """)

    V_ST = 184
    def stats_issue(self):
        T = self.V_ST
        self.t_st = self.k(f"buffer_load_dwordx4 v[{T}:{T+3}], v{self.V_P+3}, s[{SRD_WS}:{SRD_WS+3}], s{self.S_ST} offen sc1")
    def z_addr(self):
        k = self.k
        T = self.V_P
        k(f"""
        v_bfe_u32 v{T}, v1, 4, 1
        v_lshlrev_b32 v{T}, 10, v{T}
        v_lshrrev_b32 v{T+1}, 5, v1
        v_lshlrev_b32 v{T+1}, 8, v{T+1}
        v_and_b32 v{T+2}, 15, v1
        v_lshl_add_u32 v{T+1}, v{T+2}, 4, v{T+1}
        v_add_u32 v{T}, v{T}, v{T+1}
        s_xor_b32 s56, s{S_FB}, 1
        s_lshl_b32 s56, s56, 6
        s_lshl1_add_u32 s56, s{S_TB}, s56
        s_lshr_b32 s57, s{S_W}, 1
        s_add_u32 s56, s56, s57
        s_mul_i32 s56, s56, 7168
        s_and_b32 s57, s{S_W}, 1
        s_lshl_b32 s57, s57, 9
        s_add_u32 s56, s56, s57
        s_add_u32 s66, s56, {WS_Z}
        s_add_u32 s67, s66, 4096
        """)
    def stats_collect_normalize(self):
        k = self.k
        T = self.V_ST; Z = self.V_Z
        L = k.label("L_st")
        k.nobg += 1
        k.wait_vm(self.t_st)
        chk = f"""
        v_max3_u32 v{T+4}, v{T}, v{T+1}, v{T+2}
        v_max_u32 v{T+4}, v{T+4}, v{T+3}
        v_cmp_eq_u32 vcc, -1, v{T+4}
        s_cbranch_vccz {L}_ok
        """
        k(chk)
        with k.branch():
            k(f"""
            s_mov_b32 s56, 0
            {L}:
            buffer_load_dwordx4 v[{T}:{T+3}], v{self.V_P+3}, s[{SRD_WS}:{SRD_WS+3}], s{self.S_ST} offen sc1
            s_add_u32 s56, s56, 1
            s_waitcnt vmcnt(0)
            """ + chk + f"""
            s_cmp_lt_u32 s56, 100000
            s_cbranch_scc1 {L}
            """)
        k(f"{L}_ok:")
        self.stamp("stats in")
        if self.opt.get("bg_norm", 1): k.nobg -= 1
        for sh in (8, 4, 2):
            for r in range(4):
                k(f"v_add_f32_dpp v{T+r}, v{T+r}, v{T+r} row_ror:{sh} row_mask:0xf bank_mask:0xf")
        inv = f2u(1.0 / 896)
        U = self.V_TMP
        for (sm, sq) in ((T, T+1), (T+2, T+3)):
            k(f"v_mul_f32 v{sm}, {inv}, v{sm}")
            k(f"v_mul_f32 v{sq}, {inv}, v{sq}")
            k(f"v_fma_f32 v{sq}, -v{sm}, v{sm}, v{sq}")
            k(f"v_max_f32 v{sq}, 0, v{sq}")
        k(f"v_cvt_pk_bf16_f32 v{T+4}, v{T}, v{T+2}")
        k(f"v_cvt_pk_bf16_f32 v{T+5}, v{T+1}, v{T+3}")
        k(f"v_lshlrev_b32 v{T}, 16, v{T+5}\nv_and_b32 v{T+1}, s{S_MASK}, v{T+5}")
        k(f"v_add_f32 v{T}, {f2u(1e-5)}, v{T}\nv_add_f32 v{T+1}, {f2u(1e-5)}, v{T+1}")
        k(f"v_cvt_pk_bf16_f32 v{T+5}, v{T}, v{T+1}")
        k(f"v_lshlrev_b32 v{T}, 16, v{T+5}\nv_and_b32 v{T+1}, s{S_MASK}, v{T+5}")
        k(f"v_sqrt_f32 v{T}, v{T}\nv_sqrt_f32 v{T+1}, v{T+1}")
        k(f"v_mov_b32_dpp v{U+6}, v{T+4} quad_perm:[0,0,2,2] row_mask:0xf bank_mask:0xf")
        k(f"v_mov_b32_dpp v{U+7}, v{T+4} quad_perm:[1,1,3,3] row_mask:0xf bank_mask:0xf")
        k(f"v_cvt_pk_bf16_f32 v{T+5}, v{T}, v{T+1}")
        M = U + 12; R = U + 16
        k(f"v_lshlrev_b32 v{T}, 16, v{T+5}\nv_and_b32 v{T+1}, s{S_MASK}, v{T+5}")
        k(f"v_rcp_f32 v{T+2}, v{T}\nv_rcp_f32 v{T+3}, v{T+1}")
        for h in range(2):
            k(f"v_lshlrev_b32 v{M+2*h}, 16, v{U+6+h}\nv_and_b32 v{M+2*h+1}, s{S_MASK}, v{U+6+h}")
        for r in range(2): k(f"v_fma_f32 v{T+r}, -v{T+r}, v{T+2+r}, 1.0")
        for r in range(2): k(f"v_fma_f32 v{T+2+r}, v{T+r}, v{T+2+r}, v{T+2+r}")
        for p in range(2):
            z = Z + 2*p; h = p & 1
            k(f"v_pk_add_f32 v[{z}:{z+1}], v[{z}:{z+1}], v[{M+2*h}:{M+2*h+1}] neg_lo:[0,1] neg_hi:[0,1]")
        for h in range(2):
            for r in range(2):
                k(f"v_mov_b32_dpp v{R+2*h+r}, v{T+2+r} quad_perm:[{h},{h},{2+h},{2+h}] row_mask:0xf bank_mask:0xf")
        P = self.V_B
        A = self.V_P
        def store(pr):
            u = P + 4*pr
            k(f"v_permlane16_swap_b32 v{u}, v{u+2}")
            k(f"v_permlane16_swap_b32 v{u+1}, v{u+3}")
            va = A if pr < 3 else A + 1
            so = 66 if pr < 2 else 67
            self.t_z = k(f"buffer_store_dwordx4 v[{u}:{u+3}], v{va}, s[{SRD_WS}:{SRD_WS+3}], s{so} offen offset:{(pr&1)*2048} sc1")
        for p in range(14):
            z = Z + 2*p; h = p & 1
            if p >= 2: k(f"v_pk_add_f32 v[{z}:{z+1}], v[{z}:{z+1}], v[{M+2*h}:{M+2*h+1}] neg_lo:[0,1] neg_hi:[0,1]")
            k(f"""
            v_cvt_pk_bf16_f32 v{z+1}, v{z}, v{z+1}
            v_lshlrev_b32 v{z}, 16, v{z+1}
            v_and_b32 v{z+1}, s{S_MASK}, v{z+1}
            v_pk_mul_f32 v[{z}:{z+1}], v[{z}:{z+1}], v[{R+2*h}:{R+2*h+1}]
            v_cvt_pk_bf16_f32 v{P+p}, v{z}, v{z+1}
            """)
            if p >= 12: k(f"v_cvt_pk_bf16_f32 v{P+p+2}, v{z}, v{z+1}")
            if p in (4, 8, 12): store(p // 4 - 1)
        store(3)
        if not self.opt.get("bg_norm", 1): k.nobg -= 1

    def u_poll_issue(self):
        k = self.k
        T = self.V_S
        k(f"""
        v_bfe_u32 v{T}, v1, 2, 2
        s_lshl_b32 s57, s{S_W}, 2
        v_add_u32 v{T}, s57, v{T}
        v_and_b32 v{T+1}, 16, v1
        v_add_u32 v{T}, v{T}, v{T+1}
        v_and_b32 v{T+1}, 7, v{T}
        s_lshr_b32 s57, s{S_CP}, 5
        s_add_u32 s57, s57, 7
        v_sub_u32 v{T+1}, s57, v{T+1}
        v_subrev_u32 v{T+2}, 7, v{T+1}
        v_min_u32 v{T+1}, v{T+1}, v{T+2}
        v_lshrrev_b32 v{T+2}, 1, v{T+1}
        v_and_b32 v{T+1}, 1, v{T+1}
        v_lshl_add_u32 v{T+1}, v{T+1}, 2, v{T+2}
        v_lshl_add_u32 v{T}, v{T}, 3, v{T+1}
        v_lshlrev_b32 v{T}, 7, v{T}
        v_and_b32 v{T+1}, 3, v1
        v_lshl_add_u32 v{T}, v{T+1}, 2, v{T}
        v_lshrrev_b32 v{T+2}, 1, v0
        v_mul_u32_u24 v{T+2}, 7168, v{T+2}
        v_and_b32 v{T+3}, 1, v0
        v_lshl_add_u32 v{T+2}, v{T+3}, 4, v{T+2}
        """)
        self.h_u = self.poll_issue(T, T + 1)
        self.t_after_half = self.h_u[0]
    def u_load(self):
        k = self.k
        T = self.V_S; U = self.V_U
        self.poll_check(self.h_u)
        k(f"""
        s_lshl_b32 s57, s{S_CP}, 5
        s_add_u32 s57, s57, {WS_UT}
        s_add_u32 s58, s57, {128*7168}
        buffer_load_dwordx4 v[{U}:{U+3}], v{T+2}, s[{SRD_WS}:{SRD_WS+3}], s57 offen sc1
        buffer_load_dwordx4 v[{U+4}:{U+7}], v{T+2}, s[{SRD_WS}:{SRD_WS+3}], s58 offen sc1
        """)
        self.t_u = k.vm
    def u_write_copy8(self):
        k = self.k
        T = self.V_S; U = self.V_U
        k(f"""
        v_and_b32 v{T}, 1, v0
        v_mul_u32_u24 v{T}, {UCH}, v{T}
        v_lshrrev_b32 v{T+1}, 1, v0
        v_lshl_add_u32 v{T}, v{T+1}, 4, v{T}
        v_add_u32 v{T}, {UC + 7*UCP + 16}, v{T}
        v_and_b32 v{T+1}, 15, v1
        v_mul_u32_u24 v{T+1}, {UCP}, v{T+1}
        v_mov_b32 v{T+4}, 0
        v_mov_b32 v{T+5}, 0
        v_mov_b32 v{T+6}, 0
        v_mov_b32 v{T+7}, 0
        ds_write_b128 v{T+1}, v[{T+4}:{T+7}] offset:{UC}
        """)
        k.wait_vm(self.t_u)
        k(f"ds_write_b128 v{T}, v[{U}:{U+3}]")
        k(f"ds_write_b128 v{T}, v[{U+4}:{U+7}] offset:2048")

    def u_copies(self, mid=None):
        k = self.k
        R = 48
        T = R; W0 = R + 4
        k(f"""
        s_lshr_b32 s56, s{S_W}, 1
        s_mul_i32 s56, s56, {UCH}
        s_add_u32 s56, s56, {UC}
        v_and_b32 v{T}, 127, v0
        v_lshl_add_u32 v{T}, v{T}, 4, s56
        """)
        tg = []
        for r in range(2):
            w = W0 + 32 * r
            k(f"ds_read_b128 v[{w}:{w+3}], v{T} offset:{7*UCP + 2048*r}")
            tg.append(k(f"ds_read_b128 v[{w+4}:{w+7}], v{T} offset:{7*UCP + 2048*r + 16}"))
        if mid: mid()
        for r in range(2):
            w = W0 + 32 * r
            base = 2048 * r + 16
            k.wait_lg(tg[r])
            def wr(s_, reg): k(f"ds_write_b128 v{T}, v[{reg}:{reg+3}] offset:{base + (s_-1)*UCP}")
            wr(4, w + 2)
            for i in range(7): k(f"v_alignbit_b32 v{w+16+i}, v{w+i+1}, v{w+i}, 16")
            wr(1, w + 16); wr(5, w + 18)
            for i in range(6): k(f"v_mov_b32 v{w+8+i}, v{w+1+i}")
            wr(2, w + 8); wr(6, w + 10)
            for i in range(6): k(f"v_mov_b32 v{w+24+i}, v{w+17+i}")
            wr(3, w + 24); wr(7, w + 26)

    def conv(self):
        k = self.k
        R = 16
        AA = R; BA = R + 1; T = R + 2
        AC = R + 8
        F1 = 64; F0 = 128
        k(f"""
        s_lshr_b32 s56, s{S_W}, 1
        s_and_b32 s58, s{S_W}, 1
        s_mul_i32 s57, s56, {UCH}
        s_lshl_b32 s59, s58, 8
        s_add_u32 s57, s57, s59
        s_add_u32 s57, s57, {UC + 48}
        v_and_b32 v{T}, 7, v1
        v_mul_u32_u24 v{T}, {UCP}, v{T}
        v_bfe_u32 v{T+1}, v1, 3, 1
        v_lshrrev_b32 v{T+2}, 4, v1
        v_sub_u32 v{T+1}, v{T+1}, v{T+2}
        v_lshl_add_u32 v{T}, v{T+1}, 4, v{T}
        v_add_u32 v{AA}, s57, v{T}
        s_mul_i32 s57, s56, {KXP}
        s_sub_u32 s57, s57, s59
        s_add_u32 s57, s57, {KX + 512 - 32 - 192}
        v_and_b32 v{T}, 15, v1
        v_lshlrev_b32 v{T}, 5, v{T}
        v_lshl_add_u32 v{T}, v{T+2}, 4, v{T}
        v_add_u32 v{BA}, s57, v{T}
        """)
        self.z_poll_addr()
        with k.atomic():
            k("s_waitcnt lgkmcnt(0)\ns_barrier")
        self.stamp("copies")
        def rd(rp, i):
            f = F1 if rp & 1 else F0
            j = i >> 1
            if i & 1: return k(f"ds_read_b128 v[{f+32+4*j}:{f+32+4*j+3}], v{BA} offset:{512*j + 64*(3-rp)}")
            return k(f"ds_read_b128 v[{f+4*j}:{f+4*j+3}], v{AA} offset:{512*j + 64*rp}")
        tg = {}
        with k.atomic():
            for i in range(16): tg[(0, i)] = rd(0, i)
        first = set()
        zl = 0
        for rp in range(4):
            f = F1 if rp & 1 else F0
            cnt = 0; ri = 0
            order = [(n, a_) for n in range(8) for a_ in range(n + 1)] if rp == 0 else [(n, a_) for n in range(7, -1, -1) for a_ in range(n + 1)]
            if rp == 3:
                self.poll_check(self.h_z)
                self.stamp("z ready")
            for n, a_ in order:
                b = n - a_
                k.wait_lg(tg[(rp, 2 * max(a_, b) + 1)] if rp == 0 else tg[(rp, 15)])
                src = f"v[{AC+4*n}:{AC+4*n+3}]" if n in first else "0"
                first.add(n)
                k(f"v_mfma_f32_16x16x32_f16 v[{AC+4*n}:{AC+4*n+3}], v[{f+4*a_}:{f+4*a_+3}], v[{f+32+4*b}:{f+32+4*b+3}], {src}")
                cnt += 1
                if rp < 3 and cnt % 2 == 0 and ri < 16:
                    tg[(rp + 1, ri)] = rd(rp + 1, ri); ri += 1
                tot = rp * 36 + cnt
                o = self.opt
                if tot == o.get("c_p1", 4):
                    self.w_finish()
                    self.h_z1 = self.poll_issue(self.V_P + 2, self.V_P + 3, soff=f"s{self.S_ZF1}")
                if tot == o.get("c_wog", 6): self.wout_gather()
                if tot == o.get("c_g", 44): self.z_gather()
                if tot == o.get("c_p2", 70):
                    self.h_z = self.poll_issue(self.V_P, self.V_P + 1, soff=f"s{self.S_ZF}")
                if rp == 3 and cnt % 2 == 1 and zl < 14:
                    self.zload(zl // 7, zl % 7); zl += 1
        self.stamp("conv mfma")
        X = T
        F = F1
        KEEP = F; RX = F + 16
        k.nobg += 1
        k(f"""
        s_lshl_b32 s57, s{S_W}, 12
        s_add_u32 s57, s57, {CRED}
        v_add_u32 v{X}, s57, v{self.V_L16}
        s_bitcmp0_b32 s{S_W}, 0
        s_cbranch_scc1 L_cv_h0
        """)
        with k.branch():
            for n in range(4): k(f"ds_write_b128 v{X}, v[{AC+4*n}:{AC+4*n+3}] offset:{n*1024}")
            for r in range(0, 16, 2): k(f"v_pk_mov_b32 v[{AC+r}:{AC+r+1}], v[{AC+16+r}:{AC+17+r}], v[{AC+16+r}:{AC+17+r}] op_sel:[0,1]")
            k("s_branch L_cv_j")
        k("L_cv_h0:")
        with k.branch():
            for n in range(4): k(f"ds_write_b128 v{X}, v[{AC+16+4*n}:{AC+16+4*n+3}] offset:{n*1024}")
        k("L_cv_j:")
        KEEP = AC
        k(f"""
        v_xor_b32 v{X+1}, 4096, v{X}
        s_lshr_b32 s56, s{S_W}, 1
        s_and_b32 s58, s{S_W}, 1
        s_mul_i32 s57, s56, {UCH}
        s_lshl_b32 s59, s58, 11
        s_add_u32 s57, s57, s59
        s_add_u32 s57, s57, {UC + 7*UCP + 16}
        v_and_b32 v{X+2}, 15, v1
        v_lshlrev_b32 v{X+2}, 5, v{X+2}
        v_lshrrev_b32 v{X+3}, 4, v1
        v_lshl_add_u32 v{X+3}, v{X+3}, 3, v{X+2}
        v_add_u32 v{X+3}, s57, v{X+3}
        """)
        assert CRED % 8192 == 0
        UU = F + 32
        for n in range(4): k(f"ds_read_b64 v[{UU+2*n}:{UU+2*n+1}], v{X+3} offset:{n*512}")
        k("s_waitcnt lgkmcnt(0)\ns_barrier")
        for n in range(4): k(f"ds_read_b128 v[{RX+4*n}:{RX+4*n+3}], v{X+1} offset:{n*1024}")
        UD = F + 40
        for p in range(8):
            d = UD + 2*p
            k(f"v_fma_mix_f32 v{d}, v{UU+p}, v{self.V_DS}, 0 op_sel_hi:[1,0,0]")
            k(f"v_fma_mix_f32 v{d+1}, v{UU+p}, v{self.V_DS}, 0 op_sel:[1,0,0] op_sel_hi:[1,0,0]")
        for p in range(8):
            d = UD + 2*p
            k(f"v_cvt_pk_bf16_f32 v{d+1}, v{d}, v{d+1}")
            k(f"v_lshlrev_b32 v{d}, 16, v{d+1}\nv_and_b32 v{d+1}, s{S_MASK}, v{d+1}")
        k(f"""
        v_bfe_u32 v{X}, v1, 4, 1
        v_lshl_add_u32 v{X+2}, v{X}, 9, v{X+2}
        v_lshrrev_b32 v{X}, 5, v1
        v_lshl_add_u32 v{X+2}, v{X}, 4, v{X+2}
        s_lshl_b32 s57, s{S_CP}, 13
        s_lshl_b32 s59, s{S_W}, 11
        s_add_u32 s57, s57, s59
        s_add_u32 s57, s57, {WS_ST}
        s_waitcnt lgkmcnt(0)
        """)
        O = F + 56
        YS = self.V_YS
        for p in range(8):
            y = KEEP + 2*p; d = UD + 2*p
            k(f"""
            v_pk_add_f32 v[{y}:{y+1}], v[{y}:{y+1}], v[{RX+2*p}:{RX+2*p+1}]
            v_pk_mul_f32 v[{y}:{y+1}], v[{y}:{y+1}], v[{YS}:{YS+1}] op_sel_hi:[1,0]
            v_cvt_pk_bf16_f32 v{y+1}, v{y}, v{y+1}
            v_lshlrev_b32 v{y}, 16, v{y+1}
            v_and_b32 v{y+1}, s{S_MASK}, v{y+1}
            v_pk_add_f32 v[{y}:{y+1}], v[{y}:{y+1}], v[{d}:{d+1}]
            v_cvt_pk_bf16_f32 v{O+p}, v{y}, v{y+1}
            """)
        for pr in range(2):
            u = O + 4*pr
            k(f"v_permlane16_swap_b32 v{u}, v{u+2}")
            k(f"v_permlane16_swap_b32 v{u+1}, v{u+3}")
            self.t_s = k(f"buffer_store_dwordx4 v[{u}:{u+3}], v{X+2}, s[{SRD_WS}:{SRD_WS+3}], s57 offen offset:{pr*1024} sc1")
        k.nobg -= 1

    S_ZF = 68; S_ZB = 69; S_Z = 70; S_Z2 = 71; S_ZF1 = 72
    ZR = 128; AC2 = 16
    def z_poll_addr(self):
        k = self.k
        T = self.V_P
        k(f"""
        v_bfe_u32 v{T}, v1, 2, 3
        s_lshl_b32 s57, s{S_W}, 3
        v_add_u32 v{T}, s57, v{T}
        s_xor_b32 s57, s{S_FB}, 1
        v_lshl_add_u32 v{T}, v{T}, 3, s57
        v_lshlrev_b32 v{T}, 7, v{T}
        v_and_b32 v{T+1}, 3, v1
        v_lshl_add_u32 v{T}, v{T+1}, 2, v{T}
        s_mov_b32 s{self.S_ZF}, {WS_FLAG + 32768}
        s_lshl2_add_u32 s57, s{S_FB}, s{S_W}
        s_mul_i32 s{self.S_ZB}, s57, {16*7168}
        s_add_u32 s{self.S_ZB}, s{self.S_ZB}, {WS_Z}
        v_lshlrev_b32 v{T+2}, 2, v{T+1}
        s_lshl_b32 s57, s{S_W}, 4
        s_add_u32 s57, s57, s{S_RHO2}
        s_lshl_b32 s57, s57, 9
        s_xor_b32 s58, s{S_FB}, 1
        s_lshl_b32 s58, s58, 7
        s_add_u32 s57, s57, s58
        s_add_u32 s{self.S_ZF1}, s57, {WS_FLAG + 32768}
        v_min_u32 v{self.V_G}, 55, v1
        v_lshlrev_b32 v{T+4}, 7, v{self.V_G}
        s_mul_i32 s{self.S_Z}, s{S_RHO2}, 7168
        s_add_u32 s{self.S_Z}, s{self.S_Z}, s{self.S_ZB}
        s_add_u32 s{self.S_Z2}, s{self.S_Z}, 7168
        """)
        self.ztag = {}
    def z_gather(self):
        k = self.k
        T = self.V_P
        self.poll_check(self.h_z1)
        self.stamp("z1st ready")
        k(f"""
        buffer_load_dword v{self.V_GD}, v{T+4}, s[{SRD_WS}:{SRD_WS+3}], s{self.S_Z} offen sc1
        buffer_load_dword v{self.V_GD}, v{T+4}, s[{SRD_WS}:{SRD_WS+3}], s{self.S_Z2} offen sc1
        """)
    def zload(self, sg, j):
        k = self.k
        SZ = self.S_Z; SZ2 = self.S_Z2
        if j == 0:
            k(f"""
            s_add_u32 s{SZ}, s{S_RHO2}, {sg}
            s_and_b32 s{SZ}, s{SZ}, 15
            s_mul_i32 s{SZ}, s{SZ}, 7168
            s_add_u32 s{SZ}, s{SZ}, s{self.S_ZB}
            """)
        if j == 4: k(f"s_add_u32 s{SZ2}, s{SZ}, 4096")
        r = self.ZR + (sg % 3) * 28 + 4 * j
        so = SZ if j < 4 else SZ2
        self.ztag[(sg, j)] = k(f"buffer_load_dwordx4 v[{r}:{r+3}], v{self.V_L16}, s[{SRD_WS}:{SRD_WS+3}], s{so} offen offset:{(j & 3) * 1024} sc1")

    def gelu1_fillers(self):
        T = self.V_S; C1 = 228; C3 = 229
        c1 = -2.0 * 0.7978845608028654 * LOG2E
        c3 = c1 * 0.044715
        out = [f"v_mov_b32 v{C1}, {f2u(c1)}", f"v_mov_b32 v{C3}, {f2u(c3)}"]
        for p in range(14):
            z = self.V_Z1 + p
            a = T; b = T + 1; t = T + 2; u = T + 3
            out += [f"v_lshlrev_b32 v{a}, 16, v{z}", f"v_and_b32 v{b}, s{S_MASK}, v{z}",
                    f"v_mul_f32 v{t}, v{a}, v{a}", f"v_mul_f32 v{u}, v{b}, v{b}",
                    f"v_fma_f32 v{t}, v{t}, v{C3}, v{C1}", f"v_fma_f32 v{u}, v{u}, v{C3}, v{C1}",
                    f"v_mul_f32 v{t}, v{t}, v{a}", f"v_mul_f32 v{u}, v{u}, v{b}",
                    f"v_exp_f32 v{t}, v{t}", f"v_exp_f32 v{u}, v{u}",
                    f"v_add_f32 v{t}, 1.0, v{t}", f"v_add_f32 v{u}, 1.0, v{u}",
                    f"v_rcp_f32 v{t}, v{t}", f"v_rcp_f32 v{u}, v{u}",
                    f"v_mul_f32 v{a}, v{a}, v{t}", f"v_mul_f32 v{b}, v{b}, v{u}",
                    f"v_cvt_pk_bf16_f32 v{z}, v{a}, v{b}"]
        return out

    def phase2(self):
        k = self.k
        T = self.V_S
        AC = self.AC2; ZR = self.ZR
        tag = self.ztag
        fill = self.gelu1_fillers()
        XA = 234
        for tp in range(1, 4):
            fill += [f"s_xor_b32 s56, s{S_W}, {tp}", f"s_mul_i32 s56, s56, 21504", f"s_add_u32 s56, s56, {X2 + (tp-1)*7168}",
                     f"v_add_u32 v{XA+tp-1}, s56, v{self.V_L16}"]
        fill += [f"s_mul_i32 s56, s{S_W}, 21504", f"s_add_u32 s56, s56, {X2}", f"v_add_u32 v{XA+3}, s56, v{self.V_L16}",
                 f"v_lshlrev_b32 v{self.V_BSP}, 16, v{self.V_BSP}"]
        fill += f"""
        s_lshl2_add_u32 s56, s{S_TB}, s{S_W}
        s_mul_i32 s56, s56, 28
        s_lshr_b32 s57, s{S_FB}, 1
        s_mul_i32 s57, s57, 7
        s_add_u32 s56, s56, s57
        s_lshl_b32 s56, s56, 10
        s_add_u32 s56, s56, {WS_H}
        s_and_b32 s58, s{S_FB}, 1
        s_lshl_b32 s72, s58, 12
        s_add_u32 s72, s72, s56
        s_lshl_b32 s73, s58, 9
        s_add_u32 s73, s73, s56
        v_lshrrev_b32 v{T+4}, 5, v1
        v_lshlrev_b32 v{T+4}, 8, v{T+4}
        v_and_b32 v{T+5}, 15, v1
        v_lshl_add_u32 v{T+4}, v{T+5}, 4, v{T+4}
        """.strip().split("\n")
        fill += self.p3_setup_fillers()
        def mf(sg, tau, j):
            r = ZR + (sg % 3) * 28 + 4 * j
            ac = AC + (tau * 7 + j) * 4
            wr = (sg * 4 + tau) * 4
            src = "0" if sg == 0 else f"v[{ac}:{ac+3}]"
            k(f"v_mfma_f32_16x16x32_bf16 v[{ac}:{ac+3}], v[{r}:{r+3}], a[{wr}:{wr+3}], {src}")
        fill = [f.strip() for f in fill]
        def filler():
            c = 0
            while fill and c + icost(fill[0]) <= 8:
                c += icost(fill[0]); k(fill.pop(0))
        k("s_waitcnt lgkmcnt(0)")
        for sg in range(13):
            for j in range(7):
                if j in (0, 4): k.wait_vm(tag[(sg, 3 if j == 0 else 6)])
                if sg == 2 and j == 0:
                    assert k.vm_done >= self.t_s
                    self.set_flag(f"s_lshl_b32 s56, s{S_F4}, 7\ns_lshl2_add_u32 s56, s{S_W}, s56\ns_add_u32 s56, s56, {WS_FLAG + 3*32768}\n", 56)
                for tau in range(4):
                    mf(sg, tau, j)
                    if tau < 3: filler()
                self.zload(sg + 2, j)
            if sg == 6: k("s_barrier")
            if sg % 2 == 1 and self.opt.get("fine"): self.stamp(f"g2 sg{sg}")
        assert not fill, len(fill)
        for j in range(7): fill.append(lambda j=j: self.zload(15, j))
        fill2 = self.wout_dma_items()
        wr = {}
        cnt = [0]
        def blk(sg, tau):
            for j in range(7):
                if j in (0, 4): k.wait_vm(tag[(sg, 3 if j == 0 else 6)])
                mf(sg, tau, j)
                if fill: fill.pop(0)()
                elif cnt[0] in wr: wr[cnt[0]]()
                elif fill2 and cnt[0] % 3 == 1: fill2.pop(0)()
                cnt[0] += 1
        for i in range(21):
            tp = 1 + i // 7; j = i % 7
            ac = AC + (tp * 7 + j) * 4
            wr[49 + i * 35 // 21] = lambda ac=ac, j=j, tp=tp: k(f"ds_write_b128 v{XA+tp-1}, v[{ac}:{ac+3}] offset:{j*1024}")
        for sg, tau in ((13,1),(14,1),(13,2),(14,2),(13,3),(14,3),(15,1),(15,2),(15,3),(13,0),(14,0),(15,0)): blk(sg, tau)
        self.stamp("gemm2")
        k("s_waitcnt lgkmcnt(0)\ns_barrier")
        RX = ZR
        tg = {}
        for j in range(7):
            for sidx in range(3):
                r = RX + (j * 3 + sidx) * 4
                tg[j] = k(f"ds_read_b128 v[{r}:{r+3}], v{XA+3} offset:{sidx*7168 + j*1024}")
        while fill2: fill2.pop(0)()
        P = 48; Z = 64
        B = self.V_BSP
        for j in range(7):
            k.wait_lg(tg[j])
            for hh in range(2):
                g = AC + j * 4 + 2 * hh
                p = 2 * j + hh
                z = Z + 2 * (p & 1)
                r = RX + j * 12 + 2 * hh
                k(f"""
                v_pk_add_f32 v[{g}:{g+1}], v[{g}:{g+1}], v[{r}:{r+1}]
                v_pk_add_f32 v[{r+4}:{r+5}], v[{r+4}:{r+5}], v[{r+8}:{r+9}]
                v_lshlrev_b32 v{z}, 16, v{self.V_Z1+p}
                v_pk_add_f32 v[{g}:{g+1}], v[{g}:{g+1}], v[{r+4}:{r+5}]
                v_and_b32 v{z+1}, s{S_MASK}, v{self.V_Z1+p}
                v_cvt_pk_bf16_f32 v{g+1}, v{g}, v{g+1}
                v_lshlrev_b32 v{g}, 16, v{g+1}
                v_and_b32 v{g+1}, s{S_MASK}, v{g+1}
                v_pk_add_f32 v[{g}:{g+1}], v[{g}:{g+1}], v[{B}:{B+1}] op_sel_hi:[1,0]
                v_cvt_pk_bf16_f32 v{g+1}, v{g}, v{g+1}
                v_lshlrev_b32 v{g}, 16, v{g+1}
                v_and_b32 v{g+1}, s{S_MASK}, v{g+1}
                v_pk_mul_f32 v[{g}:{g+1}], v[{g}:{g+1}], v[{z}:{z+1}]
                v_cvt_pk_bf16_f32 v{P+p}, v{g}, v{g+1}
                """)
                if p >= 12: k(f"v_cvt_pk_bf16_f32 v{P+p+2}, v{g}, v{g+1}")
            if j in (1, 3, 5):
                i = j // 2
                k(f"buffer_store_dwordx4 v[{P+4*i}:{P+4*i+3}], v{self.V_L16}, s[{SRD_WS}:{SRD_WS+3}], s72 offen offset:{i*1024} sc1")
        k(f"""
        v_permlane16_swap_b32 v{P+12}, v{P+14}
        v_permlane16_swap_b32 v{P+13}, v{P+15}
        """)
        self.t_h = k(f"buffer_store_dwordx4 v[{P+12}:{P+15}], v{T+4}, s[{SRD_WS}:{SRD_WS+3}], s73 offen offset:3072 sc1")
        self.stamp("h stored")

    VN = 2; VS = 3; RA3 = 4; OA = 6; V_SP = 7; V_SA = 8; V_HP = 9; V_PL = 10
    S_WOB = 74; S_WOL = 75; S_OUT = 76; S_SF = 77; S_SB = 78; S_HF = 79; S_HB = 80
    def p3_setup_fillers(self):
        T = 11
        VN = self.VN; VS = self.VS; RA3 = self.RA3; OA = self.OA
        s = f"""
        v_lshrrev_b32 v{T}, 3, v1
        v_and_b32 v{T+1}, 7, v1
        v_bfe_u32 v{T+2}, v1, 4, 1
        v_xor_b32 v{T+1}, v{T+1}, v{T+2}
        v_mul_u32_u24 v{VN}, 896, v{T}
        v_lshl_add_u32 v{VN}, v{T+1}, 4, v{VN}
        v_and_b32 v{T+2}, 3, v{T}
        v_and_b32 v{T}, 4, v{T}
        v_lshl_add_u32 v{T}, v{T}, 1, v{T+2}
        v_mul_u32_u24 v{VS}, 896, v{T}
        v_lshl_add_u32 v{VS}, v{T+1}, 4, v{VS}
        s_min_u32 s56, s{S_DB}, 6
        s_mul_i32 s{self.S_WOB}, s{S_W}, {224*896}
        s_lshl_b32 s57, s56, 7
        s_add_u32 s{self.S_WOB}, s{self.S_WOB}, s57
        v_and_b32 v{T}, 15, v1
        v_mul_u32_u24 v{OA}, 896, v{T}
        v_lshrrev_b32 v{T+1}, 4, v1
        v_lshl_add_u32 v{OA}, v{T+1}, 5, v{OA}
        s_and_b32 s58, s{S_W}, 1
        s_lshr_b32 s59, s{S_W}, 1
        s_lshl1_add_u32 s60, s58, s59
        s_lshl2_add_u32 s61, s{S_TB3}, s60
        s_mul_i32 s{self.S_OUT}, s61, {16*896}
        s_add_u32 s{self.S_OUT}, s{self.S_OUT}, s57
        v_lshrrev_b32 v{T}, 2, v1
        v_lshlrev_b32 v{T}, 7, v{T}
        v_and_b32 v{T+1}, 3, v1
        v_lshl_add_u32 v{T}, v{T+1}, 5, v{T}
        v_bfe_u32 v{T+1}, v1, 3, 1
        v_lshl_add_u32 v{T}, v{T+1}, 4, v{T}
        s_mul_i32 s62, s59, {2*14336}
        v_add_u32 v{RA3}, s62, v{T}
        v_xor_b32 v{RA3+1}, 16, v{RA3}
        v_lshrrev_b32 v{T}, 1, v1
        v_and_b32 v{T+1}, 1, v1
        v_lshlrev_b32 v{self.V_SP}, 7, v{T}
        v_lshl_add_u32 v{self.V_SP}, v{T+1}, 3, v{self.V_SP}
        s_lshl_b32 s{self.S_SF}, s56, 12
        s_lshr_b32 s62, s{S_TB3}, 4
        s_lshl2_add_u32 s{self.S_SF}, s62, s{self.S_SF}
        s_add_u32 s{self.S_SF}, s{self.S_SF}, {WS_FLAG + 3*32768}
        v_lshlrev_b32 v{self.V_SA}, 12, v{T}
        v_lshl_add_u32 v{self.V_SA}, v{T+1}, 4, v{self.V_SA}
        s_lshl_b32 s{self.S_SB}, s56, 18
        s_lshl_b32 s62, s61, 5
        s_add_u32 s{self.S_SB}, s{self.S_SB}, s62
        s_add_u32 s{self.S_SB}, s{self.S_SB}, {WS_ST}
        v_bfe_u32 v{T}, v1, 1, 2
        v_lshlrev_b32 v{T}, 7, v{T}
        v_lshl_add_u32 v{self.V_HP}, v{T+1}, 2, v{T}
        s_lshl1_add_u32 s62, s{S_TB3}, s59
        s_lshl_b32 s62, s62, 9
        s_lshl3_add_u32 s62, s58, s62
        s_add_u32 s{self.S_HF}, s62, {WS_FLAG + 2*32768}
        """
        for tl in range(2):
            s += f"""
            s_xor_b32 s62, s61, {tl}
            s_mul_i32 s62, s62, 28
            s_mul_i32 s63, s59, 14
            s_add_u32 s62, s62, s63
            s_lshl_b32 s62, s62, 10
            s_add_u32 s{self.S_HB+4*tl}, s62, {WS_H}
            s_add_u32 s{self.S_HB+4*tl+1}, s{self.S_HB+4*tl}, 4096
            s_add_u32 s{self.S_HB+4*tl+2}, s{self.S_HB+4*tl}, 8192
            s_add_u32 s{self.S_HB+4*tl+3}, s{self.S_HB+4*tl}, 12288
            """
        return [l.strip() for l in s.strip().split("\n") if l.strip()]

    def wout_piece(self, i, n, lds):
        k = self.k
        if i == 3:
            row = (208 if n & 1 else 96) + 4 * (n >> 1); vo = self.VS
        else:
            row = (32 * i if i < 3 else 112 + 32 * (i - 4)) + 8 * n; vo = self.VN
        k(f"s_add_u32 s{self.S_WOL}, s{self.S_WOB}, {row*896}")
        k(f"s_add_u32 m0, s{S_XL}, {lds}")
        self.t_wo = k(f"buffer_load_dwordx4 v{vo}, s[{SRD_WOUT}:{SRD_WOUT+3}], s{self.S_WOL} offen lds")
    def wout_dma_items(self):
        return [lambda pc=pc: self.wout_piece(pc >> 2, pc & 3, RB + pc * 1024) for pc in range(14)]
    def wout_reads(self, half):
        out = []
        for cl in range(2):
            for hb in range(7):
                hh = 7 * half + hb
                for tau in range(4):
                    ar = ((cl * 7 + (hh >> 1)) * 4 + tau) * 4 + 2 * (hh & 1)
                    out.append(f"ds_read_b64_tr_b16 a[{ar}:{ar+1}], v{self.RA3 + (tau >> 1)} offset:{cl*14336 + hb*2048 + (tau & 1)*8}")
        return out

    def phase3(self):
        k = self.k
        T = self.V_S
        HB = 16; AC = 128; XV = 192; SV = 200
        OA = self.OA
        k(f"s_cmp_lg_u32 s{S_DB}, 7\ns_cbranch_scc1 L_p3")
        with k.branch():
            k("s_waitcnt vmcnt(0)")
            self.flag(2)
            k("s_branch L_done")
        k("L_p3:")
        k.wait_vm(self.t_wo)
        k("s_barrier")
        rd = self.wout_reads(0)
        for pc in range(14, 28):
            self.wout_piece(pc >> 2, pc & 3, RA + (pc - 14) * 1024)
            for _ in range(4): k(rd.pop(0))
            if pc == self.opt.get("p3_fl", 24):
                k.wait_vm(self.t_h)
                self.flag(2)
                self.stamp("h out")
        h_s = self.poll_issue(self.V_SP, self.V_PL, soff=f"s{self.S_SF}")
        k(f"""
        buffer_load_dwordx4 v[{XV}:{XV+3}], v{OA}, s[{SRD_X}:{SRD_X+3}], s{self.S_OUT} offen
        buffer_load_dwordx4 v[{XV+4}:{XV+7}], v{OA}, s[{SRD_X}:{SRD_X+3}], s{self.S_OUT} offen offset:16
        v_add_u32 v{self.RA3}, {RA}, v{self.RA3}
        v_add_u32 v{self.RA3+1}, {RA}, v{self.RA3+1}
        s_lshl_b32 s61, s{S_W}, 11
        s_add_u32 s61, s61, {SX}
        v_add_u32 v{T}, s61, v{self.V_L16}
        v_lshrrev_b32 v{T+1}, 4, v1
        v_lshlrev_b32 v{T+1}, 9, v{T+1}
        v_and_b32 v{T+2}, 15, v1
        v_lshl_add_u32 v{T+1}, v{T+2}, 3, v{T+1}
        v_add_u32 v{T+1}, s61, v{T+1}
        s_lshl_b32 s56, s{S_W}, 12
        v_add_u32 v{T+3}, s56, v{self.V_L16}
        v_xor_b32 v{T+2}, 8192, v{T+3}
        v_lshrrev_b32 v{T+4}, 5, v1
        v_mul_u32_u24 v{T+4}, 28672, v{T+4}
        v_and_b32 v{T+5}, 31, v1
        v_lshl_add_u32 v{T+4}, v{T+5}, 6, v{T+4}
        s_min_u32 s56, s{self.S_HB}, s{self.S_HB+4}
        s_lshl_b32 s57, s{S_DB}, 11
        s_add_u32 s{self.S_HB+8}, s56, s57
        s_add_u32 s59, s{self.S_SB}, {32*4096}
        """)
        assert X3 == 0
        k.wait_both(self.t_wo, k.lg)
        k("s_barrier")
        self.stamp("p3 wo landed")
        rd = self.wout_reads(1)
        for _ in range(28): k(rd.pop(0))
        self.poll_check(h_s)
        k(f"buffer_load_dwordx4 v[{SV}:{SV+3}], v{self.V_SA}, s[{SRD_WS}:{SRD_WS+3}], s{self.S_SB} offen sc1")
        t_sv = k(f"buffer_load_dwordx4 v[{SV+4}:{SV+7}], v{self.V_SA}, s[{SRD_WS}:{SRD_WS+3}], s59 offen sc1")
        h_h = self.poll_issue(self.V_HP, self.V_PL, soff=f"s{self.S_HF}")
        while rd: k(rd.pop(0))
        self.stamp("wout ready")
        self.poll_check(h_h)
        self.stamp("h ready")
        if self.opt.get("hg", 1):
            k(f"buffer_load_dword v{self.V_PL}, v{T+4}, s[{SRD_WS}:{SRD_WS+3}], s{self.S_HB+8} offen sc1")
        th = {}
        seq = [(tl, i) for tl in (1, 0) for i in range(14)]
        ld = list(seq)
        def hload():
            tl, i = ld.pop(0)
            r = HB + (tl * 14 + i) * 4
            th[(tl, i)] = k(f"buffer_load_dwordx4 v[{r}:{r+3}], v{self.V_L16}, s[{SRD_WS}:{SRD_WS+3}], s{self.S_HB+4*tl+(i>>2)} offen offset:{(i&3)*1024} sc1")
        for _ in range(self.opt.get("h_pre", 8)): hload()
        k(f"""
        ds_write_b128 v{T}, v[{SV}:{SV+3}]
        ds_write_b128 v{T}, v[{SV+4}:{SV+7}] offset:1024
        """)
        for tau in range(4):
            k(f"ds_read_b64_tr_b16 v[{SV+2*tau}:{SV+2*tau+1}], v{T+1} offset:{tau*128}")
        k("s_waitcnt lgkmcnt(0)")
        for tl, i in seq:
            k.wait_vm(th[(tl, i)])
            if (tl, i) == (1, 0): self.stamp("g3 first")
            r = HB + (tl * 14 + i) * 4
            for tau in range(4):
                ac = AC + (tl * 4 + tau) * 4
                ar = (i * 4 + tau) * 4
                src = "0" if i == 0 else f"v[{ac}:{ac+3}]"
                k(f"v_mfma_f32_16x16x32_bf16 v[{ac}:{ac+3}], a[{ar}:{ar+3}], v[{r}:{r+3}], {src}")
                if tau in (0, 2) and ld: hload()
                if tl == 0 and i in (1, 2, 3, 4) and tau == 1:
                    ac = AC + (4 + i - 1) * 4
                    k(f"ds_write_b128 v{T+2}, v[{ac}:{ac+3}] offset:{(i-1)*1024}")
            if tl == 0 and i == 11:
                k("s_waitcnt lgkmcnt(0)\ns_barrier")
                for tau in range(4):
                    ac = AC + (4 + tau) * 4
                    k(f"ds_read_b128 v[{ac}:{ac+3}], v{T+3} offset:{tau*1024}")
        self.stamp("gemm3")
        E = 80; O = 96; C = 104
        k(f"v_mov_b32 v{C}, {f2u(-LOG2E)}\ns_waitcnt lgkmcnt(0)")
        for tau in range(4):
            for hh in range(2):
                g = AC + tau * 4 + 2 * hh
                e = E + 4 * hh
                r = g + 16
                k(f"""
                v_pk_add_f32 v[{g}:{g+1}], v[{g}:{g+1}], v[{r}:{r+1}]
                v_cvt_pk_bf16_f32 v{g+1}, v{g}, v{g+1}
                v_lshlrev_b32 v{g}, 16, v{g+1}
                v_and_b32 v{g+1}, s{S_MASK}, v{g+1}
                v_pk_mul_f32 v[{e}:{e+1}], v[{g}:{g+1}], v[{C}:{C+1}] op_sel_hi:[1,0]
                v_exp_f32 v{e}, v{e}
                v_exp_f32 v{e+1}, v{e+1}
                """)
            for hh in range(2):
                e = E + 4 * hh
                k(f"""
                v_pk_add_f32 v[{e}:{e+1}], v[{e}:{e+1}], 1.0 op_sel_hi:[1,0]
                v_rcp_f32 v{e}, v{e}
                v_rcp_f32 v{e+1}, v{e+1}
                """)
            for hh in range(2):
                g = AC + tau * 4 + 2 * hh
                e = E + 4 * hh
                p = 2 * tau + hh
                k(f"""
                v_pk_mul_f32 v[{g}:{g+1}], v[{g}:{g+1}], v[{e}:{e+1}]
                v_cvt_pk_bf16_f32 v{g+1}, v{g}, v{g+1}
                v_lshlrev_b32 v{g}, 16, v{g+1}
                v_and_b32 v{g+1}, s{S_MASK}, v{g+1}
                v_lshlrev_b32 v{e}, 16, v{SV+p}
                v_and_b32 v{e+1}, s{S_MASK}, v{SV+p}
                v_pk_mul_f32 v[{g}:{g+1}], v[{g}:{g+1}], v[{e}:{e+1}]
                v_cvt_pk_bf16_f32 v{g+1}, v{g}, v{g+1}
                v_lshlrev_b32 v{g}, 16, v{g+1}
                v_and_b32 v{g+1}, s{S_MASK}, v{g+1}
                v_lshlrev_b32 v{e}, 16, v{XV+p}
                v_and_b32 v{e+1}, s{S_MASK}, v{XV+p}
                v_pk_add_f32 v[{g}:{g+1}], v[{g}:{g+1}], v[{e}:{e+1}]
                v_cvt_pk_bf16_f32 v{O+p}, v{g}, v{g+1}
                """)
            if tau & 1:
                o = O + 4 * (tau >> 1)
                k(f"buffer_store_dwordx4 v[{o}:{o+3}], v{OA}, s[{SRD_OUT}:{SRD_OUT+3}], s{self.S_OUT} offen offset:{16*(tau>>1)}")
        self.stamp("out stored")
        k("L_done:")

    def build(self):
        k = self.k
        o = self.opt
        self.prologue()
        if self.typ == 0: k("s_bitcmp1_b32 s2, 3\ns_cbranch_scc1 L_TYPE1")
        k.c("SPLIT")
        self.pace = o.get("pace_k", 56)
        self.kgen()
        self.stamp("kgen done")
        self.pace = o.get("pace_ln", 56)
        self.ln1()
        self.pace = o.get("pace_g1", 52)
        self.gemm1(0, w_c=o.get('w_c0', 0), mid={2: self.stats_addr})
        self.stamp("gemm z2")
        self.poll_check(self.h_go, sleep=8)
        self.gelu2()
        self.stats_publish()
        k.wait_vm(self.t_ut)
        self.flag(0)
        self.stamp("stats out")
        def f0():
            k.wait_vm(self.t_ut)
            self.flag(0)
        mid = {o.get('u_c', 6): self.u_poll_issue, o.get('u_c2', 10): self.u_load, 9: self.z_addr, o.get("st_c", 12): self.stats_issue}
        self.gemm1(1, w_c=o.get('w_c', 0), mid=mid)
        for p in range(14):
            a = self.V_ACC + 2 * p
            k(f"v_cvt_pk_bf16_f32 v{self.V_Z1+p}, v{a}, v{a+1}")
        self.stamp("gemm z1")
        self.stats_collect_normalize()
        self.stamp("z2 stored")
        k("s_barrier")
        self.k_write()
        self.u_write_copy8()
        with k.atomic():
            k("s_waitcnt lgkmcnt(0)\ns_barrier")
        k.wait_vm(self.t_z)
        self.flag(1)
        self.stamp("z2 out")
        self.u_copies(mid=self.k_expand)
        self.conv()
        self.stamp("conv done")
        self.phase2()
        self.phase3()
        self.finish()

HEADER_IN = open("recurrent_scan__ssm_conv_s4d__mixer_gmlp__prompt.s.ref").read().split("; Override")[0]

def generate(stop=None, stamps=False, name=NAME, opt=None):
    g = Gen(stop, stamps, dict(opt or {}, typ=0))
    g.build()
    body = g.k.finalize()
    g1 = Gen(stop, stamps, dict(opt or {}, typ=1))
    g1.build()
    b1 = g1.k.finalize().split("; SPLIT\n")[1]
    assert g.stamp_names == g1.stamp_names
    body += "L_TYPE1:\n    s_nop 4\n" + re.sub(r"\bL_(\w+)", r"M_\1", b1)
    txt = HEADER_IN
    txt += f"; @launch grid=(256,1,1) block=(256,1,1) lds=163840\n"
    txt += '.amdgcn_target "amdgcn-amd-amdhsa--gfx950"\n.text\n'
    txt += f".globl {name}\n.p2align 8\n.type {name},@function\n{name}:\n"
    txt += body
    txt += "L_exit:\n    s_endpgm\nL_code_end:\n"
    txt += f".set CODE_BYTES, L_code_end - {name}\n"
    txt += f""".section .rodata,"a"
.p2align 6
.amdhsa_kernel {name}
  .amdhsa_next_free_vgpr 512
  .amdhsa_next_free_sgpr 102
  .amdhsa_accum_offset 256
  .amdhsa_group_segment_fixed_size 0
  .amdhsa_kernarg_size 120
  .amdhsa_user_sgpr_count 2
  .amdhsa_user_sgpr_kernarg_segment_ptr 1
  .amdhsa_system_sgpr_workgroup_id_x 1
  .amdhsa_float_denorm_mode_32 3
.end_amdhsa_kernel
"""
    return txt, g

if __name__ == "__main__":
    out = sys.argv[1] if len(sys.argv) > 1 else "k.s"
    txt, g = generate(None, stamps=len(sys.argv) > 2)
    open(out, "w").write(txt)
    print("nops inserted", g.k.n_nops, "instr", sum(1 for i in g.k.ins if i.kind != "meta"), "est", g.k.est)
```

```python
import sys, math, struct
sys.path.insert(0, "work")
from kg import *

NAME = "recurrent_scan__ssm_conv_s4d__mixer_gmlp__prompt_kernel"
def f2u(x): return struct.unpack("<I", struct.pack("<f", x))[0]
LOG2E = math.log2(math.e)

WS_FLAG = 0x0
WS_STAT = 0x40000
WS_UT   = 0x100000
WS_Z    = 0x400000
WS_ST   = 0x800000
WS_H    = 0xC00000
WS_XN   = 0x1000000
WS_DBG  = 0x2000000
WS_SIZE = 0x10000000

S_WG = 2; S_W = 3; S_TB = 4; S_FB = 5; S_RHO = 6; S_RHO2 = 7
SRD_X = 8; SRD_WIN = 12; SRD_WSP = 16; SRD_WOUT = 20; SRD_WS = 24; SRD_OUT = 28; SRD_DBG = 32
S_CO = 36
S_XL = 44
S_W7 = 45
S_CP = 46; S_F4 = 47
S_TB3 = 48; S_DB = 49
S_T0 = 50
S_XO = 52; S_XB = 53
S_MASK = 54
S_ONES = 55
S_XF = 100; S_WG1 = 101
S_WB = 94; S_WO = 95; S_XE = 96; S_FL = 97

RB = 0
RA = 57344
SP = RA + 14 * 7168
UC = RA
UCP = 4160
UCH = 8 * UCP
KX = UC + 2 * UCH
KXP = 4608
KC = KX + 2 * KXP
CRED = 139264
assert CRED >= KC + 2048
X2 = RA
X3 = RB
SX = RB + 16384
assert CRED + 16384 <= SP

class Gen:
    V_XD = 2; V_XR = 4; V_WD = 6; V_TR = 13; V_T = 15
    V_X = 16; V_B = 72; V_TMP = 88; V_ACC = 128; V_Z = 156; V_ID = 184
    V_PAR = 192; V_U = 192; V_KP = 200; V_P = 206
    V_S = 212; V_WR = 220; V_WV = 224
    V_G = 228; V_GD = 229; V_XS = 234
    V_YS = 230; V_DS = 231; V_BSP = 232; V_L16 = 233
    V_DT = 238; V_STAMP = 239; V_Z1 = 240

    def __init__(self, stop=None, stamps=False, opt=None):
        self.k = K()
        self.stop = stop
        self.stamps = stamps
        self.opt = opt or {}
        self.nstamp = 0
        self.stamp_names = []
        self.q = []
        self.ev = []
        self.ev2 = []
        self.pace = 64
        self.next_bg = 0; self.next_ev = 0
        self.w_on = False
        self.k.bg_hook = self.bg_hook
        self.t_chunk = {}; self.vm_at_half = {}

    def bg_hook(self):
        k = self.k
        if self.ev2 and k.est >= self.ev2[0][0]: self.ev2.pop(0)[1]()
        if self.ev and k.est >= max(self.ev[0][0], self.next_ev):
            g = self.ev.pop(0)[1]()
            self.next_ev = k.est + (g if g is not None else 32)
            self.next_bg = max(self.next_bg, self.next_ev)
            return
        if k.est < self.next_bg: return
        if self.q:
            if k.est < getattr(self.q[0], "nb", 0): return
            f = self.q.pop(0)
            g = f()
            self.next_bg = k.est + (g if g is not None else self.pace)
        elif self.w_on:
            g = self.w_step()
            if g: self.next_bg = k.est + g
    def at(self, f, nb):
        f.nb = nb
        self.q.append(f)
    def bg_flush(self):
        self.k.in_bg += 1
        while self.ev: self.ev.pop(0)[1]()
        while self.q: self.q.pop(0)()
        self.k.in_bg -= 1
    def stamp(self, name):
        if not self.stamps: return
        k = self.k
        with k.atomic():
            k(f"""
            s_memtime s[98:99]
            s_waitcnt lgkmcnt(0)
            s_sub_u32 s98, s98, s{S_T0}
            v_writelane_b32 v{self.V_STAMP}, s98, {self.nstamp}
            """)
        self.stamp_names.append(name)
        self.nstamp += 1
    def srd(self, dst, src, nbytes):
        self.k(f"""
        s_mov_b64 s[{dst}:{dst+1}], s[{src}:{src+1}]
        s_mov_b32 s{dst+2}, {nbytes}
        s_mov_b32 s{dst+3}, 0x20000
        """)
    def dump(self, regs, slot, file="v"):
        k = self.k
        n = len(regs)
        k.nobg += 1
        k(f"""
        s_lshl_b32 s98, s{S_WG}, 2
        s_add_u32 s98, s98, s{S_W}
        s_mul_i32 s98, s98, {n*256}
        s_add_u32 s98, s98, {WS_DBG + slot * 0x1000000}
        v_lshlrev_b32 v{self.V_DT}, 2, v1
        """)
        for i, r in enumerate(regs):
            k(f"buffer_store_dword {file}{r}, v{self.V_DT}, s[{SRD_WS}:{SRD_WS+3}], s98 offen")
            k("s_add_u32 s98, s98, 256")
        k.nobg -= 1
    def finish(self):
        k = self.k
        self.w_on = False; self.q = []
        if self.stamps:
            self.dump([self.V_STAMP], 7)
        k("s_endpgm")
    def xreduce_g(self, r, tmp):
        self.k(f"""
        v_mov_b32 v{tmp}, v{r}
        v_permlane16_swap_b32 v{r}, v{tmp}
        v_add_f32 v{r}, v{r}, v{tmp}
        v_mov_b32 v{tmp}, v{r}
        v_permlane32_swap_b32 v{r}, v{tmp}
        v_add_f32 v{r}, v{r}, v{tmp}
        """)
    def rbf(self, dst, src):
        self.k(f"v_cvt_pk_bf16_f32 v{dst}, v{src}, v{src}\nv_and_b32 v{dst}, s{S_MASK}, v{dst}")

    def poll_issue(self, addr_v, dst_v, srd=SRD_WS, soff="0"):
        t = self.k(f"buffer_load_dword v{dst_v}, v{addr_v}, s[{srd}:{srd+3}], {soff} offen sc1")
        return (t, addr_v, dst_v, srd, soff)
    def poll_check(self, h, sleep=1, sc=56, old='0', bump=False):
        k = self.k
        t, addr_v, dst_v, srd, soff = h
        L = k.label("L_poll")
        with k.atomic():
            k.wait_vm(t)
            k(f"""
            v_cmp_eq_u32 vcc, {old}, v{dst_v}
            s_cbranch_vccz {L}_ok
            """)
            with k.branch():
                k(f"""
                s_mov_b32 s{sc}, 0
                {L}:
                buffer_load_dword v{dst_v}, v{addr_v}, s[{srd}:{srd+3}], {soff} offen sc1
                s_add_u32 s{sc}, s{sc}, 1
                s_waitcnt vmcnt(0)
                v_cmp_eq_u32 vcc, {old}, v{dst_v}
                s_cbranch_vccz {L}_ok
                {self.bump_txt() if bump else ''}
                s_sleep {sleep}
                s_cmp_lt_u32 s{sc}, 100000
                s_cbranch_scc1 {L}
                """)
            k(f"{L}_ok:")
    def set_flag(self, soff_expr_setup, sreg):
        k = self.k
        T = self.V_S
        k(soff_expr_setup + f"""
        v_mov_b32 v{T+6}, 0
        v_mov_b32 v{T+7}, 1
        s_mov_b64 exec, 1
        buffer_store_dword v{T+7}, v{T+6}, s[{SRD_WS}:{SRD_WS+3}], s{sreg} offen sc1
        s_mov_b64 exec, -1
        """)
    def flag(self, stage):
        if stage == 0: self.set_flag("", S_FL)
        else: self.set_flag(f"s_add_u32 s56, s{S_FL}, {stage*32768}\n", 56)

    def prologue(self):
        k = self.k
        T = self.V_TMP; P = self.V_PAR; XD = self.V_XD; X = self.V_X; XS = self.V_XS
        NT = 'nt' if self.opt.get('nt', 1) else ''
        k.nobg += 1
        k(f"""
        s_cmp_ge_u32 s2, 256
        s_cbranch_scc1 L_exit
        s_load_dwordx16 s[64:79], s[0:1], 0
        s_load_dwordx8 s[80:87], s[0:1], 64
        s_load_dwordx4 s[88:91], s[0:1], 96
        s_load_dwordx2 s[92:93], s[0:1], 112
        """)
        if self.stamps:
            k(f"s_memtime s[{S_T0}:{S_T0+1}]")
            k(f"v_mov_b32 v{self.V_STAMP}, 0")
        k(f"""
        s_getpc_b64 s[56:57]
        s_and_b32 s56, s56, 0xffffff00
        s_mov_b32 s58, CODE_BYTES
        s_mov_b32 s59, 0x20000
        s_lshr_b32 s61, s2, 3
        s_lshl_b32 s60, s61, 11
        v_lshl_add_u32 v{T}, v0, 3, s60
        buffer_load_dwordx2 v[{self.V_S}:{self.V_S+1}], v{T}, s[56:59], 0 offen
        v_lshrrev_b32 v{T+1}, 6, v0
        v_and_b32 v1, 63, v0
        v_readfirstlane_b32 s{S_W}, v{T+1}
        s_and_b32 s60, s2, 7
        s_sub_u32 s62, s61, 4
        s_cmp_ge_u32 s61, 28
        s_cselect_b32 s62, s62, s61
        s_mul_i32 s63, s60, 28
        s_add_u32 s{S_CP}, s63, s62
        s_lshl_b32 s62, s{S_CP}, 10
        v_lshl_add_u32 v{T+2}, v0, 2, s62
        v_xor_b32 v{T+3}, 256, v{T+2}
        v_lshrrev_b32 v{T+4}, 7, v0
        s_lshl_b32 s62, s{S_CP}, 2
        v_lshl_add_u32 v{T+4}, v{T+4}, 1, s62
        s_lshr_b32 s62, s60, 1
        s_lshl_b32 s62, s62, 3
        s_and_b32 s63, s61, 7
        s_add_u32 s{S_TB}, s62, s63
        s_and_b32 s62, s60, 1
        s_lshr_b32 s{S_RHO2}, s61, 3
        s_lshl2_add_u32 s{S_FB}, s62, s{S_RHO2}
        s_lshl1_add_u32 s{S_RHO2}, s{S_RHO2}, s63
        s_add_u32 s{S_RHO}, s{S_RHO2}, s62
        s_mov_b32 s{S_RHO2}, s{S_RHO}
        s_sub_u32 s62, s{S_RHO}, 7
        s_min_u32 s{S_RHO}, s{S_RHO}, s62
        s_sub_u32 s62, s{S_RHO}, 7
        s_min_u32 s{S_RHO}, s{S_RHO}, s62
        s_and_b32 s{S_RHO2}, s{S_RHO2}, 7
        s_lshl_b32 s{S_RHO2}, s{S_RHO2}, 1
        v_lshrrev_b32 v{T+5}, 5, v0
        v_mul_u32_u24 v{XD}, 896, v{T+5}
        v_and_b32 v{T+7}, 31, v1
        v_min_u32 v{T+7}, 27, v{T+7}
        v_lshl_add_u32 v{XD}, v{T+7}, 5, v{XD}
        s_lshl3_add_u32 s{S_FL}, s{S_TB}, s{S_FB}
        s_mul_i32 s{S_XO}, s{S_FL}, {8*896}
        s_mov_b32 s{SRD_X+2}, {2048*448*2}
        s_mov_b32 s{SRD_X+3}, 0x20000
        s_mov_b32 s{SRD_WS+2}, {WS_SIZE}
        s_mov_b32 s{SRD_WS+3}, 0x20000
        v_lshlrev_b32 v{self.V_L16}, 4, v1
        v_bfe_u32 v{XS}, v1, 2, 1
        v_lshlrev_b32 v{XS}, 7, v{XS}
        v_and_b32 v{XS+1}, 3, v1
        v_lshl_add_u32 v{XS}, v{XS+1}, 2, v{XS}
        s_lshl2_add_u32 s{S_XF}, s{S_TB}, s{S_W}
        s_lshl_b32 s{S_XF}, s{S_XF}, 8
        s_add_u32 s{S_XF}, s{S_XF}, {4*32768}
        s_waitcnt lgkmcnt(0)
        s_mov_b64 s[{SRD_X}:{SRD_X+1}], s[64:65]
        s_mov_b64 s[{SRD_WS}:{SRD_WS+1}], s[92:93]
        buffer_load_dword v{XS+1}, v{XS}, s[{SRD_WS}:{SRD_WS+3}], s{S_XF} offen sc1
        buffer_load_dwordx4 v[{X}:{X+3}], v{XD}, s[{SRD_X}:{SRD_X+3}], s{S_XO} offen {NT}
        """)
        self.t_x = k(f"buffer_load_dwordx4 v[{X+4}:{X+7}], v{XD}, s[{SRD_X}:{SRD_X+3}], s{S_XO} offen offset:16 {NT}")
        k(f"""
        global_load_dword v{P}, v{T+2}, s[66:67] {NT}
        global_load_dword v{P+1}, v{T+2}, s[68:69] {NT}
        global_load_dword v{P+2}, v{T+2}, s[70:71] {NT}
        global_load_dword v{P+3}, v{T+2}, s[72:73] {NT}
        global_load_dword v{P+4}, v{T+3}, s[70:71] {NT}
        global_load_dword v{P+5}, v{T+3}, s[72:73] {NT}
        global_load_ushort v{P+6}, v{T+4}, s[74:75]
        """)
        self.t_par = k(f"global_load_ushort v{P+7}, v{T+4}, s[76:77]")
        self.stamp("x issued")
        self.srd(SRD_WIN, 80, 448 * 1792 * 2)
        self.srd(SRD_DBG, 90, 256)
        if self.opt.get("wing", 1) == 1: self.win_gather()
        self.srd(SRD_WSP, 82, 2048 * 2048 * 2)
        self.srd(SRD_WOUT, 86, 896 * 448 * 2)
        self.srd(SRD_OUT, 88, 2048 * 448 * 2)
        k(f"""
        s_mul_i32 s{S_XL}, s{S_W}, 14336
        s_mov_b32 s{S_MASK}, 0xffff0000
        s_mov_b32 s{S_ONES}, 0x3f803f80
        s_cmp_ge_u32 s2, 224
        s_cselect_b32 s{S_F4}, s2, s{S_CP}
        s_lshl_b32 s{S_FL}, s{S_FL}, 7
        s_lshl2_add_u32 s{S_FL}, s{S_W}, s{S_FL}
        s_and_b32 s56, s61, 3
        s_lshl2_add_u32 s{S_TB3}, s60, s56
        s_lshr_b32 s{S_DB}, s61, 2
        s_mul_i32 s{S_W7}, s{S_W}, 7168
        s_add_u32 s{S_W7}, s{S_W7}, {RA}
        s_lshl_b32 s56, s{S_TB}, 7
        s_lshl_b32 s57, s{S_W}, 5
        s_add_u32 s56, s56, s57
        v_and_b32 v{T}, 15, v1
        v_lshl_add_u32 v{T+2}, v{T}, 1, s56
        global_load_ushort v{self.V_BSP}, v{T+2}, s[84:85]
        v_mul_u32_u24 v{XD+1}, 288, v{T+7}
        v_lshl_add_u32 v{XD+1}, v{T+5}, 4, v{XD+1}
        v_mul_u32_u24 v{T+3}, 37, v{T+7}
        v_lshrrev_b32 v{T+3}, 8, v{T+3}
        v_mul_u32_u24 v{T+3}, {14336 - 14*144}, v{T+3}
        v_add_u32 v{XD+1}, v{XD+1}, v{T+3}
        v_lshrrev_b32 v{T+3}, 3, v1
        v_and_b32 v{T+4}, 7, v1
        v_lshlrev_b32 v{T+4}, 4, v{T+4}
        v_lshl_add_u32 v{XD}, v{T+3}, 8, v{T+4}
        v_mul_u32_u24 v{T+3}, 144, v{T+3}
        v_add3_u32 v{self.V_T}, v{T+3}, v{T+4}, s{S_XL}
        s_lshr_b32 s56, s{S_FB}, 1
        s_lshl2_add_u32 s56, s{S_TB}, s56
        s_lshl2_add_u32 s56, s56, s{S_W}
        s_mul_i32 s56, s56, 3584
        s_and_b32 s57, s{S_FB}, 1
        s_lshl_b32 s57, s57, 7
        s_add_u32 s56, s56, s57
        s_add_u32 s{S_XO}, s56, {WS_XN}
        s_lshl2_add_u32 s56, s{S_TB}, s{S_W}
        s_mul_i32 s56, s56, 14336
        s_add_u32 s{S_XB}, s56, {WS_XN}
        s_add_u32 s{S_XE}, s{S_XB}, 14336
        v_lshrrev_b32 v{T+6}, 4, v1
        v_and_b32 v{T+7}, 7, v1
        v_xor_b32 v{T+6}, v{T+6}, v{T+7}
        """)
        k(f"""
        s_mul_i32 s60, s{S_FB}, 224
        s_xor_b32 s61, s{S_FB}, 1
        s_mul_i32 s61, s61, 224
        s_add_u32 s61, s61, 1792
        s_and_b32 s62, s{S_W}, 1
        s_mul_i32 s62, s62, {32*3584}
        s_add_u32 s60, s60, s62
        s_add_u32 s61, s61, s62
        s_lshr_b32 s62, s{S_W}, 1
        s_add_u32 s62, s62, s{S_RHO}
        """)
        for c0, dsts in ((0, (0, 4)), (4, (1, 5)), (8, (2, 6)), (12, (3, 7))):
            k(f"""
            s_add_u32 s56, s62, {c0 >> 1}
            s_sub_u32 s57, s56, 7
            s_min_u32 s56, s56, s57
            s_mul_i32 s56, s56, {64*3584}
            """)
            if dsts[0] is not None: k(f"s_add_u32 s{S_CO+dsts[0]}, s56, s61")
            if dsts[1] is not None: k(f"s_add_u32 s{S_CO+dsts[1]}, s56, s60")
        WD = self.V_WD
        for n in range(7):
            k(f"""
            v_add_u32 v{T}, {64*n}, v1
            v_mul_u32_u24 v{T+1}, 4682, v{T}
            v_lshrrev_b32 v{T+1}, 16, v{T+1}
            v_mul_u32_u24 v{T+2}, 14, v{T+1}
            v_sub_u32 v{T+2}, v{T}, v{T+2}
            v_and_b32 v{T+3}, 0x13, v{T+1}
            v_and_b32 v{T+4}, 4, v{T+1}
            v_lshl_or_b32 v{T+3}, v{T+4}, 1, v{T+3}
            v_and_b32 v{T+4}, 8, v{T+1}
            v_lshrrev_b32 v{T+4}, 1, v{T+4}
            v_or_b32 v{T+3}, v{T+3}, v{T+4}
            v_mul_u32_u24 v{T+3}, 3584, v{T+3}
            v_lshl_add_u32 v{WD+n}, v{T+2}, 4, v{T+3}
            """)
            if n & 3: k(f"v_subrev_u32 v{WD+n}, {(n&3)*1024}, v{WD+n}")
        XR = self.V_XR; WR = self.V_WR; WV = self.V_WV
        k(f"""
        v_and_b32 v{T}, 15, v1
        v_lshrrev_b32 v{T+1}, 4, v1
        v_lshrrev_b32 v{T+2}, 1, v{T}
        v_xor_b32 v{T+2}, v{T+1}, v{T+2}
        v_lshlrev_b32 v{T+3}, 7, v{T}
        v_lshl_add_u32 v{T+2}, v{T+2}, 4, v{T+3}
        v_add_u32 v{XR}, s{S_XL}, v{T+2}
        v_xor_b32 v{XR+1}, 64, v{XR}
        v_lshrrev_b32 v{T+3}, 3, v1
        v_lshlrev_b32 v{T+3}, 12, v{T+3}
        v_lshl_add_u32 v{WV}, v{T+6}, 4, v{T+3}
        v_xor_b32 v{WV+1}, 64, v{WV}
        v_add_u32 v{WV+1}, {8*4096 - 1024}, v{WV+1}
        s_lshl_b32 s{S_WB}, s{S_TB}, 18
        s_mul_i32 s56, s{S_W}, {1024 + 65536}
        s_add_u32 s{S_WB}, s{S_WB}, s56
        v_lshrrev_b32 v{T+3}, 2, v1
        v_and_b32 v{T+4}, 7, v{T+3}
        v_and_b32 v{T+3}, 8, v{T+3}
        v_lshl_add_u32 v{T+3}, v{T+3}, 1, v{T+4}
        v_mul_u32_u24 v{T+3}, 224, v{T+3}
        v_and_b32 v{T+4}, 3, v1
        v_lshl_add_u32 v{T+3}, v{T+4}, 3, v{T+3}
        v_add_u32 v{self.V_TR}, {RA}, v{T+3}
        v_add_u32 v{self.V_TR+1}, {RA + 0x10000}, v{T+3}
        """)
        ID = self.V_ID
        k(f"""
        v_and_b32 v{T+3}, 1, v1
        v_lshlrev_b32 v{T+3}, 4, v{T+3}
        v_mov_b32 v{T+4}, 0x3f80
        v_lshlrev_b32 v{T+3}, v{T+3}, v{T+4}
        v_lshrrev_b32 v{T+4}, 3, v{T}
        v_sub_u32 v{T+4}, v{T+1}, v{T+4}
        v_bfe_u32 v{T+5}, v1, 1, 2
        v_lshl_or_b32 v{T+4}, v{T+4}, 2, v{T+5}
        """)
        for h in range(2):
            for r in range(4):
                k(f"v_cmp_eq_u32 vcc, {h*8+r}, v{T+4}")
                k(f"v_cndmask_b32 v{ID+h*4+r}, 0, v{T+3}, vcc")
        k.nobg -= 1
        self.w_g = 0; self.w_i = 0; self.w_r = 0; self.w_tag = {}; self.w_rtag = {}; self.w_time = {}; self.w_rtime = {}
        self.stamp("setup done")

    def xn_pair(self, j):
        k = self.k
        X = self.V_X + 8 * j
        if j == 0:
            k(f"s_lshl_b32 s{S_XO}, s{S_RHO}, 11\ns_add_u32 s{S_XO}, s{S_XO}, s{S_XB}")
        k(f"buffer_load_dwordx4 v[{X}:{X+3}], v{self.V_L16}, s[{SRD_WS}:{SRD_WS+3}], s{S_XO} offen sc1")
        self.t_xn[j] = k(f"buffer_load_dwordx4 v[{X+4}:{X+7}], v{self.V_L16}, s[{SRD_WS}:{SRD_WS+3}], s{S_XO} offen offset:1024 sc1")
        if j < 6:
            k(f"""
            s_add_u32 s{S_XO}, s{S_XO}, 2048
            s_cmp_eq_u32 s{S_XO}, s{S_XE}
            s_cselect_b32 s{S_XO}, s{S_XB}, s{S_XO}
            """)
        return self.opt.get("xn_gap", 100)

    def queue_chunk(self, part, b, slot0, half=False):
        k = self.k
        so = S_CO + 4 * part + b
        def dma(n):
            if (n & 3) == 0: k(f"s_add_u32 m0, s{S_W7}, {slot0*7168 + n*1024}")
            return k(f"buffer_load_dwordx4 v{self.V_WD+n}, s[{SRD_WIN}:{SRD_WIN+3}], s{so} offen offset:{(n&3)*1024} lds")
        if half:
            def grp(ns):
                L = k.label("L_hc")
                k(f"s_cmp_ge_u32 s{S_W}, 2\ns_cbranch_scc1 {L}")
                with k.branch():
                    for n in ns: dma(n)
                k(f"{L}:")
                self.t_chunk[(part, b)] = None
                self.vm_at_half[part] = k.vm
                return int(len(ns) * self.pace * 0.75)
            for ns in (range(4), range(4, 7)):
                f = lambda ns=ns: grp(ns)
                f.cb = (part, b); self.q.append(f)
        else:
            def pr(ns):
                k(f"s_add_u32 m0, s{S_W7}, {slot0*7168 + (ns[0] & 4)*1024}")
                for n in ns:
                    t = k(f"buffer_load_dwordx4 v{self.V_WD+n}, s[{SRD_WIN}:{SRD_WIN+3}], s{so} offen offset:{(n&3)*1024} lds")
                self.t_chunk[(part, b)] = t
                return int(len(ns) * self.pace * 1.5)
            for ns in ((0, 1), (2, 3), (4, 5), (6,)):
                f = lambda ns=ns: pr(ns)
                f.cb = (part, b); self.q.append(f)

    NWB = 7
    def w_issue_txt(self, u, half=None):
        p = u >> 2; tau = u & 3
        t = ""
        if half != 1:
            if tau == 0:
                t += f"""
                s_add_u32 s{S_WO}, s{S_RHO2}, {2*p}
                s_and_b32 s{S_WO}, s{S_WO}, 15
                s_lshl_b32 s{S_WO}, s{S_WO}, 6
                s_add_u32 s{S_WO}, s{S_WO}, s{S_WB}
                """
            else:
                t += f"s_xor_b32 s{S_WO}, s{S_WO}, {(tau ^ (tau - 1)) << 16}\n"
        t += f"s_add_u32 m0, s{S_XL}, {RB + ((u + 3) % self.NWB) * 2048}\n"
        for i in ((0, 1) if half is None else (half,)):
            t += f"buffer_load_dwordx4 v{self.V_WV+i}, s[{SRD_WSP}:{SRD_WSP+3}], s{S_WO} offen offset:{i*1024} lds\n"
        return t
    def w_cold(self, i):
        k = self.k
        u = i >> 1
        t = k(self.w_issue_txt(u, i & 1))
        if i & 1:
            self.w_tag[u] = t; self.w_time[u] = k.est + 800
            self.w_g += 1
    def w_slot(self, i, ns):
        k = self.k
        L = k.label("L_wg")
        with k.atomic():
            k(f"s_and_b32 s90, s{S_TB}, {ns - 1}\ns_cmp_lg_u32 s90, {i}\ns_cbranch_scc1 {L}")
            e0 = k.est
            with k.branch():
                for u in range(4): k(self.w_issue_txt(u))
                k(f"""
                s_lshl2_add_u32 s90, s2, s{S_W}
                s_mul_i32 s90, s90, 896
                v_min_u32 v{self.V_G}, 6, v1
                v_lshlrev_b32 v{self.V_G}, 7, v{self.V_G}
                buffer_load_dword v{self.V_GD}, v{self.V_G}, s[{SRD_WOUT}:{SRD_WOUT+3}], s90 offen
                """)
            k(f"{L}:")
            k.est = e0 + (k.est - e0) / ns
        if i == ns - 1:
            for u in range(4):
                self.w_tag[u] = ("opt", k.vm); self.w_time[u] = k.est + 800
            self.w_g = 4
    def w_step(self, force=False):
        k = self.k
        lat = self.opt.get("w_lat", 700)
        u = self.w_r
        if u < 32 and u < self.w_g and (force or k.est >= self.w_time[u] + lat):
            p = u >> 2; tau = u & 3
            t = self.w_tag[u]
            if isinstance(t, tuple):
                if k.vm_done <= t[1]: k(f"s_waitcnt vmcnt({min(k.vm - t[1], 63)})")
            else: k.wait_vm(t)
            for par in range(2):
                ar = ((2*p + par) * 4 + tau) * 4
                t = k(f"ds_read_b128 a[{ar}:{ar+3}], v{self.V_XR+par} offset:{RB + ((u + 3) % self.NWB) * 2048}")
            self.w_rtag[u] = t; self.w_rtime[u] = k.est
            self.w_r += 1
            return 1
        u = self.w_g
        if u >= 32 or u < 4 or u - self.w_r >= self.NWB: return 0
        if u >= self.NWB:
            if not force and k.est < self.w_rtime[u - self.NWB] + 100: return 0
            k.wait_lg(self.w_rtag[u - self.NWB])
        t = k(self.w_issue_txt(u))
        self.w_tag[u] = t; self.w_time[u] = k.est + (self.opt.get("w_mall", 500) if u < 8 else 0)
        self.w_g += 1
        return 2 * self.pace
    def wout_gather(self):
        k = self.k
        G = self.V_G
        k(f"""
        v_mul_u32_u24 v{G}, 896, v{G}
        s_and_b32 s90, s{S_TB3}, 3
        s_lshl2_add_u32 s90, s{S_W}, s90
        s_mul_i32 s90, s90, {56*896}
        s_min_u32 s91, s{S_DB}, 6
        s_lshl_b32 s91, s91, 7
        s_add_u32 s90, s90, s91
        buffer_load_dword v{self.V_GD}, v{G}, s[{SRD_WOUT}:{SRD_WOUT+3}], s90 offen
        """)
    def win_gather(self):
        k = self.k
        G = self.V_P
        k(f"""
        v_min_u32 v{G}, 12, v1
        v_lshlrev_b32 v{G}, 7, v{G}
        s_lshr_b32 s90, s2, 1
        s_mul_i32 s90, s90, {7*1792}
        s_and_b32 s91, s2, 1
        s_mul_i32 s91, s91, 896
        s_add_u32 s90, s90, s91
        v_lshrrev_b32 v{G}, 2, v0
        v_lshrrev_b32 v{G+1}, 3, v{G}
        v_min_u32 v{G+1}, 6, v{G+1}
        v_mul_u32_u24 v{G+1}, 1792, v{G+1}
        v_and_b32 v{G}, 7, v{G}
        v_min_u32 v{G}, 6, v{G}
        v_lshl_add_u32 v{G}, v{G}, 7, v{G+1}
        buffer_load_dword v{self.V_GD}, v{G}, s[{SRD_WIN}:{SRD_WIN+3}], s90 offen
        """)
    def w_finish(self):
        self.k.in_bg += 1
        while self.ev2: self.ev2.pop(0)[1]()
        while self.w_r < 32:
            if not self.w_step(): self.w_step(force=True)
        self.k.in_bg -= 1
        self.w_on = False

    def cmul(self, d, a_, b):
        self.k(f"""
        v_pk_mul_f32 v[{d}:{d+1}], v[{a_}:{a_+1}], v[{b}:{b+1}] op_sel:[0,0] op_sel_hi:[0,1]
        v_pk_fma_f32 v[{d}:{d+1}], v[{a_}:{a_+1}], v[{b}:{b+1}], v[{d}:{d+1}] op_sel:[1,1,0] op_sel_hi:[1,0,1] neg_lo:[0,1,0]
        """)
    def cexp(self, d, al, be, p, t):
        k = self.k
        pf = f2u(float(p))
        k(f"""
        v_mul_f32 v{t}, {pf}, v{al}
        v_mul_f32 v{d+1}, {pf}, v{be}
        v_exp_f32 v{t}, v{t}
        v_fract_f32 v{d+1}, v{d+1}
        v_cos_f32 v{d}, v{d+1}
        v_sin_f32 v{d+1}, v{d+1}
        v_mul_f32 v{d}, v{t}, v{d}
        v_mul_f32 v{d+1}, v{t}, v{d+1}
        """)
    def wave_sum(self, r, tmp):
        k = self.k
        for sh in (8, 4, 2, 1):
            k(f"v_add_f32_dpp v{r}, v{r}, v{r} row_ror:{sh} row_mask:0xf bank_mask:0xf")
        self.xreduce_g(r, tmp)

    def kgen(self):
        k = self.k
        P = self.V_PAR
        R = 72
        AL = R; BE = R + 2; CR = R + 4
        T = R + 8
        WA = R + 16; RAD = R + 24
        Q = R + 28
        Z8 = R + 44; Z128 = R + 46
        PA = R + 48; PB = R + 50; TM = R + 52
        PK = R + 56
        FL = R + 72; FH = R + 88
        AC = self.V_Z1
        k.nobg += 1
        k(f"v_lshl_add_u32 v{WA}, v1, 2, s{S_XL}")
        for c in range(1, 8): k(f"v_xor_b32 v{WA+c}, {c*32}, v{WA}")
        k(f"""
        v_and_b32 v{T}, 15, v1
        v_and_b32 v{T+1}, 7, v1
        v_lshlrev_b32 v{T+1}, 5, v{T+1}
        v_and_b32 v{T+2}, 48, v1
        v_xor_b32 v{T+1}, v{T+1}, v{T+2}
        v_lshl_add_u32 v{T+1}, v{T}, 8, v{T+1}
        v_add_u32 v{RAD}, s{S_XL}, v{T+1}
        """)
        for kk in range(1, 4): k(f"v_xor_b32 v{RAD+kk}, {kk*64}, v{RAD}")
        k.nobg -= 1
        self.ln1()
        k.wait_vm(self.t_par)
        k(f"""
        v_lshlrev_b32 v{T}, 16, v{P+6}
        v_mul_f32 v{T}, {f2u(LOG2E)}, v{T}
        v_exp_f32 v{T}, v{T}
        v_lshlrev_b32 v{self.V_DS}, 16, v{P+7}
        """)
        self.rbf(T, T)
        for m in range(2):
            un = (lambda d, sr: f"v_lshlrev_b32 v{d}, 16, v{sr}") if m == 0 else (lambda d, sr: f"v_and_b32 v{d}, s{S_MASK}, v{sr}")
            k(un(AL + m, P)); k(un(BE + m, P + 1)); k(un(CR + 2*m, P + 2)); k(un(CR + 2*m + 1, P + 3))
            k(un(T + 2 + 2*m, P + 4)); k(un(T + 3 + 2*m, P + 5))
            k(f"v_mul_f32 v{AL+m}, {f2u(LOG2E)}, v{AL+m}")
            k(f"v_exp_f32 v{AL+m}, v{AL+m}")
        k(f"v_cvt_pk_bf16_f32 v{T+1}, v{AL}, v{AL+1}")
        k(f"v_lshlrev_b32 v{AL}, 16, v{T+1}\nv_and_b32 v{AL+1}, s{S_MASK}, v{T+1}")
        for m in range(2):
            k(f"v_mul_f32 v{AL+m}, v{AL+m}, v{T}")
            k(f"v_mul_f32 v{AL+m}, {f2u(-LOG2E)}, v{AL+m}")
            k(f"v_mul_f32 v{BE+m}, v{BE+m}, v{T}")
            k(f"v_mul_f32 v{BE+m}, {f2u(1.0/(2*math.pi))}, v{BE+m}")
        k(f"v_add_f32 v{T+1}, abs(v{CR}), abs(v{CR+1})")
        for r in (CR+2, CR+3, T+2, T+3, T+4, T+5):
            k(f"v_add_f32 v{T+1}, v{T+1}, abs(v{r})")
        self.wave_sum(T + 1, T + 2)
        k(f"""
        v_mul_f32 v{T+1}, v{T+1}, v{T}
        v_mul_f32 v{T+1}, {f2u(1.001)}, v{T+1}
        v_frexp_exp_i32_f32 v{T+1}, v{T+1}
        v_sub_u32 v{T+2}, 15, v{T+1}
        v_subrev_u32 v{T+3}, 14, v{T+1}
        v_ldexp_f32 v{self.V_YS}, 1.0, v{T+3}
        """)
        for r in range(4):
            k(f"v_mul_f32 v{CR+r}, v{CR+r}, v{T}")
            k(f"v_ldexp_f32 v{CR+r}, v{CR+r}, v{T+2}")
        HS = f2u(16384.0)
        SH = 64
        k(f"s_mov_b32 s{SH}, {HS}")
        def pack(dst, c, neg=False):
            k(f"v_cvt_pk_f16_f32 v{dst}, v{c}, {'-' if neg else ''}v{c+1}")
        def wr2(r0, p0, p1):
            k(f"ds_write2st64_b32 v{WA + r0}, v{p0}, v{p1} offset0:{r0} offset1:{r0+8}")
        def wr1(r0, p0):
            k(f"ds_write_b32 v{WA + (r0 & 7)}, v{p0} offset:{r0*256}")
        def rd(f):
            for kk in range(4): t = k(f"ds_read_b128 v[{f+4*kk}:{f+4*kk+3}], v{RAD+kk}")
            return t
        pend = []
        def mm():
            if not pend: return
            t, tag, first = pend.pop()
            k.wait_lg(tag)
            for kk in range(4):
                src = "0" if (first and kk == 0) else f"v[{AC+4*t}:{AC+4*t+3}]"
                k(f"v_mfma_f32_16x16x32_f16 v[{AC+4*t}:{AC+4*t+3}], v[{FH+4*kk}:{FH+4*kk+3}], v[{FL+4*kk}:{FL+4*kk+3}], {src}")
        for ps in range(2):
            al = AL + ps; be = BE + ps; C = CR + 2*ps
            self.cexp(Q + 2, al, be, 1, T)
            self.cexp(Z8, al, be, 8, T + 1)
            mm()
            self.cexp(Z128, al, be, 128, T + 2)
            self.cmul(Q + 4, Q + 2, Q + 2)
            self.cmul(Q + 6, Q + 4, Q + 2)
            self.cmul(Q + 8, Q + 4, Q + 4)
            self.cmul(Q + 10, Q + 8, Q + 2)
            self.cmul(Q + 12, Q + 8, Q + 4)
            self.cmul(Q + 14, Q + 8, Q + 6)
            cur = C
            for r in range(16):
                pack(PK + r, cur, neg=True)
                if r >= 8: wr2(r - 8, PK + r - 8, PK + r)
                if r < 15:
                    nx = PA if cur != PA else PB
                    self.cmul(nx, cur, Z8); cur = nx
            rd(FL)
            k(f"v_mul_f32 v{PA}, s{SH}, v{Z128}\nv_mul_f32 v{PA+1}, s{SH}, v{Z128+1}")
            k(f"v_mov_b32 v{PK}, 0x7400")
            pack(PK + 8, PA)
            wr2(0, PK, PK + 8)
            for j in range(1, 8):
                k(f"v_mul_f32 v{TM}, s{SH}, v{Q+2*j}\nv_mul_f32 v{TM+1}, s{SH}, v{Q+2*j+1}")
                pack(PK + j, TM)
                self.cmul(TM + 2, PA, Q + 2*j)
                pack(PK + 8 + j, TM + 2)
                wr2(j, PK + j, PK + 8 + j)
            pend.append((0, rd(FH), ps == 0))
            cur = PA
            def nextP():
                nonlocal cur
                nx = PA if cur != PA else PB
                self.cmul(nx, cur, Z128); cur = nx
            for i in (2, 3):
                nextP()
                for jj, j in enumerate((0, 2, 4, 6)):
                    idx = (i - 2) * 4 + jj
                    if j == 0: pack(PK + idx, cur)
                    else:
                        self.cmul(TM, cur, Q + 2*j); pack(PK + idx, TM)
            mm()
            for i in (4, 5, 6, 7):
                nextP()
                for jj, j in enumerate((0, 4)):
                    idx = (i - 4) * 2 + jj
                    if j == 0: pack(PK + 8 + idx, cur)
                    else:
                        self.cmul(TM, cur, Q + 2*j); pack(PK + 8 + idx, TM)
                    wr2(idx, PK + idx, PK + 8 + idx)
            pend.append((1, rd(FH), ps == 0))
            for i in range(8, 17):
                nextP()
                pack(PK + (i - 8), cur)
                wr1(i - 8, PK + (i - 8))
                if i == 13: mm()
            pend.append((2, rd(FH), ps == 0))
        A1 = T
        k(f"""
        s_or_b32 s56, s{S_W}, 1
        s_mul_i32 s57, s56, 14336
        v_add_u32 v{A1}, s57, v{self.V_L16}
        """)
        mm()
        self.stamp("kgen mfma")
        k.nobg += 1
        k(f"s_bitcmp0_b32 s{S_W}, 0\ns_cbranch_scc1 L_kg_even")
        with k.branch():
            for t in range(3):
                k(f"ds_write_b128 v{A1}, v[{AC+4*t}:{AC+4*t+3}] offset:{t*1024}")
        k(f"""
        L_kg_even:
        s_waitcnt lgkmcnt(0)
        s_barrier
        s_bitcmp1_b32 s{S_W}, 0
        s_cbranch_scc1 L_kg_odd
        """)
        KP = self.V_KP
        with k.branch():
            for t in range(3):
                k(f"ds_read_b128 v[{FL+4*t}:{FL+4*t+3}], v{A1} offset:{t*1024}")
            k(f"v_mov_b32 v{T+2}, {f2u(2.0**-14)}\ns_waitcnt lgkmcnt(0)")
            for r in range(0, 12, 2):
                k(f"v_pk_add_f32 v[{AC+r}:{AC+r+1}], v[{AC+r}:{AC+r+1}], v[{FL+r}:{FL+r+1}]")
            for r in range(0, 12, 2):
                k(f"v_pk_mul_f32 v[{AC+r}:{AC+r+1}], v[{AC+r}:{AC+r+1}], v[{T+2}:{T+3}] op_sel_hi:[1,0]")
            k(f"""
            v_cvt_pk_f16_f32 v{KP}, v{AC+3}, v{AC+2}
            v_cvt_pk_f16_f32 v{KP+1}, v{AC+1}, v{AC}
            v_cvt_pk_f16_f32 v{KP+2}, v{AC+4}, v{AC+5}
            v_cvt_pk_f16_f32 v{KP+3}, v{AC+6}, v{AC+7}
            v_cvt_pk_f16_f32 v{KP+4}, v{AC+8}, v{AC+9}
            v_cvt_pk_f16_f32 v{KP+5}, v{AC+10}, v{AC+11}
            """)
        k("L_kg_odd:")
        k.nobg -= 1
        k.in_bg += 1
        while self.ev: self.ev.pop(0)[1]()
        k.in_bg -= 1

    def k_write(self):
        k = self.k
        T = self.V_S; KP = self.V_KP
        k.nobg += 1
        k(f"""
        s_lshr_b32 s56, s{S_W}, 1
        s_mul_i32 s57, s56, {KXP}
        s_add_u32 s57, s57, {KX}
        s_bitcmp0_b32 s{S_W}, 0
        s_cbranch_scc1 L_kw_even
        """)
        with k.branch():
            k(f"""
            v_lshl_add_u32 v{T}, v1, 3, s57
            v_mov_b32 v{T+2}, 0
            v_mov_b32 v{T+3}, 0
            ds_write_b64 v{T}, v[{T+2}:{T+3}]
            s_branch L_kw_j
            """)
        k("L_kw_even:")
        with k.branch():
            k(f"""
            v_and_b32 v{T+2}, 15, v1
            v_lshrrev_b32 v{T+3}, 4, v1
            v_lshrrev_b32 v{T+4}, 5, v1
            v_lshlrev_b32 v{T+4}, 8, v{T+4}
            v_lshl_add_u32 v{T+4}, v{T+2}, 4, v{T+4}
            v_and_b32 v{T+5}, 1, v{T+3}
            v_xor_b32 v{T+5}, 1, v{T+5}
            v_lshl_add_u32 v{T+4}, v{T+5}, 3, v{T+4}
            v_add_u32 v{T+4}, s57, v{T+4}
            ds_write_b64 v{T+4}, v[{KP}:{KP+1}] offset:512
            s_lshl_b32 s57, s56, 10
            s_add_u32 s57, s57, {KC}
            v_cmp_gt_u32 vcc, 32, v1
            v_lshlrev_b32 v{T+5}, 2, v{T+2}
            v_lshlrev_b32 v{T+6}, 3, v{T+2}
            v_cndmask_b32 v{T+5}, v{T+5}, v{T+6}, vcc
            v_lshl_add_u32 v{T+5}, v{T+3}, 7, v{T+5}
            v_add_u32 v{T+5}, s57, v{T+5}
            v_mov_b32 v{T+6}, 64
            v_cndmask_b32 v{T+6}, v{T+6}, 4, vcc
            v_add_u32 v{T+6}, v{T+6}, v{T+5}
            ds_write_b32 v{T+5}, v{KP+2}
            ds_write_b32 v{T+6}, v{KP+3}
            v_lshlrev_b32 v{T+7}, 1, v{T+2}
            v_lshl_add_u32 v{T+7}, v{T+3}, 7, v{T+7}
            v_add_u32 v{T+7}, s57, v{T+7}
            ds_write_b16 v{T+7}, v{KP+4} offset:512
            ds_write_b16_d16_hi v{T+7}, v{KP+4} offset:544
            ds_write_b16 v{T+7}, v{KP+5} offset:576
            ds_write_b16_d16_hi v{T+7}, v{KP+5} offset:608
            """)
        k("L_kw_j:")
        k.nobg -= 1

    def k_expand(self):
        k = self.k
        T = 16; D = 24; O = D + 4
        k.nobg += 1
        k(f"""
        s_lshr_b32 s56, s{S_W}, 1
        s_and_b32 s58, s{S_W}, 1
        s_lshl_b32 s57, s56, 10
        s_add_u32 s57, s57, {KC}
        s_mul_i32 s59, s56, {KXP}
        s_add_u32 s59, s59, {KX + 512}
        v_and_b32 v{T}, 127, v0
        v_lshrrev_b32 v{T+1}, 1, v{T}
        v_lshl_add_u32 v{T+1}, v{T+1}, 2, s57
        """)
        t1 = k(f"ds_read2_b32 v[{D}:{D+1}], v{T+1} offset0:128 offset1:129")
        k(f"""
        v_lshl_add_u32 v{T+2}, v{T}, 4, s59
        v_and_b32 v{T+3}, 1, v1
        v_cmp_eq_u32 vcc, 1, v{T+3}
        s_cmp_eq_u32 s58, 0
        s_cselect_b32 s60, 63, 31
        s_cselect_b32 s61, 2, 3
        s_cselect_b32 s62, 256, 0
        s_movk_i32 s63, 1024
        s_cselect_b32 s63, s63, 512
        v_and_b32 v{T+4}, s60, v1
        v_lshlrev_b32 v{T+5}, s61, v{T+4}
        s_add_u32 s62, s62, s57
        v_add_u32 v{T+5}, s62, v{T+5}
        ds_read2_b32 v[{D+8}:{D+9}], v{T+5} offset0:0 offset1:1
        """)
        t2 = k(f"ds_read_b32 v{D+10}, v{T+5} offset:8")
        k(f"""
        s_add_u32 s63, s63, s59
        v_lshl_add_u32 v{T+6}, v{T+4}, 4, s63
        """)
        k.wait_lg(t1)
        k(f"""
        v_alignbit_b32 v{D+2}, v{D+1}, v{D}, 16
        v_cndmask_b32 v{D}, v{D}, v{D+2}, vcc
        s_mov_b32 s60, 0x01000100
        s_mov_b32 s61, 0x03020302
        s_mov_b32 s62, 0x01000302
        v_perm_b32 v{O+3}, v{D}, v{D}, s60
        v_perm_b32 v{O}, v{D}, v{D}, s61
        v_perm_b32 v{O+1}, v{D}, v{D}, s62
        v_mov_b32 v{O+2}, v{O+3}
        v_cndmask_b32 v{O+1}, v{O+1}, v{O}, vcc
        ds_write_b128 v{T+2}, v[{O}:{O+3}] offset:2048
        """)
        E = D + 8; O2 = D + 12
        k(f"""
        s_cmp_eq_u32 s58, 0
        s_cselect_b32 s63, s62, 0x03020504
        s_cselect_b32 s62, s61, 0x05040504
        s_cselect_b32 s61, s60, 0x03020504
        """)
        k.wait_lg(t2)
        k(f"""
        v_perm_b32 v{O2}, v{E+2}, v{E+1}, s61
        v_perm_b32 v{O2+1}, v{E+1}, v{E}, s62
        v_perm_b32 v{O2+2}, v{E+1}, v{E}, s63
        v_perm_b32 v{O2+3}, v{E}, v{E}, s60
        ds_write_b128 v{T+6}, v[{O2}:{O2+3}]
        """)
        k.nobg -= 1

    def leader_clear(self):
        k = self.k
        C = self.V_X + 40
        with k.atomic():
            k(f"""
            s_or_b32 s90, s{S_FB}, s{S_W}
            s_cmp_lg_u32 s90, 0
            s_cbranch_scc1 L_noclear
            """)
            with k.branch():
                k(f"""
                v_mov_b32 v{C+4}, 0
                v_mov_b32 v{C+5}, 0
                v_mov_b32 v{C+6}, 0
                v_mov_b32 v{C+7}, 0
                s_lshl_b32 s90, s{S_TB}, 10
                buffer_store_dwordx4 v[{C+4}:{C+7}], v{self.V_L16}, s[{SRD_WS}:{SRD_WS+3}], s90 offen sc1
                s_add_u32 s90, s90, 32768
                buffer_store_dwordx4 v[{C+4}:{C+7}], v{self.V_L16}, s[{SRD_WS}:{SRD_WS+3}], s90 offen sc1
                s_add_u32 s90, s90, 32768
                buffer_store_dwordx4 v[{C+4}:{C+7}], v{self.V_L16}, s[{SRD_WS}:{SRD_WS+3}], s90 offen sc1
                s_add_u32 s90, s90, 32768
                buffer_store_dwordx4 v[{C+4}:{C+7}], v{self.V_L16}, s[{SRD_WS}:{SRD_WS+3}], s90 offen sc1
                v_mov_b32 v{C}, -1
                v_mov_b32 v{C+1}, -1
                v_mov_b32 v{C+2}, -1
                v_mov_b32 v{C+3}, -1
                s_lshl_b32 s90, s{S_TB}, 12
                s_add_u32 s90, s90, {WS_STAT}
                buffer_store_dwordx4 v[{C}:{C+3}], v{self.V_L16}, s[{SRD_WS}:{SRD_WS+3}], s90 offen sc1
                buffer_store_dwordx4 v[{C}:{C+3}], v{self.V_L16}, s[{SRD_WS}:{SRD_WS+3}], s90 offen offset:1024 sc1
                buffer_store_dwordx4 v[{C}:{C+3}], v{self.V_L16}, s[{SRD_WS}:{SRD_WS+3}], s90 offen offset:2048 sc1
                buffer_store_dwordx4 v[{C}:{C+3}], v{self.V_L16}, s[{SRD_WS}:{SRD_WS+3}], s90 offen offset:3072 sc1
                """)
            k("L_noclear:")
            self.vm_clear = k.vm
    def leader_go(self):
        k = self.k
        T = self.V_S
        with k.atomic():
            k(f"""
            s_or_b32 s90, s{S_FB}, s{S_W}
            s_cmp_lg_u32 s90, 0
            s_cbranch_scc1 L_nogo
            """)
            with k.branch():
                k(f"""
                s_waitcnt vmcnt({k.vm - self.vm_clear})
                v_mov_b32 v{T+7}, 1
                v_mov_b32 v{T+6}, 0
                s_lshl_b32 s90, s{S_TB}, 2
                s_mov_b64 exec, 1
                buffer_store_dword v{T+7}, v{T+6}, s[{SRD_DBG}:{SRD_DBG+3}], s90 offen sc1
                s_mov_b64 exec, -1
                """)
            k("L_nogo:")
    def bump_txt(self, own=False):
        T = self.V_S
        if own: return f"""
        v_mov_b32 v{T+6}, {4*32768}
        v_mov_b32 v{T+7}, 1
        s_mov_b64 exec, 1
        buffer_atomic_add v{T+7}, v{T+6}, s[{SRD_WS}:{SRD_WS+3}], s{S_FL} offen sc1
        s_mov_b64 exec, -1
        """
        return f"""
        s_andn2_b32 s93, s{S_FL}, 15
        v_lshlrev_b32 v{T+6}, 2, v1
        v_mov_b32 v{T+7}, 1
        s_mov_b64 exec, 15
        s_add_u32 s93, s93, {4*32768}
        buffer_atomic_add v{T+7}, v{T+6}, s[{SRD_WS}:{SRD_WS+3}], s93 offen sc1
        s_mov_b64 exec, -1
        """

    def half_sum(self, r, tmp):
        k = self.k
        for sh in (8, 4, 2, 1):
            k(f"v_add_f32_dpp v{r}, v{r}, v{r} row_ror:{sh} row_mask:0xf bank_mask:0xf")
        k(f"""
        v_mov_b32 v{tmp}, v{r}
        v_permlane16_swap_b32 v{r}, v{tmp}
        v_add_f32 v{r}, v{r}, v{tmp}
        """)
    def ln1(self):
        k = self.k
        X = self.V_X; T = X + 8
        S = T; M = T + 2; Q = T + 4; D = T + 8
        k.nobg += 1
        k(f"""
        s_mov_b32 s58, 0x0fffffff
        s_mov_b32 s59, 0x0fffffff
        v_mov_b32 v{S}, 0
        v_mov_b32 v{Q}, 0
        """)
        k.wait_vm(self.t_x)
        self.stamp("x landed")
        if self.opt.get("wing", 1) == 2: self.win_gather()
        for j in range(8):
            src = "0" if j < 2 else f"v{D + (j&1)}"
            k(f"v_dot2_f32_bf16 v{D + (j&1)}, v{X+j}, s{S_ONES}, {src}")
        k(f"s_mov_b64 exec, s[58:59]\nv_add_f32 v{S}, v{D}, v{D+1}\ns_mov_b64 exec, -1")
        for p in range(8):
            d = D + 2 * p
            k(f"v_lshlrev_b32 v{d}, 16, v{X+p}\nv_and_b32 v{d+1}, s{S_MASK}, v{X+p}")
            if p < 4: k(f"v_add_f32_dpp v{S}, v{S}, v{S} row_ror:{8 >> p} row_mask:0xf bank_mask:0xf")
            if p == 4: k(f"v_mov_b32 v{S+1}, v{S}")
            if p == 5: k(f"v_permlane16_swap_b32 v{S}, v{S+1}")
        k(f"v_add_f32 v{S}, v{S}, v{S+1}")
        k(f"v_mul_f32 v{S}, {f2u(1.0/448)}, v{S}")
        self.rbf(M, S)
        k(f"v_sub_f32 v{S}, v{S}, v{M}")
        for p in range(8):
            d = D + 2 * p
            acc = f"v_pk_mul_f32 v[{Q+2}:{Q+3}], v[{d}:{d+1}], v[{d}:{d+1}]" if p == 0 else f"v_pk_fma_f32 v[{Q+2}:{Q+3}], v[{d}:{d+1}], v[{d}:{d+1}], v[{Q+2}:{Q+3}]"
            k(f"""
            v_pk_add_f32 v[{d}:{d+1}], v[{d}:{d+1}], v[{M}:{M+1}] op_sel_hi:[1,0] neg_lo:[0,1] neg_hi:[0,1]
            {acc}
            """)
        k(f"s_mov_b64 exec, s[58:59]\nv_add_f32 v{Q}, v{Q+2}, v{Q+3}\ns_mov_b64 exec, -1")
        for p in range(8):
            d = D + 2 * p
            k(f"""
            v_cvt_pk_bf16_f32 v{d+1}, v{d}, v{d+1}
            v_lshlrev_b32 v{d}, 16, v{d+1}
            v_and_b32 v{d+1}, s{S_MASK}, v{d+1}
            """)
            if p < 4: k(f"v_add_f32_dpp v{Q}, v{Q}, v{Q} row_ror:{8 >> p} row_mask:0xf bank_mask:0xf")
            if p == 4: k(f"v_mov_b32 v{Q+1}, v{Q}")
            if p == 5: k(f"v_permlane16_swap_b32 v{Q}, v{Q+1}")
        k(f"v_add_f32 v{Q}, v{Q}, v{Q+1}")
        k(f"v_mul_f32 v{Q}, {f2u(1.0/448)}, v{Q}")
        k(f"v_fma_f32 v{Q}, -v{S}, v{S}, v{Q}")
        k(f"v_max_f32 v{Q}, 0, v{Q}")
        self.rbf(Q, Q)
        k(f"v_add_f32 v{Q}, {f2u(1e-5)}, v{Q}")
        self.rbf(Q, Q)
        k(f"v_sqrt_f32 v{Q}, v{Q}")
        self.rbf(Q, Q)
        k(f"v_rcp_f32 v{M}, v{Q}")
        k(f"v_fma_f32 v{Q}, -v{Q}, v{M}, 1.0")
        k(f"v_fma_f32 v{M}, v{Q}, v{M}, v{M}")
        k("s_mov_b64 exec, s[58:59]")
        for p in range(8):
            d = D + 2 * p
            k(f"""
            v_pk_mul_f32 v[{d}:{d+1}], v[{d}:{d+1}], v[{M}:{M+1}] op_sel_hi:[1,0]
            v_cvt_pk_bf16_f32 v{X+p}, v{d}, v{d+1}
            """)
            if p & 3 == 3:
                k(f"ds_write_b128 v{self.V_XD+1}, v[{X+p-3}:{X+p}] offset:{RB + 4096 + 144*(p>>2)}")
        k("s_mov_b64 exec, -1")
        k.nobg -= 1
        self.stamp("ln done")
        t0 = k.est; o = self.opt
        P = self.V_P
        self.t_xn = {}
        XS = self.V_XS
        def b1():
            k(f"""
            s_waitcnt lgkmcnt(0)
            s_barrier
            ds_read_b128 v[{X}:{X+3}], v{self.V_T} offset:{RB + 4096}
            ds_read_b128 v[{X+4}:{X+7}], v{self.V_T} offset:{RB + 4096 + 8*144}
            """)
            self.l_xs = k.lg
        def b2():
            k.wait_lg(self.l_xs)
            k(f"""
            buffer_store_dwordx4 v[{X}:{X+3}], v{self.V_XD}, s[{SRD_WS}:{SRD_WS+3}], s{S_XO} offen sc1
            s_mov_b32 exec_hi, 0xffff
            buffer_store_dwordx4 v[{X+4}:{X+7}], v{self.V_XD}, s[{SRD_WS}:{SRD_WS+3}], s{S_XO} offen offset:2048 sc1
            s_mov_b32 exec_hi, -1
            """)
            self.t_xs = k.vm
            if self.opt.get("wing", 1) == 3: self.win_gather()
            self.stamp("xn stored")
        def fl():
            k.wait_vm(self.t_xs)
            k(self.bump_txt(own=True))
            self.leader_clear()
        def pl():
            self.h_xn = self.poll_issue(XS, XS + 2, soff=f"s{S_XF}")
        def ck():
            k.wait_vm(self.h_xn[0])
            self.leader_go()
            self.poll_check(self.h_xn, sc=92, old=f"v{XS+1}")
            self.stamp("xn ready")
            return 0
        ev = [(o.get("t_b1", 60), b1), (o.get("t_b2", 200), b2), (o.get("t_fl", 1100), fl), (o.get("t_pl", 2300), pl), (o.get("t_ck", 3000), ck)]
        ev += [(o.get("t_ck", 3000), (lambda j=j: self.xn_pair(j))) for j in range(7)]
        def burst():
            while self.q: self.q.pop(0)()
            self.h_go = self.poll_issue(self.V_P, self.V_P + 1, srd=SRD_DBG)
            self.w_slot(0, 1)
            self.stamp("w burst")
        if o.get("burst", 0):
            k(f"v_and_b32 v{self.V_P}, 31, v1\nv_lshlrev_b32 v{self.V_P}, 2, v{self.V_P}")
            ev += [(o.get("t_burst", 0), burst)]
        self.ev = [(t0 + t, f) for t, f in ev]
        ns = o.get("wg_ns", 8); dt = o.get("wg_dt", 600); tw = t0 + o.get("wg_t0", 5150)
        if o.get("burst", 0): pass
        elif ns: self.ev2 = [(tw + i * dt, (lambda i=i: self.w_slot(i, ns))) for i in range(ns)]
        else: self.ev2 = [(tw + i * dt, (lambda i=i: self.w_cold(i))) for i in range(8)]
        for b in (0, 1, 2, 3): self.queue_chunk(0, b, 4 * b, half=(b == 3))
        self.q[0].nb = t0 + o.get("t_c0", 250)

    def ut_mfma(self):
        k = self.k
        X = self.V_X; ID = self.V_ID; A = self.V_ACC
        for i in range(2):
            for h in range(2):
                k(f"v_mfma_f32_16x16x32_bf16 v[{A+(2*i+h)*4}:{A+(2*i+h)*4+3}], v[{X+4*i}:{X+4*i+3}], v[{ID+4*h}:{ID+4*h+3}], 0")
    def ut_store(self, T=None):
        k = self.k
        A = self.V_ACC; T = T or self.V_Z
        k(f"""
        v_lshrrev_b32 v{T+8}, 5, v1
        v_mul_u32_u24 v{T+8}, 7168, v{T+8}
        v_and_b32 v{T+9}, 31, v1
        v_lshl_add_u32 v{T+8}, v{T+9}, 4, v{T+8}
        s_lshl2_add_u32 s56, s{S_TB}, s{S_W}
        s_mul_i32 s56, s56, {2*7168}
        s_add_u32 s56, s56, {WS_UT}
        s_lshl_b32 s57, s{S_RHO}, 10
        s_add_u32 s57, s57, s56
        """)
        for i in range(2):
            U = T + 4 * i
            for h in range(2):
                b = A + (2*i+h)*4
                k(f"v_cvt_pk_f16_f32 v{U+2*h}, v{b}, v{b+1}")
                k(f"v_cvt_pk_f16_f32 v{U+2*h+1}, v{b+2}, v{b+3}")
        for i in range(2):
            U = T + 4 * i
            k(f"v_permlane16_swap_b32 v{U}, v{U+2}")
            k(f"v_permlane16_swap_b32 v{U+1}, v{U+3}")
        for i in range(2):
            U = T + 4 * i
            self.t_ut = k(f"buffer_store_dwordx4 v[{U}:{U+3}], v{T+8}, s[{SRD_WS}:{SRD_WS+3}], s57 offen offset:{512*i} sc1")

    def tr_addr(self, off):
        return f"v{self.V_TR + (off >> 16)} offset:{off & 0xffff}"

    def gemm1(self, part, mid=None, w_c=None):
        k = self.k
        X = self.V_X; B = self.V_B; A = self.V_ACC
        def reads(c, j):
            b = B + (c & 1) * 28 + 4 * j
            base = c * 7168 + 32 * j
            return (f"ds_read_b64_tr_b16 v[{b}:{b+1}], {self.tr_addr(base)}\n"
                    f"ds_read_b64_tr_b16 v[{b+2}:{b+3}], {self.tr_addr(base + 1792)}\n")
        tags = {}
        def arrive(b):
            while any(getattr(f, "cb", None) == (part, b) for f in self.q):
                k.in_bg += 1; self.q.pop(0)(); k.in_bg -= 1
            with k.atomic():
                t = self.t_chunk[(part, b)]
                if t is None:
                    t = self.vm_at_half[part]
                    if k.vm_done <= t: k(f"s_waitcnt vmcnt({min(k.vm - t, 63)})")
                else: k.wait_vm(t)
                k("s_barrier")
        arrive(1 if part == 0 else 0)
        if part == 1: self.queue_chunk(1, 3, 12, half=True)
        if part == 0:
            if not self.opt.get("burst", 0): self.h_go = self.poll_issue(self.V_P, self.V_P + 1, srd=SRD_DBG)
            self.t_hold = k.est + self.opt.get("t_z1", 3600)
        self.stamp(f"g1.{part} start")
        for j in range(7): tags[(0, j)] = k(reads(0, j))
        for c in range(14):
            nxt = c + 1 if c < 13 else None
            if part == 1 and nxt in (4, 8, 12): arrive(nxt // 4)
            if part == 0 and nxt in (5, 9, 13):
                if nxt < 13: arrive(2 + (nxt - 5) // 4)
                else: k("s_barrier")
                self.queue_chunk(1, (nxt - 5) // 4, nxt - 5)
                if nxt == 5 and self.opt.get("burst", 0): self.q[0].nb = self.t_hold
            if mid and c in mid: mid[c]()
            if c == w_c: self.w_on = True
            if part == 0: k.wait_vm(self.t_xn[c >> 1])
            for j in range(7):
                if j == 0: k.wait_lg(tags[(c, 3)])
                if j == 4: k.wait_lg(tags[(c, 6)])
                b = B + (c & 1) * 28 + 4 * j
                src = "0" if c == 0 else f"v[{A+4*j}:{A+4*j+3}]"
                if part == 0:
                    mf = f"v_mfma_f32_16x16x32_bf16 v[{A+4*j}:{A+4*j+3}], v[{X+4*c}:{X+4*c+3}], v[{b}:{b+3}], {src}\n"
                else:
                    mf = f"v_mfma_f32_16x16x32_bf16 v[{A+4*j}:{A+4*j+3}], v[{b}:{b+3}], v[{X+4*c}:{X+4*c+3}], {src}\n"
                if nxt is not None:
                    tags[(nxt, j)] = k(mf + reads(nxt, j))
                    k.est += 3
                else: k(mf)

    def gelu_consts(self, C):
        c1 = -2.0 * 0.7978845608028654 * LOG2E
        c3 = c1 * 0.044715
        self.k(f"v_mov_b32 v{C}, {f2u(c1)}\nv_mov_b32 v{C+2}, {f2u(c3)}")

    def gelu2(self):
        k = self.k
        A = self.V_ACC; T = self.V_TMP
        C1 = T + 32; C3 = T + 34
        self.gelu_consts(C1)
        SUM = T + 24
        for p in range(0, 14, 2):
            ts = [T + 0, T + 4]
            pk = [T + 8, T + 9]
            for q in range(2):
                a0 = A + 2*(p+q); t = ts[q]
                k(f"""
                v_cvt_pk_bf16_f32 v{t+2}, v{a0}, v{a0+1}
                v_lshlrev_b32 v{t}, 16, v{t+2}
                v_and_b32 v{t+1}, s{S_MASK}, v{t+2}
                v_pk_mul_f32 v[{t+2}:{t+3}], v[{t}:{t+1}], v[{t}:{t+1}]
                v_pk_fma_f32 v[{t+2}:{t+3}], v[{t+2}:{t+3}], v[{C3}:{C3+1}], v[{C1}:{C1+1}] op_sel_hi:[1,0,0]
                v_pk_mul_f32 v[{t+2}:{t+3}], v[{t+2}:{t+3}], v[{t}:{t+1}]
                v_exp_f32 v{t+2}, v{t+2}
                v_exp_f32 v{t+3}, v{t+3}
                """)
            for q in range(2):
                t = ts[q]
                k(f"""
                v_pk_add_f32 v[{t+2}:{t+3}], v[{t+2}:{t+3}], 1.0 op_sel_hi:[1,0]
                v_rcp_f32 v{t+2}, v{t+2}
                v_rcp_f32 v{t+3}, v{t+3}
                """)
            for q in range(2):
                t = ts[q]
                k(f"""
                v_pk_mul_f32 v[{t}:{t+1}], v[{t}:{t+1}], v[{t+2}:{t+3}]
                v_cvt_pk_bf16_f32 v{pk[q]}, v{t}, v{t+1}
                """)
            for q in range(2):
                z = self.V_Z + 2*(p+q)
                k(f"v_lshlrev_b32 v{z}, 16, v{pk[q]}\nv_and_b32 v{z+1}, s{S_MASK}, v{pk[q]}")
                sm = SUM + 2*q; sq = SUM + 4 + 2*q
                if p == 0:
                    k(f"v_pk_mul_f32 v[{sq}:{sq+1}], v[{z}:{z+1}], v[{z}:{z+1}]")
                elif p == 2:
                    k(f"v_pk_fma_f32 v[{sq}:{sq+1}], v[{z}:{z+1}], v[{z}:{z+1}], v[{sq}:{sq+1}]")
                    k(f"v_pk_add_f32 v[{sm}:{sm+1}], v[{z-4}:{z-3}], v[{z}:{z+1}]")
                else:
                    k(f"v_pk_fma_f32 v[{sq}:{sq+1}], v[{z}:{z+1}], v[{z}:{z+1}], v[{sq}:{sq+1}]")
                    k(f"v_pk_add_f32 v[{sm}:{sm+1}], v[{sm}:{sm+1}], v[{z}:{z+1}]")
        self.V_SUM = SUM

    S_ST = 64; S_STP = 65
    def stats_addr(self):
        k = self.k
        P = self.V_P
        k(f"""
        v_lshlrev_b32 v{P+2}, 1, v1
        s_lshl2_add_u32 s56, s{S_TB}, s{S_W}
        s_lshl_b32 s56, s56, 10
        s_add_u32 s{self.S_ST}, s56, {WS_STAT}
        s_lshl_b32 s57, s{S_FB}, 7
        s_add_u32 s{self.S_STP}, s{self.S_ST}, s57
        v_bfe_u32 v{P+3}, v1, 1, 3
        v_lshlrev_b32 v{P+3}, 7, v{P+3}
        v_lshrrev_b32 v{P+4}, 4, v1
        v_lshl_add_u32 v{P+3}, v{P+4}, 5, v{P+3}
        v_and_b32 v{P+4}, 1, v1
        v_lshl_add_u32 v{P+3}, v{P+4}, 4, v{P+3}
        """)
    def stats_publish(self):
        k = self.k
        S = self.V_SUM; Q = S + 4; P = self.V_P
        O = self.V_TMP + 10
        with k.atomic():
            for r in (S, S+1, Q, Q+1):
                k(f"v_add_f32_dpp v{r}, v{r}, v{r} row_ror:8 row_mask:0xf bank_mask:0x3")
            for r in (S, S+1, Q, Q+1):
                k(f"v_add_f32_dpp v{r}, v{r+2}, v{r+2} row_ror:8 row_mask:0xf bank_mask:0xc")
            k(f"""
            v_add_f32_dpp v{O}, v{S}, v{S} row_shl:4 row_mask:0xf bank_mask:0x5
            v_add_f32_dpp v{O+1}, v{Q}, v{Q} row_shl:4 row_mask:0xf bank_mask:0x5
            v_add_f32_dpp v{O}, v{S+1}, v{S+1} row_shr:4 row_mask:0xf bank_mask:0xa
            v_add_f32_dpp v{O+1}, v{Q+1}, v{Q+1} row_shr:4 row_mask:0xf bank_mask:0xa
            s_mov_b32 s58, 0x11111111
            s_mov_b32 s59, 0x11111111
            v_add_f32_dpp v{O}, v{O}, v{O} quad_perm:[1,0,3,2] row_mask:0xf bank_mask:0xf
            v_add_f32_dpp v{O+1}, v{O+1}, v{O+1} quad_perm:[1,0,3,2] row_mask:0xf bank_mask:0xf
            v_add_f32_dpp v{O}, v{O}, v{O} quad_perm:[2,3,0,1] row_mask:0xf bank_mask:0xf
            v_add_f32_dpp v{O+1}, v{O+1}, v{O+1} quad_perm:[2,3,0,1] row_mask:0xf bank_mask:0xf
            s_mov_b64 exec, s[58:59]
            buffer_store_dwordx2 v[{O}:{O+1}], v{P+2}, s[{SRD_WS}:{SRD_WS+3}], s{self.S_STP} offen sc1
            s_mov_b64 exec, -1
            """)

    V_ST = 184
    def stats_issue(self):
        T = self.V_ST
        self.t_st = self.k(f"buffer_load_dwordx4 v[{T}:{T+3}], v{self.V_P+3}, s[{SRD_WS}:{SRD_WS+3}], s{self.S_ST} offen sc1")
    def z_addr(self):
        k = self.k
        T = self.V_P
        k(f"""
        v_bfe_u32 v{T}, v1, 4, 1
        v_lshlrev_b32 v{T}, 10, v{T}
        v_lshrrev_b32 v{T+1}, 5, v1
        v_lshlrev_b32 v{T+1}, 8, v{T+1}
        v_and_b32 v{T+2}, 15, v1
        v_lshl_add_u32 v{T+1}, v{T+2}, 4, v{T+1}
        v_add_u32 v{T}, v{T}, v{T+1}
        s_xor_b32 s56, s{S_FB}, 1
        s_lshl_b32 s56, s56, 6
        s_lshl1_add_u32 s56, s{S_TB}, s56
        s_lshr_b32 s57, s{S_W}, 1
        s_add_u32 s56, s56, s57
        s_mul_i32 s56, s56, 7168
        s_and_b32 s57, s{S_W}, 1
        s_lshl_b32 s57, s57, 9
        s_add_u32 s56, s56, s57
        s_add_u32 s66, s56, {WS_Z}
        s_add_u32 s67, s66, 4096
        """)
    def stats_collect_normalize(self):
        k = self.k
        T = self.V_ST; Z = self.V_Z
        L = k.label("L_st")
        k.nobg += 1
        k.wait_vm(self.t_st)
        chk = f"""
        v_max3_u32 v{T+4}, v{T}, v{T+1}, v{T+2}
        v_max_u32 v{T+4}, v{T+4}, v{T+3}
        v_cmp_eq_u32 vcc, -1, v{T+4}
        s_cbranch_vccz {L}_ok
        """
        k(chk)
        with k.branch():
            k(f"""
            s_mov_b32 s56, 0
            {L}:
            buffer_load_dwordx4 v[{T}:{T+3}], v{self.V_P+3}, s[{SRD_WS}:{SRD_WS+3}], s{self.S_ST} offen sc1
            s_add_u32 s56, s56, 1
            s_waitcnt vmcnt(0)
            """ + chk + f"""
            s_and_b32 s57, s56, 15
            s_cbranch_scc1 {L}
            {self.bump_txt()}
            s_cmp_lt_u32 s56, 100000
            s_cbranch_scc1 {L}
            """)
        k(f"{L}_ok:")
        self.stamp("stats in")
        for sh in (8, 4, 2):
            for r in range(4):
                k(f"v_add_f32_dpp v{T+r}, v{T+r}, v{T+r} row_ror:{sh} row_mask:0xf bank_mask:0xf")
        inv = f2u(1.0 / 896)
        U = self.V_TMP
        for (sm, sq) in ((T, T+1), (T+2, T+3)):
            k(f"v_mul_f32 v{sm}, {inv}, v{sm}")
            k(f"v_mul_f32 v{sq}, {inv}, v{sq}")
            k(f"v_fma_f32 v{sq}, -v{sm}, v{sm}, v{sq}")
            k(f"v_max_f32 v{sq}, 0, v{sq}")
        k(f"v_cvt_pk_bf16_f32 v{T+4}, v{T}, v{T+2}")
        k(f"v_cvt_pk_bf16_f32 v{T+5}, v{T+1}, v{T+3}")
        k(f"v_lshlrev_b32 v{T}, 16, v{T+5}\nv_and_b32 v{T+1}, s{S_MASK}, v{T+5}")
        k(f"v_add_f32 v{T}, {f2u(1e-5)}, v{T}\nv_add_f32 v{T+1}, {f2u(1e-5)}, v{T+1}")
        k(f"v_cvt_pk_bf16_f32 v{T+5}, v{T}, v{T+1}")
        k(f"v_lshlrev_b32 v{T}, 16, v{T+5}\nv_and_b32 v{T+1}, s{S_MASK}, v{T+5}")
        k(f"v_sqrt_f32 v{T}, v{T}\nv_sqrt_f32 v{T+1}, v{T+1}")
        k(f"v_mov_b32_dpp v{U+6}, v{T+4} quad_perm:[0,0,2,2] row_mask:0xf bank_mask:0xf")
        k(f"v_mov_b32_dpp v{U+7}, v{T+4} quad_perm:[1,1,3,3] row_mask:0xf bank_mask:0xf")
        k(f"v_cvt_pk_bf16_f32 v{T+5}, v{T}, v{T+1}")
        M = U + 12; R = U + 16
        k(f"v_lshlrev_b32 v{T}, 16, v{T+5}\nv_and_b32 v{T+1}, s{S_MASK}, v{T+5}")
        k(f"v_rcp_f32 v{T+2}, v{T}\nv_rcp_f32 v{T+3}, v{T+1}")
        for h in range(2):
            k(f"v_lshlrev_b32 v{M+2*h}, 16, v{U+6+h}\nv_and_b32 v{M+2*h+1}, s{S_MASK}, v{U+6+h}")
        for r in range(2): k(f"v_fma_f32 v{T+r}, -v{T+r}, v{T+2+r}, 1.0")
        for r in range(2): k(f"v_fma_f32 v{T+2+r}, v{T+r}, v{T+2+r}, v{T+2+r}")
        for p in range(2):
            z = Z + 2*p; h = p & 1
            k(f"v_pk_add_f32 v[{z}:{z+1}], v[{z}:{z+1}], v[{M+2*h}:{M+2*h+1}] neg_lo:[0,1] neg_hi:[0,1]")
        for h in range(2):
            for r in range(2):
                k(f"v_mov_b32_dpp v{R+2*h+r}, v{T+2+r} quad_perm:[{h},{h},{2+h},{2+h}] row_mask:0xf bank_mask:0xf")
        P = self.V_B
        A = self.V_P
        def store(pr):
            u = P + 4*pr
            k(f"v_permlane16_swap_b32 v{u}, v{u+2}")
            k(f"v_permlane16_swap_b32 v{u+1}, v{u+3}")
            va = A if pr < 3 else A + 1
            so = 66 if pr < 2 else 67
            self.t_z = k(f"buffer_store_dwordx4 v[{u}:{u+3}], v{va}, s[{SRD_WS}:{SRD_WS+3}], s{so} offen offset:{(pr&1)*2048} sc1")
        for p in range(14):
            z = Z + 2*p; h = p & 1
            if p >= 2: k(f"v_pk_add_f32 v[{z}:{z+1}], v[{z}:{z+1}], v[{M+2*h}:{M+2*h+1}] neg_lo:[0,1] neg_hi:[0,1]")
            k(f"""
            v_cvt_pk_bf16_f32 v{z+1}, v{z}, v{z+1}
            v_lshlrev_b32 v{z}, 16, v{z+1}
            v_and_b32 v{z+1}, s{S_MASK}, v{z+1}
            v_pk_mul_f32 v[{z}:{z+1}], v[{z}:{z+1}], v[{R+2*h}:{R+2*h+1}]
            v_cvt_pk_bf16_f32 v{P+p}, v{z}, v{z+1}
            """)
            if p >= 12: k(f"v_cvt_pk_bf16_f32 v{P+p+2}, v{z}, v{z+1}")
            if p in (4, 8, 12): store(p // 4 - 1)
        store(3)
        k.nobg -= 1

    def u_poll_issue(self):
        k = self.k
        T = self.V_S
        k(f"""
        v_bfe_u32 v{T}, v1, 2, 2
        s_lshl_b32 s57, s{S_W}, 2
        v_add_u32 v{T}, s57, v{T}
        v_and_b32 v{T+1}, 16, v1
        v_add_u32 v{T}, v{T}, v{T+1}
        v_and_b32 v{T+1}, 7, v{T}
        s_lshr_b32 s57, s{S_CP}, 5
        s_add_u32 s57, s57, 7
        v_sub_u32 v{T+1}, s57, v{T+1}
        v_subrev_u32 v{T+2}, 7, v{T+1}
        v_min_u32 v{T+1}, v{T+1}, v{T+2}
        v_lshrrev_b32 v{T+2}, 1, v{T+1}
        v_and_b32 v{T+1}, 1, v{T+1}
        v_lshl_add_u32 v{T+1}, v{T+1}, 2, v{T+2}
        v_lshl_add_u32 v{T}, v{T}, 3, v{T+1}
        v_lshlrev_b32 v{T}, 7, v{T}
        v_and_b32 v{T+1}, 3, v1
        v_lshl_add_u32 v{T}, v{T+1}, 2, v{T}
        v_lshrrev_b32 v{T+2}, 1, v0
        v_mul_u32_u24 v{T+2}, 7168, v{T+2}
        v_and_b32 v{T+3}, 1, v0
        v_lshl_add_u32 v{T+2}, v{T+3}, 4, v{T+2}
        """)
        self.h_u = self.poll_issue(T, T + 1)
        self.t_after_half = self.h_u[0]
    def u_load(self):
        k = self.k
        T = self.V_S; U = self.V_U
        self.poll_check(self.h_u, bump=True)
        k(f"""
        s_lshl_b32 s57, s{S_CP}, 5
        s_add_u32 s57, s57, {WS_UT}
        s_add_u32 s58, s57, {128*7168}
        buffer_load_dwordx4 v[{U}:{U+3}], v{T+2}, s[{SRD_WS}:{SRD_WS+3}], s57 offen sc1
        buffer_load_dwordx4 v[{U+4}:{U+7}], v{T+2}, s[{SRD_WS}:{SRD_WS+3}], s58 offen sc1
        """)
        self.t_u = k.vm
    def u_write_copy8(self):
        k = self.k
        T = self.V_S; U = self.V_U
        k(f"""
        v_and_b32 v{T}, 1, v0
        v_mul_u32_u24 v{T}, {UCH}, v{T}
        v_lshrrev_b32 v{T+1}, 1, v0
        v_lshl_add_u32 v{T}, v{T+1}, 4, v{T}
        v_add_u32 v{T}, {UC + 7*UCP + 16}, v{T}
        v_and_b32 v{T+1}, 15, v1
        v_mul_u32_u24 v{T+1}, {UCP}, v{T+1}
        v_mov_b32 v{T+4}, 0
        v_mov_b32 v{T+5}, 0
        v_mov_b32 v{T+6}, 0
        v_mov_b32 v{T+7}, 0
        ds_write_b128 v{T+1}, v[{T+4}:{T+7}] offset:{UC}
        """)
        k.wait_vm(self.t_u)
        k(f"ds_write_b128 v{T}, v[{U}:{U+3}]")
        k(f"ds_write_b128 v{T}, v[{U+4}:{U+7}] offset:2048")

    def u_copies(self, mid=None):
        k = self.k
        R = 48
        T = R; W0 = R + 4
        k(f"""
        s_lshr_b32 s56, s{S_W}, 1
        s_mul_i32 s56, s56, {UCH}
        s_add_u32 s56, s56, {UC}
        v_and_b32 v{T}, 127, v0
        v_lshl_add_u32 v{T}, v{T}, 4, s56
        """)
        tg = []
        for r in range(2):
            w = W0 + 32 * r
            k(f"ds_read_b128 v[{w}:{w+3}], v{T} offset:{7*UCP + 2048*r}")
            tg.append(k(f"ds_read_b128 v[{w+4}:{w+7}], v{T} offset:{7*UCP + 2048*r + 16}"))
        if mid: mid()
        for r in range(2):
            w = W0 + 32 * r
            base = 2048 * r + 16
            k.wait_lg(tg[r])
            def wr(s_, reg): k(f"ds_write_b128 v{T}, v[{reg}:{reg+3}] offset:{base + (s_-1)*UCP}")
            wr(4, w + 2)
            for i in range(7): k(f"v_alignbit_b32 v{w+16+i}, v{w+i+1}, v{w+i}, 16")
            wr(1, w + 16); wr(5, w + 18)
            for i in range(6): k(f"v_mov_b32 v{w+8+i}, v{w+1+i}")
            wr(2, w + 8); wr(6, w + 10)
            for i in range(6): k(f"v_mov_b32 v{w+24+i}, v{w+17+i}")
            wr(3, w + 24); wr(7, w + 26)

    def conv(self):
        k = self.k
        R = 16
        AA = R; BA = R + 1; T = R + 2
        AC = R + 8
        F1 = 64; F0 = 128
        k(f"""
        s_lshr_b32 s56, s{S_W}, 1
        s_and_b32 s58, s{S_W}, 1
        s_mul_i32 s57, s56, {UCH}
        s_lshl_b32 s59, s58, 8
        s_add_u32 s57, s57, s59
        s_add_u32 s57, s57, {UC + 48}
        v_and_b32 v{T}, 7, v1
        v_mul_u32_u24 v{T}, {UCP}, v{T}
        v_bfe_u32 v{T+1}, v1, 3, 1
        v_lshrrev_b32 v{T+2}, 4, v1
        v_sub_u32 v{T+1}, v{T+1}, v{T+2}
        v_lshl_add_u32 v{T}, v{T+1}, 4, v{T}
        v_add_u32 v{AA}, s57, v{T}
        s_mul_i32 s57, s56, {KXP}
        s_sub_u32 s57, s57, s59
        s_add_u32 s57, s57, {KX + 512 - 32 - 192}
        v_and_b32 v{T}, 15, v1
        v_lshlrev_b32 v{T}, 5, v{T}
        v_lshl_add_u32 v{T}, v{T+2}, 4, v{T}
        v_add_u32 v{BA}, s57, v{T}
        """)
        self.z_poll_addr()
        with k.atomic():
            k("s_waitcnt lgkmcnt(0)\ns_barrier")
        self.stamp("copies")
        def rd(rp, i):
            f = F1 if rp & 1 else F0
            j = i >> 1
            if i & 1: return k(f"ds_read_b128 v[{f+32+4*j}:{f+32+4*j+3}], v{BA} offset:{512*j + 64*(3-rp)}")
            return k(f"ds_read_b128 v[{f+4*j}:{f+4*j+3}], v{AA} offset:{512*j + 64*rp}")
        tg = {}
        with k.atomic():
            for i in range(16): tg[(0, i)] = rd(0, i)
        first = set()
        zl = 0
        for rp in range(4):
            f = F1 if rp & 1 else F0
            cnt = 0; ri = 0
            order = [(n, a_) for n in range(8) for a_ in range(n + 1)] if rp == 0 else [(n, a_) for n in range(7, -1, -1) for a_ in range(n + 1)]
            if rp == 3:
                self.poll_check(self.h_z)
                self.stamp("z ready")
            for n, a_ in order:
                b = n - a_
                k.wait_lg(tg[(rp, 2 * max(a_, b) + 1)] if rp == 0 else tg[(rp, 15)])
                src = f"v[{AC+4*n}:{AC+4*n+3}]" if n in first else "0"
                first.add(n)
                k(f"v_mfma_f32_16x16x32_f16 v[{AC+4*n}:{AC+4*n+3}], v[{f+4*a_}:{f+4*a_+3}], v[{f+32+4*b}:{f+32+4*b+3}], {src}")
                cnt += 1
                if rp < 3 and cnt % 2 == 0 and ri < 16:
                    tg[(rp + 1, ri)] = rd(rp + 1, ri); ri += 1
                tot = rp * 36 + cnt
                o = self.opt
                if tot == o.get("c_p1", 4):
                    self.w_finish()
                    self.h_z1 = self.poll_issue(self.V_P + 2, self.V_P + 3, soff=f"s{self.S_ZF1}")
                if tot == o.get("c_wog", 6): self.wout_gather()
                if tot == o.get("c_g", 44): self.z_gather()
                if tot == o.get("c_p2", 70):
                    self.h_z = self.poll_issue(self.V_P, self.V_P + 1, soff=f"s{self.S_ZF}")
                if rp == 3 and cnt % 2 == 1 and zl < 14:
                    self.zload(zl // 7, zl % 7); zl += 1
        self.stamp("conv mfma")
        X = T
        F = F1
        KEEP = F; RX = F + 16
        k.nobg += 1
        k(f"""
        s_lshl_b32 s57, s{S_W}, 12
        s_add_u32 s57, s57, {CRED}
        v_add_u32 v{X}, s57, v{self.V_L16}
        s_bitcmp0_b32 s{S_W}, 0
        s_cbranch_scc1 L_cv_h0
        """)
        with k.branch():
            for n in range(4): k(f"ds_write_b128 v{X}, v[{AC+4*n}:{AC+4*n+3}] offset:{n*1024}")
            for r in range(0, 16, 2): k(f"v_pk_mov_b32 v[{AC+r}:{AC+r+1}], v[{AC+16+r}:{AC+17+r}], v[{AC+16+r}:{AC+17+r}] op_sel:[0,1]")
            k("s_branch L_cv_j")
        k("L_cv_h0:")
        with k.branch():
            for n in range(4): k(f"ds_write_b128 v{X}, v[{AC+16+4*n}:{AC+16+4*n+3}] offset:{n*1024}")
        k("L_cv_j:")
        KEEP = AC
        k(f"""
        v_xor_b32 v{X+1}, 4096, v{X}
        s_lshr_b32 s56, s{S_W}, 1
        s_and_b32 s58, s{S_W}, 1
        s_mul_i32 s57, s56, {UCH}
        s_lshl_b32 s59, s58, 11
        s_add_u32 s57, s57, s59
        s_add_u32 s57, s57, {UC + 7*UCP + 16}
        v_and_b32 v{X+2}, 15, v1
        v_lshlrev_b32 v{X+2}, 5, v{X+2}
        v_lshrrev_b32 v{X+3}, 4, v1
        v_lshl_add_u32 v{X+3}, v{X+3}, 3, v{X+2}
        v_add_u32 v{X+3}, s57, v{X+3}
        """)
        assert CRED % 8192 == 0
        UU = F + 32
        for n in range(4): k(f"ds_read_b64 v[{UU+2*n}:{UU+2*n+1}], v{X+3} offset:{n*512}")
        k("s_waitcnt lgkmcnt(0)\ns_barrier")
        for n in range(4): k(f"ds_read_b128 v[{RX+4*n}:{RX+4*n+3}], v{X+1} offset:{n*1024}")
        UD = F + 40
        for p in range(8):
            d = UD + 2*p
            k(f"v_fma_mix_f32 v{d}, v{UU+p}, v{self.V_DS}, 0 op_sel_hi:[1,0,0]")
            k(f"v_fma_mix_f32 v{d+1}, v{UU+p}, v{self.V_DS}, 0 op_sel:[1,0,0] op_sel_hi:[1,0,0]")
        for p in range(8):
            d = UD + 2*p
            k(f"v_cvt_pk_bf16_f32 v{d+1}, v{d}, v{d+1}")
            k(f"v_lshlrev_b32 v{d}, 16, v{d+1}\nv_and_b32 v{d+1}, s{S_MASK}, v{d+1}")
        k(f"""
        v_bfe_u32 v{X}, v1, 4, 1
        v_lshl_add_u32 v{X+2}, v{X}, 9, v{X+2}
        v_lshrrev_b32 v{X}, 5, v1
        v_lshl_add_u32 v{X+2}, v{X}, 4, v{X+2}
        s_lshl_b32 s57, s{S_CP}, 13
        s_lshl_b32 s59, s{S_W}, 11
        s_add_u32 s57, s57, s59
        s_add_u32 s57, s57, {WS_ST}
        s_waitcnt lgkmcnt(0)
        """)
        O = F + 56
        YS = self.V_YS
        for p in range(8):
            y = KEEP + 2*p; d = UD + 2*p
            k(f"""
            v_pk_add_f32 v[{y}:{y+1}], v[{y}:{y+1}], v[{RX+2*p}:{RX+2*p+1}]
            v_pk_mul_f32 v[{y}:{y+1}], v[{y}:{y+1}], v[{YS}:{YS+1}] op_sel_hi:[1,0]
            v_cvt_pk_bf16_f32 v{y+1}, v{y}, v{y+1}
            v_lshlrev_b32 v{y}, 16, v{y+1}
            v_and_b32 v{y+1}, s{S_MASK}, v{y+1}
            v_pk_add_f32 v[{y}:{y+1}], v[{y}:{y+1}], v[{d}:{d+1}]
            v_cvt_pk_bf16_f32 v{O+p}, v{y}, v{y+1}
            """)
        for pr in range(2):
            u = O + 4*pr
            k(f"v_permlane16_swap_b32 v{u}, v{u+2}")
            k(f"v_permlane16_swap_b32 v{u+1}, v{u+3}")
            self.t_s = k(f"buffer_store_dwordx4 v[{u}:{u+3}], v{X+2}, s[{SRD_WS}:{SRD_WS+3}], s57 offen offset:{pr*1024} sc1")
        k.nobg -= 1

    S_ZF = 68; S_ZB = 69; S_Z = 70; S_Z2 = 71; S_ZF1 = 72
    ZR = 128; AC2 = 16
    def z_poll_addr(self):
        k = self.k
        T = self.V_P
        k(f"""
        v_bfe_u32 v{T}, v1, 2, 3
        s_lshl_b32 s57, s{S_W}, 3
        v_add_u32 v{T}, s57, v{T}
        s_xor_b32 s57, s{S_FB}, 1
        v_lshl_add_u32 v{T}, v{T}, 3, s57
        v_lshlrev_b32 v{T}, 7, v{T}
        v_and_b32 v{T+1}, 3, v1
        v_lshl_add_u32 v{T}, v{T+1}, 2, v{T}
        s_mov_b32 s{self.S_ZF}, {WS_FLAG + 32768}
        s_lshl2_add_u32 s57, s{S_FB}, s{S_W}
        s_mul_i32 s{self.S_ZB}, s57, {16*7168}
        s_add_u32 s{self.S_ZB}, s{self.S_ZB}, {WS_Z}
        v_lshlrev_b32 v{T+2}, 2, v{T+1}
        s_lshl_b32 s57, s{S_W}, 4
        s_add_u32 s57, s57, s{S_RHO2}
        s_lshl_b32 s57, s57, 9
        s_xor_b32 s58, s{S_FB}, 1
        s_lshl_b32 s58, s58, 7
        s_add_u32 s57, s57, s58
        s_add_u32 s{self.S_ZF1}, s57, {WS_FLAG + 32768}
        v_min_u32 v{self.V_G}, 55, v1
        v_lshlrev_b32 v{T+4}, 7, v{self.V_G}
        s_mul_i32 s{self.S_Z}, s{S_RHO2}, 7168
        s_add_u32 s{self.S_Z}, s{self.S_Z}, s{self.S_ZB}
        s_add_u32 s{self.S_Z2}, s{self.S_Z}, 7168
        """)
        self.ztag = {}
    def z_gather(self):
        k = self.k
        T = self.V_P
        self.poll_check(self.h_z1)
        self.stamp("z1st ready")
        k(f"""
        buffer_load_dword v{self.V_GD}, v{T+4}, s[{SRD_WS}:{SRD_WS+3}], s{self.S_Z} offen sc1
        buffer_load_dword v{self.V_GD}, v{T+4}, s[{SRD_WS}:{SRD_WS+3}], s{self.S_Z2} offen sc1
        """)
    def zload(self, sg, j):
        k = self.k
        SZ = self.S_Z; SZ2 = self.S_Z2
        if j == 0:
            k(f"""
            s_add_u32 s{SZ}, s{S_RHO2}, {sg}
            s_and_b32 s{SZ}, s{SZ}, 15
            s_mul_i32 s{SZ}, s{SZ}, 7168
            s_add_u32 s{SZ}, s{SZ}, s{self.S_ZB}
            """)
        if j == 4: k(f"s_add_u32 s{SZ2}, s{SZ}, 4096")
        r = self.ZR + (sg % 3) * 28 + 4 * j
        so = SZ if j < 4 else SZ2
        self.ztag[(sg, j)] = k(f"buffer_load_dwordx4 v[{r}:{r+3}], v{self.V_L16}, s[{SRD_WS}:{SRD_WS+3}], s{so} offen offset:{(j & 3) * 1024} sc1")

    def gelu1_fillers(self):
        T = self.V_S; C1 = 228; C3 = 229
        c1 = -2.0 * 0.7978845608028654 * LOG2E
        c3 = c1 * 0.044715
        out = [f"v_mov_b32 v{C1}, {f2u(c1)}", f"v_mov_b32 v{C3}, {f2u(c3)}"]
        for p in range(14):
            z = self.V_Z1 + p
            a = T; b = T + 1; t = T + 2; u = T + 3
            out += [f"v_lshlrev_b32 v{a}, 16, v{z}", f"v_and_b32 v{b}, s{S_MASK}, v{z}",
                    f"v_mul_f32 v{t}, v{a}, v{a}", f"v_mul_f32 v{u}, v{b}, v{b}",
                    f"v_fma_f32 v{t}, v{t}, v{C3}, v{C1}", f"v_fma_f32 v{u}, v{u}, v{C3}, v{C1}",
                    f"v_mul_f32 v{t}, v{t}, v{a}", f"v_mul_f32 v{u}, v{u}, v{b}",
                    f"v_exp_f32 v{t}, v{t}", f"v_exp_f32 v{u}, v{u}",
                    f"v_add_f32 v{t}, 1.0, v{t}", f"v_add_f32 v{u}, 1.0, v{u}",
                    f"v_rcp_f32 v{t}, v{t}", f"v_rcp_f32 v{u}, v{u}",
                    f"v_mul_f32 v{a}, v{a}, v{t}", f"v_mul_f32 v{b}, v{b}, v{u}",
                    f"v_cvt_pk_bf16_f32 v{z}, v{a}, v{b}"]
        return out

    def phase2(self):
        k = self.k
        T = self.V_S
        AC = self.AC2; ZR = self.ZR
        tag = self.ztag
        fill = self.gelu1_fillers()
        XA = 234
        for tp in range(1, 4):
            fill += [f"s_xor_b32 s56, s{S_W}, {tp}", f"s_mul_i32 s56, s56, 21504", f"s_add_u32 s56, s56, {X2 + (tp-1)*7168}",
                     f"v_add_u32 v{XA+tp-1}, s56, v{self.V_L16}"]
        fill += [f"s_mul_i32 s56, s{S_W}, 21504", f"s_add_u32 s56, s56, {X2}", f"v_add_u32 v{XA+3}, s56, v{self.V_L16}",
                 f"v_lshlrev_b32 v{self.V_BSP}, 16, v{self.V_BSP}"]
        fill += f"""
        s_lshl2_add_u32 s56, s{S_TB}, s{S_W}
        s_mul_i32 s56, s56, 28
        s_lshr_b32 s57, s{S_FB}, 1
        s_mul_i32 s57, s57, 7
        s_add_u32 s56, s56, s57
        s_lshl_b32 s56, s56, 10
        s_add_u32 s56, s56, {WS_H}
        s_and_b32 s58, s{S_FB}, 1
        s_lshl_b32 s72, s58, 12
        s_add_u32 s72, s72, s56
        s_lshl_b32 s73, s58, 9
        s_add_u32 s73, s73, s56
        v_lshrrev_b32 v{T+4}, 5, v1
        v_lshlrev_b32 v{T+4}, 8, v{T+4}
        v_and_b32 v{T+5}, 15, v1
        v_lshl_add_u32 v{T+4}, v{T+5}, 4, v{T+4}
        """.strip().split("\n")
        fill += self.p3_setup_fillers()
        def mf(sg, tau, j):
            r = ZR + (sg % 3) * 28 + 4 * j
            ac = AC + (tau * 7 + j) * 4
            wr = (sg * 4 + tau) * 4
            src = "0" if sg == 0 else f"v[{ac}:{ac+3}]"
            k(f"v_mfma_f32_16x16x32_bf16 v[{ac}:{ac+3}], v[{r}:{r+3}], a[{wr}:{wr+3}], {src}")
        fill = [f.strip() for f in fill]
        def filler():
            c = 0
            while fill and c + icost(fill[0]) <= 8:
                c += icost(fill[0]); k(fill.pop(0))
        k("s_waitcnt lgkmcnt(0)")
        for sg in range(13):
            for j in range(7):
                if j in (0, 4): k.wait_vm(tag[(sg, 3 if j == 0 else 6)])
                if sg == 2 and j == 0:
                    assert k.vm_done >= self.t_s
                    self.set_flag(f"s_lshl_b32 s56, s{S_F4}, 7\ns_lshl2_add_u32 s56, s{S_W}, s56\ns_add_u32 s56, s56, {WS_FLAG + 3*32768}\n", 56)
                for tau in range(4):
                    mf(sg, tau, j)
                    if tau < 3: filler()
                self.zload(sg + 2, j)
            if sg == 6: k("s_barrier")
            if sg % 2 == 1 and self.opt.get("fine"): self.stamp(f"g2 sg{sg}")
        assert not fill, len(fill)
        for j in range(7): fill.append(lambda j=j: self.zload(15, j))
        fill2 = self.wout_dma_items()
        wr = {}
        cnt = [0]
        def blk(sg, tau):
            for j in range(7):
                if j in (0, 4): k.wait_vm(tag[(sg, 3 if j == 0 else 6)])
                mf(sg, tau, j)
                if fill: fill.pop(0)()
                elif cnt[0] in wr: wr[cnt[0]]()
                elif fill2 and cnt[0] % 3 == 1: fill2.pop(0)()
                cnt[0] += 1
        for i in range(21):
            tp = 1 + i // 7; j = i % 7
            ac = AC + (tp * 7 + j) * 4
            wr[49 + i * 35 // 21] = lambda ac=ac, j=j, tp=tp: k(f"ds_write_b128 v{XA+tp-1}, v[{ac}:{ac+3}] offset:{j*1024}")
        for sg, tau in ((13,1),(14,1),(13,2),(14,2),(13,3),(14,3),(15,1),(15,2),(15,3),(13,0),(14,0),(15,0)): blk(sg, tau)
        self.stamp("gemm2")
        k("s_waitcnt lgkmcnt(0)\ns_barrier")
        RX = ZR
        tg = {}
        for j in range(7):
            for sidx in range(3):
                r = RX + (j * 3 + sidx) * 4
                tg[j] = k(f"ds_read_b128 v[{r}:{r+3}], v{XA+3} offset:{sidx*7168 + j*1024}")
        while fill2: fill2.pop(0)()
        P = 48; Z = 64
        B = self.V_BSP
        for j in range(7):
            k.wait_lg(tg[j])
            for hh in range(2):
                g = AC + j * 4 + 2 * hh
                p = 2 * j + hh
                z = Z + 2 * (p & 1)
                r = RX + j * 12 + 2 * hh
                k(f"""
                v_pk_add_f32 v[{g}:{g+1}], v[{g}:{g+1}], v[{r}:{r+1}]
                v_pk_add_f32 v[{r+4}:{r+5}], v[{r+4}:{r+5}], v[{r+8}:{r+9}]
                v_lshlrev_b32 v{z}, 16, v{self.V_Z1+p}
                v_pk_add_f32 v[{g}:{g+1}], v[{g}:{g+1}], v[{r+4}:{r+5}]
                v_and_b32 v{z+1}, s{S_MASK}, v{self.V_Z1+p}
                v_cvt_pk_bf16_f32 v{g+1}, v{g}, v{g+1}
                v_lshlrev_b32 v{g}, 16, v{g+1}
                v_and_b32 v{g+1}, s{S_MASK}, v{g+1}
                v_pk_add_f32 v[{g}:{g+1}], v[{g}:{g+1}], v[{B}:{B+1}] op_sel_hi:[1,0]
                v_cvt_pk_bf16_f32 v{g+1}, v{g}, v{g+1}
                v_lshlrev_b32 v{g}, 16, v{g+1}
                v_and_b32 v{g+1}, s{S_MASK}, v{g+1}
                v_pk_mul_f32 v[{g}:{g+1}], v[{g}:{g+1}], v[{z}:{z+1}]
                v_cvt_pk_bf16_f32 v{P+p}, v{g}, v{g+1}
                """)
                if p >= 12: k(f"v_cvt_pk_bf16_f32 v{P+p+2}, v{g}, v{g+1}")
            if j in (1, 3, 5):
                i = j // 2
                k(f"buffer_store_dwordx4 v[{P+4*i}:{P+4*i+3}], v{self.V_L16}, s[{SRD_WS}:{SRD_WS+3}], s72 offen offset:{i*1024} sc1")
        k(f"""
        v_permlane16_swap_b32 v{P+12}, v{P+14}
        v_permlane16_swap_b32 v{P+13}, v{P+15}
        """)
        self.t_h = k(f"buffer_store_dwordx4 v[{P+12}:{P+15}], v{T+4}, s[{SRD_WS}:{SRD_WS+3}], s73 offen offset:3072 sc1")
        self.stamp("h stored")

    VN = 2; VS = 3; RA3 = 4; OA = 6; V_SP = 7; V_SA = 8; V_HP = 9; V_PL = 10
    S_WOB = 74; S_WOL = 75; S_OUT = 76; S_SF = 77; S_SB = 78; S_HF = 79; S_HB = 80
    def p3_setup_fillers(self):
        T = 11
        VN = self.VN; VS = self.VS; RA3 = self.RA3; OA = self.OA
        s = f"""
        v_lshrrev_b32 v{T}, 3, v1
        v_and_b32 v{T+1}, 7, v1
        v_bfe_u32 v{T+2}, v1, 4, 1
        v_xor_b32 v{T+1}, v{T+1}, v{T+2}
        v_mul_u32_u24 v{VN}, 896, v{T}
        v_lshl_add_u32 v{VN}, v{T+1}, 4, v{VN}
        v_and_b32 v{T+2}, 3, v{T}
        v_and_b32 v{T}, 4, v{T}
        v_lshl_add_u32 v{T}, v{T}, 1, v{T+2}
        v_mul_u32_u24 v{VS}, 896, v{T}
        v_lshl_add_u32 v{VS}, v{T+1}, 4, v{VS}
        s_min_u32 s56, s{S_DB}, 6
        s_mul_i32 s{self.S_WOB}, s{S_W}, {224*896}
        s_lshl_b32 s57, s56, 7
        s_add_u32 s{self.S_WOB}, s{self.S_WOB}, s57
        v_and_b32 v{T}, 15, v1
        v_mul_u32_u24 v{OA}, 896, v{T}
        v_lshrrev_b32 v{T+1}, 4, v1
        v_lshl_add_u32 v{OA}, v{T+1}, 5, v{OA}
        s_and_b32 s58, s{S_W}, 1
        s_lshr_b32 s59, s{S_W}, 1
        s_lshl1_add_u32 s60, s58, s59
        s_lshl2_add_u32 s61, s{S_TB3}, s60
        s_mul_i32 s{self.S_OUT}, s61, {16*896}
        s_add_u32 s{self.S_OUT}, s{self.S_OUT}, s57
        v_lshrrev_b32 v{T}, 2, v1
        v_lshlrev_b32 v{T}, 7, v{T}
        v_and_b32 v{T+1}, 3, v1
        v_lshl_add_u32 v{T}, v{T+1}, 5, v{T}
        v_bfe_u32 v{T+1}, v1, 3, 1
        v_lshl_add_u32 v{T}, v{T+1}, 4, v{T}
        s_mul_i32 s62, s59, {2*14336}
        v_add_u32 v{RA3}, s62, v{T}
        v_xor_b32 v{RA3+1}, 16, v{RA3}
        v_lshrrev_b32 v{T}, 1, v1
        v_and_b32 v{T+1}, 1, v1
        v_lshlrev_b32 v{self.V_SP}, 7, v{T}
        v_lshl_add_u32 v{self.V_SP}, v{T+1}, 3, v{self.V_SP}
        s_lshl_b32 s{self.S_SF}, s56, 12
        s_lshr_b32 s62, s{S_TB3}, 4
        s_lshl2_add_u32 s{self.S_SF}, s62, s{self.S_SF}
        s_add_u32 s{self.S_SF}, s{self.S_SF}, {WS_FLAG + 3*32768}
        v_lshlrev_b32 v{self.V_SA}, 12, v{T}
        v_lshl_add_u32 v{self.V_SA}, v{T+1}, 4, v{self.V_SA}
        s_lshl_b32 s{self.S_SB}, s56, 18
        s_lshl_b32 s62, s61, 5
        s_add_u32 s{self.S_SB}, s{self.S_SB}, s62
        s_add_u32 s{self.S_SB}, s{self.S_SB}, {WS_ST}
        v_bfe_u32 v{T}, v1, 1, 2
        v_lshlrev_b32 v{T}, 7, v{T}
        v_lshl_add_u32 v{self.V_HP}, v{T+1}, 2, v{T}
        s_lshl1_add_u32 s62, s{S_TB3}, s59
        s_lshl_b32 s62, s62, 9
        s_lshl3_add_u32 s62, s58, s62
        s_add_u32 s{self.S_HF}, s62, {WS_FLAG + 2*32768}
        """
        for tl in range(2):
            s += f"""
            s_xor_b32 s62, s61, {tl}
            s_mul_i32 s62, s62, 28
            s_mul_i32 s63, s59, 14
            s_add_u32 s62, s62, s63
            s_lshl_b32 s62, s62, 10
            s_add_u32 s{self.S_HB+4*tl}, s62, {WS_H}
            s_add_u32 s{self.S_HB+4*tl+1}, s{self.S_HB+4*tl}, 4096
            s_add_u32 s{self.S_HB+4*tl+2}, s{self.S_HB+4*tl}, 8192
            s_add_u32 s{self.S_HB+4*tl+3}, s{self.S_HB+4*tl}, 12288
            """
        return [l.strip() for l in s.strip().split("\n") if l.strip()]

    def wout_piece(self, i, n, lds):
        k = self.k
        if i == 3:
            row = (208 if n & 1 else 96) + 4 * (n >> 1); vo = self.VS
        else:
            row = (32 * i if i < 3 else 112 + 32 * (i - 4)) + 8 * n; vo = self.VN
        k(f"s_add_u32 s{self.S_WOL}, s{self.S_WOB}, {row*896}")
        k(f"s_add_u32 m0, s{S_XL}, {lds}")
        self.t_wo = k(f"buffer_load_dwordx4 v{vo}, s[{SRD_WOUT}:{SRD_WOUT+3}], s{self.S_WOL} offen lds")
    def wout_dma_items(self):
        return [lambda pc=pc: self.wout_piece(pc >> 2, pc & 3, RB + pc * 1024) for pc in range(14)]
    def wout_reads(self, half):
        out = []
        for cl in range(2):
            for hb in range(7):
                hh = 7 * half + hb
                for tau in range(4):
                    ar = ((cl * 7 + (hh >> 1)) * 4 + tau) * 4 + 2 * (hh & 1)
                    out.append(f"ds_read_b64_tr_b16 a[{ar}:{ar+1}], v{self.RA3 + (tau >> 1)} offset:{cl*14336 + hb*2048 + (tau & 1)*8}")
        return out

    def phase3(self):
        k = self.k
        T = self.V_S
        HB = 16; AC = 128; XV = 192; SV = 200
        OA = self.OA
        k(f"s_cmp_lg_u32 s{S_DB}, 7\ns_cbranch_scc1 L_p3")
        with k.branch():
            k("s_waitcnt vmcnt(0)")
            self.flag(2)
            k("s_branch L_done")
        k("L_p3:")
        k.wait_vm(self.t_wo)
        k("s_barrier")
        rd = self.wout_reads(0)
        for pc in range(14, 28):
            self.wout_piece(pc >> 2, pc & 3, RA + (pc - 14) * 1024)
            for _ in range(4): k(rd.pop(0))
            if pc == self.opt.get("p3_fl", 24):
                k.wait_vm(self.t_h)
                self.flag(2)
                self.stamp("h out")
        h_s = self.poll_issue(self.V_SP, self.V_PL, soff=f"s{self.S_SF}")
        k(f"""
        buffer_load_dwordx4 v[{XV}:{XV+3}], v{OA}, s[{SRD_X}:{SRD_X+3}], s{self.S_OUT} offen
        buffer_load_dwordx4 v[{XV+4}:{XV+7}], v{OA}, s[{SRD_X}:{SRD_X+3}], s{self.S_OUT} offen offset:16
        v_add_u32 v{self.RA3}, {RA}, v{self.RA3}
        v_add_u32 v{self.RA3+1}, {RA}, v{self.RA3+1}
        s_lshl_b32 s61, s{S_W}, 11
        s_add_u32 s61, s61, {SX}
        v_add_u32 v{T}, s61, v{self.V_L16}
        v_lshrrev_b32 v{T+1}, 4, v1
        v_lshlrev_b32 v{T+1}, 9, v{T+1}
        v_and_b32 v{T+2}, 15, v1
        v_lshl_add_u32 v{T+1}, v{T+2}, 3, v{T+1}
        v_add_u32 v{T+1}, s61, v{T+1}
        s_lshl_b32 s56, s{S_W}, 12
        v_add_u32 v{T+3}, s56, v{self.V_L16}
        v_xor_b32 v{T+2}, 8192, v{T+3}
        v_lshrrev_b32 v{T+4}, 5, v1
        v_mul_u32_u24 v{T+4}, 28672, v{T+4}
        v_and_b32 v{T+5}, 31, v1
        v_lshl_add_u32 v{T+4}, v{T+5}, 6, v{T+4}
        s_min_u32 s56, s{self.S_HB}, s{self.S_HB+4}
        s_lshl_b32 s57, s{S_DB}, 11
        s_add_u32 s{self.S_HB+8}, s56, s57
        s_add_u32 s59, s{self.S_SB}, {32*4096}
        """)
        assert X3 == 0
        k.wait_both(self.t_wo, k.lg)
        k("s_barrier")
        self.stamp("p3 wo landed")
        rd = self.wout_reads(1)
        for _ in range(28): k(rd.pop(0))
        self.poll_check(h_s)
        k(f"buffer_load_dwordx4 v[{SV}:{SV+3}], v{self.V_SA}, s[{SRD_WS}:{SRD_WS+3}], s{self.S_SB} offen sc1")
        t_sv = k(f"buffer_load_dwordx4 v[{SV+4}:{SV+7}], v{self.V_SA}, s[{SRD_WS}:{SRD_WS+3}], s59 offen sc1")
        h_h = self.poll_issue(self.V_HP, self.V_PL, soff=f"s{self.S_HF}")
        while rd: k(rd.pop(0))
        self.stamp("wout ready")
        self.poll_check(h_h)
        self.stamp("h ready")
        if self.opt.get("hg", 1):
            k(f"buffer_load_dword v{self.V_PL}, v{T+4}, s[{SRD_WS}:{SRD_WS+3}], s{self.S_HB+8} offen sc1")
        th = {}
        seq = [(tl, i) for tl in (1, 0) for i in range(14)]
        ld = list(seq)
        def hload():
            tl, i = ld.pop(0)
            r = HB + (tl * 14 + i) * 4
            th[(tl, i)] = k(f"buffer_load_dwordx4 v[{r}:{r+3}], v{self.V_L16}, s[{SRD_WS}:{SRD_WS+3}], s{self.S_HB+4*tl+(i>>2)} offen offset:{(i&3)*1024} sc1")
        for _ in range(self.opt.get("h_pre", 8)): hload()
        k(f"""
        ds_write_b128 v{T}, v[{SV}:{SV+3}]
        ds_write_b128 v{T}, v[{SV+4}:{SV+7}] offset:1024
        """)
        for tau in range(4):
            k(f"ds_read_b64_tr_b16 v[{SV+2*tau}:{SV+2*tau+1}], v{T+1} offset:{tau*128}")
        k("s_waitcnt lgkmcnt(0)")
        for tl, i in seq:
            k.wait_vm(th[(tl, i)])
            if (tl, i) == (1, 0): self.stamp("g3 first")
            r = HB + (tl * 14 + i) * 4
            for tau in range(4):
                ac = AC + (tl * 4 + tau) * 4
                ar = (i * 4 + tau) * 4
                src = "0" if i == 0 else f"v[{ac}:{ac+3}]"
                k(f"v_mfma_f32_16x16x32_bf16 v[{ac}:{ac+3}], a[{ar}:{ar+3}], v[{r}:{r+3}], {src}")
                if tau in (0, 2) and ld: hload()
                if tl == 0 and i in (1, 2, 3, 4) and tau == 1:
                    ac = AC + (4 + i - 1) * 4
                    k(f"ds_write_b128 v{T+2}, v[{ac}:{ac+3}] offset:{(i-1)*1024}")
            if tl == 0 and i == 11:
                k("s_waitcnt lgkmcnt(0)\ns_barrier")
                for tau in range(4):
                    ac = AC + (4 + tau) * 4
                    k(f"ds_read_b128 v[{ac}:{ac+3}], v{T+3} offset:{tau*1024}")
        self.stamp("gemm3")
        E = 80; O = 96; C = 104
        k(f"v_mov_b32 v{C}, {f2u(-LOG2E)}\ns_waitcnt lgkmcnt(0)")
        for tau in range(4):
            for hh in range(2):
                g = AC + tau * 4 + 2 * hh
                e = E + 4 * hh
                r = g + 16
                k(f"""
                v_pk_add_f32 v[{g}:{g+1}], v[{g}:{g+1}], v[{r}:{r+1}]
                v_cvt_pk_bf16_f32 v{g+1}, v{g}, v{g+1}
                v_lshlrev_b32 v{g}, 16, v{g+1}
                v_and_b32 v{g+1}, s{S_MASK}, v{g+1}
                v_pk_mul_f32 v[{e}:{e+1}], v[{g}:{g+1}], v[{C}:{C+1}] op_sel_hi:[1,0]
                v_exp_f32 v{e}, v{e}
                v_exp_f32 v{e+1}, v{e+1}
                """)
            for hh in range(2):
                e = E + 4 * hh
                k(f"""
                v_pk_add_f32 v[{e}:{e+1}], v[{e}:{e+1}], 1.0 op_sel_hi:[1,0]
                v_rcp_f32 v{e}, v{e}
                v_rcp_f32 v{e+1}, v{e+1}
                """)
            for hh in range(2):
                g = AC + tau * 4 + 2 * hh
                e = E + 4 * hh
                p = 2 * tau + hh
                k(f"""
                v_pk_mul_f32 v[{g}:{g+1}], v[{g}:{g+1}], v[{e}:{e+1}]
                v_cvt_pk_bf16_f32 v{g+1}, v{g}, v{g+1}
                v_lshlrev_b32 v{g}, 16, v{g+1}
                v_and_b32 v{g+1}, s{S_MASK}, v{g+1}
                v_lshlrev_b32 v{e}, 16, v{SV+p}
                v_and_b32 v{e+1}, s{S_MASK}, v{SV+p}
                v_pk_mul_f32 v[{g}:{g+1}], v[{g}:{g+1}], v[{e}:{e+1}]
                v_cvt_pk_bf16_f32 v{g+1}, v{g}, v{g+1}
                v_lshlrev_b32 v{g}, 16, v{g+1}
                v_and_b32 v{g+1}, s{S_MASK}, v{g+1}
                v_lshlrev_b32 v{e}, 16, v{XV+p}
                v_and_b32 v{e+1}, s{S_MASK}, v{XV+p}
                v_pk_add_f32 v[{g}:{g+1}], v[{g}:{g+1}], v[{e}:{e+1}]
                v_cvt_pk_bf16_f32 v{O+p}, v{g}, v{g+1}
                """)
            if tau & 1:
                o = O + 4 * (tau >> 1)
                k(f"buffer_store_dwordx4 v[{o}:{o+3}], v{OA}, s[{SRD_OUT}:{SRD_OUT+3}], s{self.S_OUT} offen offset:{16*(tau>>1)}")
        self.stamp("out stored")
        k("L_done:")

    def build(self):
        k = self.k
        o = self.opt
        self.prologue()
        self.pace = o.get("pace_k", 100)
        self.kgen()
        self.stamp("kgen done")
        if not o.get("burst", 0):
            k(f"v_and_b32 v{self.V_P}, 31, v1\nv_lshlrev_b32 v{self.V_P}, 2, v{self.V_P}")
            k.wait_vm(self.t_xn[0])
            self.ut_mfma()
            self.ut_store()
        self.pace = o.get("pace_g1", 64)
        self.gemm1(0, w_c=o.get('w_c0', None), mid={2: self.stats_addr})
        self.stamp("gemm z2")
        self.poll_check(self.h_go, sleep=8, bump=True)
        if not o.get("burst", 0):
            k.wait_vm(self.t_ut)
            self.flag(0)
        self.gelu2()
        self.stats_publish()
        self.stamp("stats out")
        def f0():
            k.wait_vm(self.t_ut)
            self.flag(0)
        mid = {1: self.u_poll_issue, 8: self.u_load, 9: self.z_addr, o.get("st_c", 12): self.stats_issue}
        if o.get("burst", 0):
            self.ut_mfma()
            self.ut_store(self.V_TMP)
            mid = {4: f0, 11: self.u_poll_issue, 9: self.z_addr, o.get("st_c", 12): self.stats_issue}
        self.gemm1(1, w_c=o.get('w_c', 0), mid=mid)
        for p in range(14):
            a = self.V_ACC + 2 * p
            k(f"v_cvt_pk_bf16_f32 v{self.V_Z1+p}, v{a}, v{a+1}")
        self.stamp("gemm z1")
        if o.get("burst", 0): self.u_load()
        self.stats_collect_normalize()
        self.stamp("z2 stored")
        k("s_barrier")
        self.k_write()
        self.u_write_copy8()
        with k.atomic():
            k("s_waitcnt lgkmcnt(0)\ns_barrier")
        k.wait_vm(self.t_z)
        self.flag(1)
        self.stamp("z2 out")
        self.u_copies(mid=self.k_expand)
        self.conv()
        self.stamp("conv done")
        self.phase2()
        self.phase3()
        self.finish()

HEADER_IN = open("recurrent_scan__ssm_conv_s4d__mixer_gmlp__prompt.s.ref").read().split("; Override")[0]

def generate(stop=None, stamps=False, name=NAME, opt=None):
    g = Gen(stop, stamps, opt)
    g.build()
    body = g.k.finalize()
    txt = HEADER_IN
    txt += f"; @launch grid=(256,1,1) block=(256,1,1) lds=163840\n"
    txt += '.amdgcn_target "amdgcn-amd-amdhsa--gfx950"\n.text\n'
    txt += f".globl {name}\n.p2align 8\n.type {name},@function\n{name}:\n"
    txt += body
    txt += "L_exit:\n    s_endpgm\nL_code_end:\n"
    txt += f".set CODE_BYTES, L_code_end - {name}\n"
    txt += f""".section .rodata,"a"
.p2align 6
.amdhsa_kernel {name}
  .amdhsa_next_free_vgpr 512
  .amdhsa_next_free_sgpr 102
  .amdhsa_accum_offset 256
  .amdhsa_group_segment_fixed_size 0
  .amdhsa_kernarg_size 120
  .amdhsa_user_sgpr_count 2
  .amdhsa_user_sgpr_kernarg_segment_ptr 1
  .amdhsa_system_sgpr_workgroup_id_x 1
  .amdhsa_float_denorm_mode_32 3
.end_amdhsa_kernel
"""
    return txt, g

if __name__ == "__main__":
    out = sys.argv[1] if len(sys.argv) > 1 else "k.s"
    txt, g = generate(None, stamps=len(sys.argv) > 2)
    open(out, "w").write(txt)
    print("nops inserted", g.k.n_nops, "instr", sum(1 for i in g.k.ins if i.kind != "meta"), "est", g.k.est)
```
